```python
import torch

def _softmax(x, axis=-1):
    return torch.softmax(x, dim=axis)
def _gelu(x):
    return torch.nn.functional.gelu(x, approximate="tanh")
def _silu(x):
    return torch.nn.functional.silu(x)
def _sigmoid(x):
    return torch.sigmoid(x)
def _layernorm(x, axis=-1, eps=1e-5):
    m = x.mean(dim=axis, keepdim=True)
    v = x.var(dim=axis, keepdim=True, unbiased=False)
    return (x - m) / torch.sqrt(v + eps)
def _scatter_add(tgt, idx, src, axis=0):
    return tgt.clone().index_add_(axis, idx, src)
def _segment_sum(src, seg, n):
    out = torch.zeros((n,) + src.shape[1:], dtype=src.dtype)
    return out.index_add_(0, seg, src)
def _pad(x, pw):
    flat = tuple(v for pair in reversed(pw) for v in pair)
    return torch.nn.functional.pad(x, flat)

kernel_name = 'gated_mix__ssm_conv_s4__moe_arch_mod__prompt'

def setup_inputs():

    _w = (lambda a: (lambda t: t.to(torch.bfloat16) if t.is_floating_point() else t)(torch.as_tensor(a)))
    def _A_setup():
        B, L, D, N = 1, 2048, 576, 128
        A_re = -(lambda _x: torch.exp(torch.as_tensor(_x)))((lambda *s: torch.randn(*s, dtype=torch.bfloat16) * 3.2)(D, N))
        A_im = torch.pi * (lambda *s: torch.randn(*s, dtype=torch.bfloat16) * 0.05)(D, N)
        B_re = (lambda *s: torch.randn(*s, dtype=torch.bfloat16) * 0.2)(D, N)
        B_im = (lambda *s: torch.randn(*s, dtype=torch.bfloat16) * 0.2)(D, N)
        C_re = (lambda *s: torch.randn(*s, dtype=torch.bfloat16) * 0.2)(D, N)
        C_im = (lambda *s: torch.randn(*s, dtype=torch.bfloat16) * 0.2)(D, N)
        log_dt = (lambda *s: torch.randn(*s, dtype=torch.bfloat16) * 0.05)(D) * 0.5 - 4.0
        Dskip = (lambda *s: torch.randn(*s, dtype=torch.bfloat16) * 0.1)(D)
        return {
            "u": _w((lambda *s: torch.randn(*s, dtype=torch.bfloat16) * 0.05)(B, L, D)),
            "A_re": _w(A_re),
            "A_im": _w(A_im),
            "B_re": _w(B_re),
            "B_im": _w(B_im),
            "C_re": _w(C_re),
            "C_im": _w(C_im),
            "log_dt": _w(log_dt),
            "Dskip": _w(Dskip),
        }
    _A_in = _A_setup()

    def _B_setup():
        B, S, D, F, C = 1, 2048, 576, 4608, 8
        return {
            "x": _w((lambda *s: torch.randn(*s, dtype=torch.bfloat16) * 0.05)(B, S, D)),
            "w_r": _w((lambda *s: torch.randn(*s, dtype=torch.bfloat16) * 3.2)(D)),
            "w_gate": _w((lambda *s: torch.randn(*s, dtype=torch.bfloat16) * 0.1)(D, F)),
            "w_up": _w((lambda *s: torch.randn(*s, dtype=torch.bfloat16) * 0.1)(D, F)),
            "w_down": _w((lambda *s: torch.randn(*s, dtype=torch.bfloat16) * 0.1)(F, D)),
        }
    _B_in = _B_setup()

    return {
        "A_u": _A_in["u"],
        "A_A_re": _A_in["A_re"],
        "A_A_im": _A_in["A_im"],
        "A_B_re": _A_in["B_re"],
        "A_B_im": _A_in["B_im"],
        "A_C_re": _A_in["C_re"],
        "A_C_im": _A_in["C_im"],
        "A_log_dt": _A_in["log_dt"],
        "A_Dskip": _A_in["Dskip"],
        "B_x": _B_in["x"],
        "B_w_r": _B_in["w_r"],
        "B_w_gate": _B_in["w_gate"],
        "B_w_up": _B_in["w_up"],
        "B_w_down": _B_in["w_down"],
        "gate_w": _w((lambda *s: torch.randn(*s, dtype=torch.bfloat16) * 0.05)(576) * 16.0),
    }

def reference(A_u, A_A_re, A_A_im, A_B_re, A_B_im, A_C_re, A_C_im, A_log_dt, A_Dskip, B_x, B_w_r, B_w_gate, B_w_up, B_w_down, gate_w):
    def _A_ref(u, A_re, A_im, B_re, B_im, C_re, C_im, log_dt, Dskip):
        Bsz, L, D = u.shape
        dt = torch.exp(log_dt)[:, None]
        A = A_re + 1j * A_im
        Bc = B_re + 1j * B_im
        Cc = C_re + 1j * C_im
        logdA = dt * A
        dB = dt * Bc
        l = (lambda x, dt: x.to(dt))(torch.arange(L), A_re.dtype)
        P = torch.exp(logdA[:, :, None] * l[None, None, :])
        K = torch.einsum("dn,dnl,dn->dl", Cc, P, dB).real
        L2 = 2 * L
        Kp = _pad(K, ((0, 0), (0, L)))
        up = (lambda x, *d: x.permute(*d))(u, 0, 2, 1)
        up = _pad(up, ((0, 0), (0, 0), (0, L)))
        Kf = (lambda x, axes=(-2,-1): torch.fft.rfft2(x.float(), dim=axes))(Kp[:, None, :], axes=(-2, -1))
        Uf = (lambda x, axes=(-2,-1): torch.fft.rfft2(x.float(), dim=axes))(up[:, :, None, :], axes=(-2, -1))
        Yf = Uf * Kf[None, :, :, :]
        y = (lambda x, s, axes=(-2,-1): torch.fft.irfft2(x, s=s, dim=axes).to(torch.bfloat16))(Yf, (1, L2), axes=(-2, -1))[:, :, 0, :L]
        y = (lambda x, *d: x.permute(*d))(y, 0, 2, 1) + u * Dskip[None, None, :]
        return y

    def _B_ref(x, w_r, w_gate, w_up, w_down):
        B, S, D = x.shape
        C = 8
        r = x @ w_r
        idx = torch.argsort(-r, axis=-1)[:, :C]
        idx_e = (lambda x, n, axis: torch.repeat_interleave(x, n, dim=axis))(idx.reshape(B, C, 1), D, axis=2)
        x_sel = (lambda x, i, axis: torch.take_along_dim(x, i, dim=axis))(x, idx_e, axis=1)
        g = _silu(x_sel @ w_gate)
        u = x_sel @ w_up
        y = (g * u) @ w_down
        r_sel = _sigmoid((lambda x, i, axis: torch.take_along_dim(x, i, dim=axis))(r, idx, axis=1))
        y = y * r_sel.reshape(B, C, 1)
        b_off = (torch.arange(B) * S).reshape(B, 1)
        flat_idx = (idx + b_off).reshape(B * C)
        zero = (x * 0.0).reshape(B * S, D)
        upd = _scatter_add(zero, flat_idx, y.reshape(B * C, D), axis=0)
        return x + upd.reshape(B, S, D)

    x = A_u
    g = _sigmoid((x * gate_w).sum(-1, keepdims=True))
    a = _A_ref(x, A_A_re, A_A_im, A_B_re, A_B_im, A_C_re, A_C_im, A_log_dt, A_Dskip)
    b = _B_ref(x, B_w_r, B_w_gate, B_w_up, B_w_down)
    return g * a + (1 - g) * b
```

```python
import sys, os

NAME = "gated_mix__ssm_conv_s4__moe_arch_mod__prompt"
HERE = os.path.dirname(os.path.abspath(__file__))

WS_KEY = 0
WS_G = 8192
WS_FC = 16384
WS_FF = 28672
WS_PART = 32768
WS_YT = 1 << 20
WS_SIZE = 0x10000000

CPY = 4160
UC = 0
KH = 8 * CPY
KT = KH + 5120
URAW = KT + 2624
MX = URAW + 4160
CHSZ = MX + 64
LDS1 = max(3 * CHSZ, 162816)
XSF = 162800

L2E = 0x3fb8aa3b
L2E_LO = 0x32a57060
LN2 = 0x3f317218
INV2PI = 0x3e22f983


AMP = os.environ.get("AMP", "")
STAMP = int(os.environ.get("STAMP", "1" if AMP else "0"))
PREFETCH = int(os.environ.get("PREFETCH", "1"))
THR = int(os.environ.get("THR", "2"))
CODEPF = int(os.environ.get("CODEPF", "4"))
SLP = int(os.environ.get("SLP", "0"))
SLP2 = int(os.environ.get("SLP2", "0"))
LATED = int(os.environ.get("LATED", "1"))
PFC = int(os.environ.get("PFC", "0"))
GPF = int(os.environ.get("GPF", "0"))
WNT = os.environ.get("WNT", "")
OUTF = os.environ.get("OUTF", "")
TOUCH = int(os.environ.get("TOUCH", "0"))
import struct


def fbits(x):
    return struct.unpack("<I", struct.pack("<f", float(x)))[0]

WS_STAMP = 4 << 20


class Asm:
    def __init__(s):
        s.L = []

    def stamp(s, i, k=False):
        sel = os.environ.get("STAMPS")
        if sel and str(i) not in sel.split(","):
            return
        if STAMP and (k or not os.environ.get("KST")):
            s(f"s_memrealtime s[{84+2*i}:{85+2*i}]")

    def stamp_out(s, n, swsrd):
        if not STAMP:
            return
        if AMP:
            wg, wv, i, mult = [int(x) for x in AMP.split(",")]
            s.nl = getattr(s, "nl", 0) + 1
            s("s_waitcnt lgkmcnt(0)")
            s(f"s_cmp_lg_u32 s2, {wg}")
            s(f"s_cbranch_scc1 AMPX{s.nl}")
            s(f"s_cmp_lg_u32 s3, {wv}")
            s(f"s_cbranch_scc1 AMPX{s.nl}")
            s(f"s_sub_u32 s100, s{84+2*i}, s84")
            s(f"s_min_u32 s100, s100, 4000")
            s(f"s_mul_i32 s100, s100, {mult}")
            s(f"s_add_u32 s100, s100, s84")
            s(f"s_add_u32 s100, s100, 3000")
            s.lab(f"AMPL{s.nl}")
            s("s_memrealtime s[84:85]")
            s("s_waitcnt lgkmcnt(0)")
            s("s_sub_u32 s86, s84, s100")
            s("s_cmp_lt_i32 s86, 0")
            s(f"s_cbranch_scc1 AMPL{s.nl}")
            s.lab(f"AMPX{s.nl}")
            return
        s("s_waitcnt lgkmcnt(0)")
        s("s_lshl_b32 s100, s2, 4")
        s("s_add_u32 s100, s100, s3")
        s("s_lshl_b32 s100, s100, 6")
        s(f"s_add_u32 s100, s100, {WS_STAMP}")
        s("v_mov_b32 v1, 0")
        for i in range(n):
            s(f"v_mov_b32 v2, s{84+2*i}")
            s(f"buffer_store_dword v2, v1, s[{swsrd}:{swsrd+3}], s100 offen offset:{4*i}")

    def __call__(s, x):
        s.L.append("    " + x)

    def lab(s, x):
        s.L.append(x + ":")

    def c(s, x):
        s.L.append("    ; " + x)

    def nop(s, n):
        while n > 0:
            k = min(n, 16)
            s(f"s_nop {k-1}")
            n -= k


def vr(i, n):
    return f"v[{i}:{i+n-1}]"


def sr(i, n):
    return f"s[{i}:{i+n-1}]"


P_U, P_ARE, P_AIM, P_BRE, P_BIM, P_CRE, P_CIM, P_LDT = 16, 18, 20, 22, 24, 26, 28, 30
P_DSK, P_BX, P_WR, P_WG, P_WU, P_WD, P_GW, P_OUT = 32, 34, 36, 38, 40, 42, 44, 46
P_DBG, P_WS = 48, 50


def srd(a, d, p, size):
    a(f"s_mov_b32 s{d}, s{p}")
    a(f"s_mov_b32 s{d+1}, s{p+1}")
    a(f"s_mov_b32 s{d+2}, {size}")
    a(f"s_mov_b32 s{d+3}, 0x20000")


def wave_max_u32(a, vv, sdst):
    a.nop(2)
    a(f"v_max_u32_dpp v{vv}, v{vv}, v{vv} row_shr:1 row_mask:0xf bank_mask:0xf")
    a.nop(2)
    a(f"v_max_u32_dpp v{vv}, v{vv}, v{vv} row_shr:2 row_mask:0xf bank_mask:0xf")
    a.nop(2)
    a(f"v_max_u32_dpp v{vv}, v{vv}, v{vv} row_shr:4 row_mask:0xf bank_mask:0xf")
    a.nop(2)
    a(f"v_max_u32_dpp v{vv}, v{vv}, v{vv} row_shr:8 row_mask:0xf bank_mask:0xf")
    a.nop(2)
    a(f"v_max_u32_dpp v{vv}, v{vv}, v{vv} row_bcast:15 row_mask:0xa bank_mask:0xf")
    a.nop(2)
    a(f"v_max_u32_dpp v{vv}, v{vv}, v{vv} row_bcast:31 row_mask:0xc bank_mask:0xf")
    a.nop(1)
    a(f"v_readlane_b32 s{sdst}, v{vv}, 63")


def sigmoid_f32(a, dst, src, t):
    a(f"v_mul_f32 v{t}, 0xbfb8aa3b, v{src}")
    a(f"v_exp_f32 v{t}, v{t}")
    a.nop(1)
    a(f"v_add_f32 v{t}, 1.0, v{t}")
    a(f"v_rcp_f32 v{dst}, v{t}")
    a.nop(1)


def rtile(a):
    SX, SW, SWS, SDB = 52, 56, 64, 68
    srd(a, SX, P_U, 2359296)
    srd(a, SW, P_WR, 1152)
    srd(a, SWS, P_WS, WS_SIZE)
    srd(a, SDB, P_DBG, 256)
    a("s_lshl_b32 s5, s2, 1")
    a("s_add_u32 s5, s5, s3")
    a("s_lshl_b32 s4, s5, 4")
    a("v_add_u32 v5, s4, v3")
    a("s_movk_i32 s6, 1152")
    a("v_mul_lo_u32 v5, v5, s6")
    a("v_lshlrev_b32 v6, 4, v4")
    a("v_add_u32 v5, v5, v6")
    X, W = 16, 88
    for k in range(18):
        a(f"buffer_load_dwordx4 {vr(X+4*k,4)}, v5, {sr(SX,4)}, 0 offen offset:{64*k}")
        a(f"buffer_load_dwordx4 {vr(W+4*k,4)}, v6, {sr(SW,4)}, 0 offen offset:{64*k}")
    a("v_mov_b32 v13, 0")
    a(f"buffer_load_dword v15, v13, {sr(SDB,4)}, 0 offen sc1")
    a("s_barrier")
    for j in range(4):
        a(f"v_mov_b32 v{8+j}, 0")
    for k in range(18):
        a(f"s_waitcnt vmcnt({2*(17-k)+1})")
        a(f"v_mfma_f32_16x16x32_bf16 v[8:11], {vr(X+4*k,4)}, {vr(W+4*k,4)}, v[8:11]")
    a("v_lshlrev_b32 v7, 2, v4")
    a("v_add_u32 v7, s4, v7")
    a("v_sub_u32 v12, 2047, v7")
    a("v_lshlrev_b32 v7, 2, v7")
    a.nop(8)
    a("v_cvt_pk_bf16_f32 v160, v8, v9")
    a("v_cvt_pk_bf16_f32 v161, v10, v11")
    a("v_lshlrev_b32 v8, 16, v160")
    a("v_and_b32 v9, 0xffff0000, v160")
    a("v_lshlrev_b32 v10, 16, v161")
    a("v_and_b32 v11, 0xffff0000, v161")
    for j in range(4):
        a(f"v_ashrrev_i32 v160, 31, v{8+j}")
        a(f"v_or_b32 v160, 0x80000000, v160")
        a(f"v_xor_b32 v{8+j}, v{8+j}, v160")
        a(f"v_and_b32 v{8+j}, 0xffff0000, v{8+j}")
        a(f"v_subrev_u32 v160, {j}, v12")
        a(f"v_or_b32 v{8+j}, v{8+j}, v160")
    a("s_mov_b32 s8, 0")
    a.lab("RT_GO")
    a("s_waitcnt vmcnt(0)")
    a("v_readfirstlane_b32 s9, v15")
    a("s_add_u32 s8, s8, 1")
    a("s_cmp_lg_u32 s9, 0")
    a("s_cbranch_scc1 RT_PUB")
    a("s_cmp_ge_u32 s8, 0x8000")
    a("s_cbranch_scc1 RT_PUB")
    a(f"buffer_load_dword v15, v13, {sr(SDB,4)}, 0 offen sc1")
    a("s_branch RT_GO")
    a.lab("RT_PUB")
    a("v_cmp_eq_u32 vcc, 0, v3")
    a("s_and_saveexec_b64 s[6:7], vcc")
    a(f"buffer_store_dwordx4 v[8:11], v7, {sr(SWS,4)}, 0 offen offset:{WS_KEY} sc1")
    a("s_mov_b64 exec, s[6:7]")


def selector(a):
    SWS, SDB = 64, 68
    srd(a, SWS, P_WS, WS_SIZE)
    srd(a, SDB, P_DBG, 256)
    a("v_lshlrev_b32 v20, 4, v2")
    for j in range(4):
        a(f"v_mov_b32 v{8+j}, 0")
    a("v_add_u32 v21, 0x1000, v20")
    a("v_mov_b32 v12, 1")
    a("v_mov_b32 v13, 0")
    a("s_cmp_lg_u32 s3, 2")
    a("s_cbranch_scc1 SEL_REST")
    for k in range(8):
        a(f"buffer_store_dwordx4 v[8:11], v{20+(k>>2)}, {sr(SWS,4)}, 0 offen offset:{WS_KEY+1024*(k&3)} sc1")
    a("s_waitcnt vmcnt(0)")
    a(f"buffer_store_dword v12, v13, {sr(SDB,4)}, 0 offen sc1")
    a("s_barrier")
    a("s_branch SEL_GO")
    a.lab("SEL_REST")
    a("s_sub_u32 s4, s3, 1")
    a("s_min_u32 s4, s4, 7")
    a("s_lshl_b32 s4, s4, 12")
    for k in range(4):
        a(f"buffer_store_dwordx4 v[8:11], v20, {sr(SWS,4)}, s4 offen offset:{1024*k} sc1")
    a("s_waitcnt vmcnt(0)")
    a("s_barrier")
    a("s_cmp_lg_u32 s3, 3")
    a("s_cbranch_scc1 K1_END")
    a(f"buffer_store_dword v12, v13, {sr(SDB,4)}, 0 offen offset:4 sc1")
    a("s_endpgm")
    a.lab("SEL_GO")
    a("s_mov_b32 s8, 0")
    KY = 24
    a.lab("R_POLL")
    for k in range(8):
        a(f"buffer_load_dwordx4 {vr(KY+4*k,4)}, v{20+(k>>2)}, {sr(SWS,4)}, 0 offen offset:{WS_KEY+1024*(k&3)} sc1")
    a("s_waitcnt vmcnt(0)")
    a(f"v_min_u32 v12, v{KY}, v{KY+1}")
    for k in range(15):
        a(f"v_min3_u32 v12, v12, v{KY+2+2*k}, v{KY+3+2*k}")
    a("v_cmp_eq_u32 vcc, 0, v12")
    a("s_add_u32 s8, s8, 1")
    a("s_cmp_eq_u64 vcc, 0")
    a("s_cbranch_scc1 R_SEL")
    a("s_cmp_ge_u32 s8, 0x4000")
    a("s_cbranch_scc1 R_SEL")
    a("s_branch R_POLL")
    a.lab("R_SEL")
    a.stamp(2)
    a("v_mov_b32 v15, 0")
    a("s_mov_b32 s9, 0")
    TK = 60
    for r in range(8):
        for j in range(32):
            a(f"v_subrev_u32 v{TK+j}, s9, v{KY+j}")
        for j in range(10):
            a(f"v_max3_u32 v{TK+3*j}, v{TK+3*j}, v{TK+3*j+1}, v{TK+3*j+2}")
        a(f"v_max3_u32 v{TK}, v{TK}, v{TK+3}, v{TK+6}")
        a(f"v_max3_u32 v{TK+9}, v{TK+9}, v{TK+12}, v{TK+15}")
        a(f"v_max3_u32 v{TK+18}, v{TK+18}, v{TK+21}, v{TK+24}")
        a(f"v_max3_u32 v{TK+27}, v{TK+27}, v{TK+30}, v{TK+31}")
        a(f"v_max3_u32 v{TK}, v{TK}, v{TK+9}, v{TK+18}")
        a(f"v_max_u32 v{TK}, v{TK}, v{TK+27}")
        wave_max_u32(a, TK, 8)
        a("s_add_u32 s9, s9, s8")
        a.nop(2)
        a(f"v_writelane_b32 v15, s9, {r}")
    if os.environ.get("DELAYS"):
        a("s_sleep 64")
    a("v_lshlrev_b32 v13, 2, v2")
    a("v_cmp_gt_u32 vcc, 8, v2")
    a("s_and_saveexec_b64 s[6:7], vcc")
    a(f"buffer_store_dword v15, v13, {sr(SDB,4)}, 0 offen offset:128 sc1")
    a("s_mov_b64 exec, s[6:7]")
    a.stamp(4)
    a.stamp_out(5, SWS)
    a("s_endpgm")


def role_R(a):
    a.lab("ROLE_R")
    SX, SG, SWS = 52, 60, 64
    a("s_cmp_eq_u32 s2, 0")
    a("s_cbranch_scc1 K1_END")
    a("s_mul_i32 s4, s2, 9")
    a("s_add_u32 s4, s4, s3")
    a("s_sub_u32 s4, s4, 9")
    a("s_cmp_ge_u32 s3, 9")
    a("s_cbranch_scc1 " + ("G_PF" if GPF else "K1_END"))
    a("s_cmp_ge_u32 s4, 128")
    a("s_cbranch_scc1 K1_END")
    srd(a, SX, P_U, 2359296)
    srd(a, SG, P_GW, 1152)
    srd(a, SWS, P_WS, WS_SIZE)
    srd(a, 68, P_DBG, 256)
    a.stamp(3)
    a("s_lshl_b32 s4, s4, 4")
    a("v_add_u32 v5, s4, v3")
    a("s_movk_i32 s5, 1152")
    a("v_mul_lo_u32 v5, v5, s5")
    a("v_lshlrev_b32 v6, 4, v4")
    a("v_add_u32 v5, v5, v6")
    X, W = 16, 88
    a("v_lshlrev_b32 v7, 2, v4")
    a("v_add_u32 v7, s4, v7")
    a("v_lshlrev_b32 v7, 2, v7")
    AH = int(os.environ.get('AH', '4'))
    def ld(k):
        a(f"buffer_load_dwordx4 {vr(X+4*k,4)}, v5, {sr(SX,4)}, 0 offen offset:{64*k}")
        a(f"buffer_load_dwordx4 {vr(W+4*k,4)}, v6, {sr(SG,4)}, 0 offen offset:{64*k}")
    for k in range(AH):
        ld(k)
    for j in range(4):
        a(f"v_mov_b32 v{12+j}, 0")
        a(f"v_mov_b32 v{164+j}, 0x3f803f80")
    for k in range(18):
        a(f"s_waitcnt vmcnt({2*min(AH-1, 17-k)})")
        if k + AH < 18:
            ld(k + AH)
        for j in range(4):
            xr, wr_ = X + 4 * k + j, W + 4 * k + j
            a(f"v_lshlrev_b32 v160, 16, v{xr}")
            a(f"v_lshlrev_b32 v161, 16, v{wr_}")
            a(f"v_and_b32 v162, 0xffff0000, v{xr}")
            a(f"v_and_b32 v163, 0xffff0000, v{wr_}")
            a(f"v_mul_f32 v160, v160, v161")
            a(f"v_mul_f32 v162, v162, v163")
            a(f"v_cvt_pk_bf16_f32 v{xr}, v160, v162")
        a.nop(2)
        a(f"v_mfma_f32_16x16x32_bf16 v[12:15], {vr(X+4*k,4)}, v[164:167], v[12:15]")
    a.nop(8)
    a("v_cvt_pk_bf16_f32 v160, v12, v13")
    a("v_cvt_pk_bf16_f32 v161, v14, v15")
    a("v_lshlrev_b32 v8, 16, v160")
    a("v_and_b32 v9, 0xffff0000, v160")
    a("v_lshlrev_b32 v10, 16, v161")
    a("v_and_b32 v11, 0xffff0000, v161")
    for j in range(4):
        sigmoid_f32(a, 8 + j, 8 + j, 160)
    a("v_cvt_pk_bf16_f32 v160, v8, v9")
    a("v_cvt_pk_bf16_f32 v161, v10, v11")
    a("v_lshlrev_b32 v8, 16, v160")
    a("v_and_b32 v9, 0xffff0000, v160")
    a("v_lshlrev_b32 v10, 16, v161")
    a("v_and_b32 v11, 0xffff0000, v161")
    for j in range(4):
        a(f"v_or_b32 v{8+j}, 1, v{8+j}")
    a("v_add_u32 v7, 0x2000, v7")
    a("v_mov_b32 v13, 0")
    a("s_mov_b32 s8, 0")
    a.lab("G_GO")
    a("buffer_load_dword v15, v13, s[68:71], 0 offen offset:4 sc1")
    a("s_waitcnt vmcnt(0)")
    a("v_readfirstlane_b32 s9, v15")
    a("s_add_u32 s8, s8, 1")
    a("s_cmp_lg_u32 s9, 0")
    a("s_cbranch_scc1 G_PUB")
    a("s_cmp_lt_u32 s8, 0x8000")
    a("s_cbranch_scc1 G_GO")
    a.lab("G_PUB")
    if os.environ.get("DELAYG"):
        a("s_sleep 64")
    a("v_cmp_eq_u32 vcc, 0, v3")
    a("s_and_saveexec_b64 s[6:7], vcc")
    a(f"buffer_store_dwordx4 v[8:11], v7, {sr(SWS,4)}, 0 offen sc1")
    a("s_mov_b64 exec, s[6:7]")
    a.stamp(4)
    a.stamp_out(5, SWS)
    a("s_endpgm")


def g_prefetch(a):
    a.lab("G_PF")
    srd(a, 56, P_WU, 5308416)
    a("s_and_b32 s4, s2, 7")
    a("s_mul_i32 s4, s4, 6")
    a("s_lshr_b32 s5, s2, 3")
    a("s_mul_i32 s5, s5, 3")
    a("s_add_u32 s4, s4, s5")
    a("s_add_u32 s4, s4, s3")
    a("s_sub_u32 s4, s4, 9")
    a("s_mul_i32 s4, s4, 192")
    a(f"s_add_u32 s4, s4, {192*9216}")
    a("v_lshrrev_b32 v8, 1, v2")
    a("s_movk_i32 s5, 9216")
    a("v_mul_lo_u32 v8, v8, s5")
    a("v_and_b32 v9, 1, v2")
    a("v_lshl_add_u32 v8, v9, 7, v8")
    for k in range(12):
        a(f"buffer_load_dword v{10+(k&3)}, v8, s[56:59], s4 offen")
        a("s_add_u32 s4, s4, 294912")
    a("s_endpgm")


def role_F(a):
    a.lab("ROLE_F")
    if TOUCH == 2:
        a("s_cmp_lg_u32 s3, 5")
        a("s_cbranch_scc1 NOTOUCH_F")
        srd(a, 84, P_WS, WS_SIZE)
        srd(a, 88, P_OUT, 2359296)
        srd(a, 92, P_DBG, 256)
        srd(a, 96, P_DSK, 1152)
        a("v_lshlrev_b32 v160, 16, v2")
        a("buffer_load_dword v161, v160, s[84:87], 0 offen sc1")
        a("v_min_u32 v160, 0x23f000, v160")
        a("buffer_load_dword v162, v160, s[88:91], 0 offen")
        a("v_mov_b32 v160, 0")
        a("buffer_load_dword v163, v160, s[92:95], 0 offen sc1")
        a("buffer_load_dword v163, v160, s[96:99], 0 offen")
        a.lab("NOTOUCH_F")
    SW, SD, SX, SWS, SDB = 52, 56, 60, 64, 68
    DW, TR, XS, GU = 0, 110592, 147456, 156672
    a("s_sub_u32 s5, s2, 16")
    a("s_and_b32 s4, s5, 7")
    a("s_mul_i32 s4, s4, 6")
    a("s_lshr_b32 s5, s5, 3")
    a("s_add_u32 s4, s4, s5")
    a("s_mul_i32 s5, s4, 96")
    a("s_cmp_ge_u32 s3, 6")
    a(f"s_cselect_b32 s{SW}, s{P_WU}, s{P_WG}")
    a(f"s_cselect_b32 s{SW+1}, s{P_WU+1}, s{P_WG+1}")
    a("s_cselect_b32 s6, 6, 0")
    a("s_cselect_b32 s12, 1, 0")
    a(f"s_mov_b32 s{SW+2}, 5308416")
    a(f"s_mov_b32 s{SW+3}, 0x20000")
    a("s_sub_u32 s6, s3, s6")
    srd(a, SD, P_WD, 5308416)
    srd(a, SX, P_U, 2359296)
    srd(a, SWS, P_WS, WS_SIZE)
    srd(a, SDB, P_DBG, 256)
    a("s_and_b32 s13, s4, 1")
    a("s_lshl_b32 s14, s13, 6")
    a("s_xor_b32 s13, s13, 1")
    a("s_lshl_b32 s13, s13, 7")
    a("s_movk_i32 s7, 9216")
    a("v_lshrrev_b32 v5, 3, v2")
    a("v_and_b32 v6, 7, v2")
    a("v_mul_lo_u32 v7, v5, s7")
    a("v_lshl_add_u32 v7, v6, 4, v7")
    a("v_add_u32 v7, s14, v7")
    a("v_lshrrev_b32 v14, 2, v2")
    a("v_and_b32 v15, 3, v2")
    a("v_mul_lo_u32 v8, v14, s7")
    a("v_lshl_add_u32 v8, v15, 4, v8")
    a("v_add_u32 v8, s13, v8")
    a("s_mul_i32 s7, s6, 884736")
    a("s_mul_i32 s8, s4, 192")
    a("s_add_u32 s7, s7, s8")
    SP0 = 20
    ST = SP0 + 24
    a("v_lshlrev_b32 v9, 4, v2")
    a("s_mul_i32 s72, s5, 1152")
    a("s_mul_i32 s73, s3, 9216")
    a("s_add_u32 s72, s72, s73")
    a("s_mov_b32 s74, s7")
    a("s_and_b32 s76, s3, 1")
    a("s_lshl_b32 s76, s76, 1")

    def issue(gi):
        if gi < 6:
            hs = gi
            a(f"buffer_load_dwordx4 {vr(ST+12*hs,4)}, v7, {sr(SW,4)}, s74 offen {WNT}")
            a("s_add_u32 s75, s74, 73728")
            a(f"buffer_load_dwordx4 {vr(ST+12*hs+4,4)}, v7, {sr(SW,4)}, s75 offen {WNT}")
            a(f"buffer_load_dwordx4 {vr(ST+12*hs+8,4)}, v8, {sr(SW,4)}, s74 offen {WNT}")
            a("s_add_u32 s74, s74, 147456")
        else:
            for j in range(3 * (gi - 6), 3 * (gi - 6) + 3):
                a(f"v_add_u32 v116, {64*j}, v2")
                a("v_mul_u32_u24 v117, 911, v116")
                a("v_lshrrev_b32 v117, 16, v117")
                a("v_mul_u32_u24 v118, 72, v117")
                a("v_sub_u32 v118, v116, v118")
                a("v_bfe_u32 v119, v117, 1, 1")
                a("v_add_u32 v119, s76, v119")
                a("v_lshrrev_b32 v116, 1, v118")
                a("v_sub_u32 v116, v116, v119")
                a("v_and_b32 v116, 3, v116")
                a("v_and_b32 v118, 0x79, v118")
                a("v_lshl_or_b32 v118, v116, 1, v118")
                a("v_mul_u32_u24 v117, 72, v117")
                a("v_add_lshl_u32 v117, v117, v118, 4")
                a(f"s_add_u32 m0, s73, {DW + 1024*j}")
                a("s_nop 0")
                a(f"buffer_load_dwordx4 v117, {sr(SD,4)}, s72 offen {WNT} lds")
    a("v_mov_b32 v16, 0")
    a("s_cmp_lg_u32 s3, 4")
    a("s_cbranch_scc1 F_NOCLR")
    for j in range(4):
        a(f"v_mov_b32 v{116+j}, 0")
    a("s_mul_i32 s8, s4, 18432")
    a(f"s_add_u32 s8, s8, {WS_PART}")
    for k in range(18):
        a(f"buffer_store_dwordx4 v[116:119], v9, {sr(SWS,4)}, s8 offen offset:{1024*(k&3)} sc1")
        if k & 3 == 3:
            a("s_add_u32 s8, s8, 4096")
    a("v_mov_b32 v16, 0")
    a(f"buffer_load_dword v19, v16, {sr(SDB,4)}, 0 offen offset:4 sc1")
    a.lab("F_NOCLR")
    for gi in range(THR):
        issue(gi)
    a("s_mul_i32 s7, s3, 3072")
    a(f"s_add_u32 s7, s7, {TR}")
    a("s_movk_i32 s8, 192")
    a("v_mul_lo_u32 v10, v5, s8")
    a("v_lshl_add_u32 v10, v6, 4, v10")
    a("s_add_u32 s9, s7, s14")
    a("v_add_u32 v10, s9, v10")
    a("v_mul_lo_u32 v11, v14, s8")
    a("v_lshl_add_u32 v11, v15, 4, v11")
    a("s_add_u32 s9, s7, s13")
    a("v_add_u32 v11, s9, v11")
    a("v_lshrrev_b32 v12, 2, v3")
    a("v_lshl_add_u32 v12, v4, 2, v12")
    a("v_mul_lo_u32 v12, v12, s8")
    a("v_and_b32 v13, 3, v3")
    a("v_lshl_add_u32 v12, v13, 3, v12")
    a("v_add_u32 v12, s7, v12")
    blk = lambda kq: SP0 + 24 * kq
    for hs in range(6):
        kq, hh = hs >> 1, hs & 1
        a(f"s_waitcnt vmcnt({3*min(THR-1, 5-hs) if LATED else 3*(THR-1)})")
        if hs == 0:
            a("s_cmp_lg_u32 s3, 4")
            a("s_cbranch_scc1 F_NORDY")
            a("s_mov_b32 s9, 0")
            a.lab("F_GO2")
            a("v_readfirstlane_b32 s8, v19")
            a("s_add_u32 s9, s9, 1")
            a("s_cmp_lg_u32 s8, 0")
            a("s_cbranch_scc1 F_GO2_OK")
            a("s_cmp_ge_u32 s9, 0x8000")
            a("s_cbranch_scc1 F_GO2_OK")
            a(f"buffer_load_dword v19, v16, {sr(SDB,4)}, 0 offen offset:4 sc1")
            a("s_waitcnt vmcnt(0)")
            a("s_branch F_GO2")
            a.lab("F_GO2_OK")
            a("s_lshl_b32 s8, s4, 6")
            a(f"s_add_u32 s8, s8, {WS_FF}")
            a("v_mov_b32 v19, 1")
            a(f"buffer_store_dword v19, v16, {sr(SWS,4)}, s8 offen sc1")
            a.lab("F_NORDY")
        if hs + THR < 6 or not LATED:
            issue(hs + THR)
        a(f"ds_write_b128 v10, {vr(ST+12*hs,4)}")
        a(f"ds_write_b128 v10, {vr(ST+12*hs+4,4)} offset:1536")
        a(f"ds_write_b128 v11, {vr(ST+12*hs+8,4)}")
        for t in range(6):
            a(f"ds_read_b64_tr_b16 {vr(blk(kq)+4*t+2*hh,2)}, v12 offset:{32*t}")
    if not LATED:
        for gi in range(6 + THR, 9):
            a(f"s_waitcnt vmcnt({3*(THR-1)})")
            issue(gi)
    a.stamp(1)
    a("s_sub_u32 s9, s3, 2")
    a("s_cmp_ge_u32 s9, 2")
    a("s_cbranch_scc1 F_XS_DONE")
    a("v_and_b32 v16, 7, v2")
    a("v_lshlrev_b32 v16, 2, v16")
    a("v_min_u32 v18, 47, v2")
    a("v_lshlrev_b32 v18, 6, v18")
    a(f"v_add_u32 v18, {WS_FF}, v18")
    a("s_mov_b32 s8, 0")
    a.lab("F_POLL")
    a(f"buffer_load_dword v17, v16, {sr(SDB,4)}, 0 offen offset:128 sc1")
    a("s_waitcnt vmcnt(0)")
    a("v_cmp_eq_u32 vcc, 0, v17")
    a("s_add_u32 s8, s8, 1")
    a("s_cmp_eq_u64 vcc, 0")
    a("s_cbranch_scc1 F_GOT")
    a("s_cmp_lt_u32 s8, 0x8000")
    a("s_cbranch_scc1 F_POLL")
    a.lab("F_GOT")
    a.stamp(2)
    FREE = SP0 + 72
    a("s_lshl_b32 s9, s9, 2")
    a("v_cmp_gt_u32 vcc, 8, v2")
    for r in range(4):
        a("v_readlane_b32 s8, v17, s9")
        a("s_add_u32 s9, s9, 1")
        a("s_and_b32 s8, s8, 0x7ff")
        a("s_sub_u32 s8, 2047, s8")
        a("s_mul_i32 s8, s8, 1152")
        a.nop(3)
        a(f"buffer_load_dwordx4 {vr(120+8*r,4)}, v9, {sr(SX,4)}, s8 offen")
        a("s_and_saveexec_b64 s[10:11], vcc")
        a(f"buffer_load_dwordx4 {vr(124+8*r,4)}, v9, {sr(SX,4)}, s8 offen offset:1024")
        a("s_mov_b64 exec, s[10:11]")
    a("s_mov_b32 s8, 0")
    a.lab("F_RPOLL")
    a(f"buffer_load_dword v19, v18, {sr(SWS,4)}, 0 offen sc1")
    a("s_waitcnt vmcnt(0)")
    a("v_cmp_eq_u32 s[10:11], 0, v19")
    a("s_add_u32 s8, s8, 1")
    a("s_cmp_eq_u64 s[10:11], 0")
    a("s_cbranch_scc1 F_ROK")
    a("s_cmp_lt_u32 s8, 0x8000")
    a("s_cbranch_scc1 F_RPOLL")
    a.lab("F_ROK")
    a("s_sub_u32 s9, s9, 4")
    a("s_mul_i32 s9, s9, 1152")
    a(f"s_add_u32 s9, s9, {XS}")
    a("v_add_u32 v18, s9, v9")
    for r in range(4):
        a(f"ds_write_b128 v18, {vr(120+8*r,4)} offset:{1152*r}")
    a("s_and_saveexec_b64 s[10:11], vcc")
    for r in range(4):
        a(f"ds_write_b128 v18, {vr(124+8*r,4)} offset:{1152*r+1024}")
    a("s_mov_b64 exec, s[10:11]")
    a("s_waitcnt lgkmcnt(0)")
    a("s_lshl_b32 s8, s3, 2")
    a(f"s_add_u32 s8, s8, {XSF-8}")
    a("v_mov_b32 v16, s8")
    a("v_mov_b32 v17, 1")
    a("ds_write_b32 v16, v17")
    a.lab("F_XS_DONE")
    a(f"v_mov_b32 v16, {XSF}")
    a("s_mov_b32 s8, 0")
    a.lab("F_XS_WAIT")
    a("ds_read_b64 v[18:19], v16")
    a("s_waitcnt lgkmcnt(0)")
    a("v_and_b32 v18, v18, v19")
    a("s_nop 0")
    a("v_readfirstlane_b32 s9, v18")
    a("s_add_u32 s8, s8, 1")
    a("s_cmp_lg_u32 s9, 0")
    a("s_cbranch_scc1 F_XS_OK")
    a("s_sleep 2")
    a("s_cmp_lt_u32 s8, 0x40000")
    a("s_cbranch_scc1 F_XS_WAIT")
    a.lab("F_XS_OK")
    a.stamp(3)
    if LATED:
        for gi in range(6, 9):
            issue(gi)
    if os.environ.get("FCUT") == "1":
        a.stamp(4)
        a.stamp_out(8, SWS)
        a("s_endpgm")
    a("v_and_b32 v16, 7, v3")
    a("s_movk_i32 s8, 1152")
    a("v_mul_lo_u32 v16, v16, s8")
    a("v_lshl_add_u32 v16, v4, 3, v16")
    a("s_mul_i32 s8, s6, 192")
    a(f"s_add_u32 s8, s8, {XS}")
    a("v_add_u32 v16, s8, v16")
    XB, AC = 120, FREE
    for kq in range(3):
        a(f"ds_read2_b64 {vr(XB+4*kq,4)}, v16 offset0:{8*kq} offset1:{8*kq+4}")
    for j in range(24):
        a(f"v_mov_b32 v{AC+j}, 0")
    for kq in range(3):
        a(f"s_waitcnt lgkmcnt({2-kq})")
        for t in range(6):
            a(f"v_mfma_f32_16x16x32_bf16 {vr(AC+4*t,4)}, {vr(blk(kq)+4*t,4)}, {vr(XB+4*kq,4)}, {vr(AC+4*t,4)}")
    a.stamp(6)
    if os.environ.get("FCUT") == "2":
        a.stamp(4)
        a.stamp_out(8, SWS)
        a("s_endpgm")
    a("v_lshl_add_u32 v17, v4, 3, v3")
    a("v_lshlrev_b32 v17, 4, v17")
    a("v_add_u32 v18, s7, v17")
    a("v_cmp_gt_u32 vcc, 8, v3")
    a("s_and_saveexec_b64 s[10:11], vcc")
    a.nop(8)
    for t in range(6):
        a(f"ds_write_b128 v18, {vr(AC+4*t,4)} offset:{512*t}")
    a("s_mov_b64 exec, s[10:11]")
    a("v_lshrrev_b32 v12, 2, v3")
    a("v_lshl_add_u32 v12, v4, 3, v12")
    a("s_movk_i32 s8, 1152")
    a("v_mul_lo_u32 v12, v12, s8")
    a("v_lshl_add_u32 v12, v13, 3, v12")
    a("v_bfe_u32 v14, v3, 3, 1")
    a("v_and_b32 v15, 1, v4")
    a("v_lshl_add_u32 v14, v15, 1, v14")
    DF = 132
    for dl in range(3):
        a("s_mul_i32 s8, s3, 3")
        a(f"s_add_u32 s8, s8, {dl}")
        a("v_add_u32 v15, s8, v14")
        a("v_and_b32 v15, 3, v15")
        a("s_lshr_b32 s8, s8, 2")
        a("s_lshl_b32 s8, s8, 7")
        a("v_lshl_add_u32 v15, v15, 5, v12")
        a(f"v_add_u32 v{116+dl}, s8, v15")
    a("s_waitcnt lgkmcnt(0)")
    a("s_barrier")
    a.stamp(7)
    if os.environ.get("FCUT") == "3":
        a.stamp(4)
        a.stamp_out(8, SWS)
        a("s_endpgm")
    a("s_cmp_ge_u32 s3, 6")
    a("s_cbranch_scc1 F_NOH")
    a("s_lshl_b32 s9, s3, 9")
    a(f"s_add_u32 s8, s9, {TR}")
    a("v_add_u32 v18, s8, v17")
    for k in range(6):
        a(f"ds_read_b128 {vr(AC+4*k,4)}, v18 offset:{3072*k}")
    for k in range(6):
        a(f"ds_read_b128 {vr(20+4*k,4)}, v18 offset:{18432+3072*k}")
    a("s_lshl_b32 s8, s3, 5")
    a("s_movk_i32 s9, 192")
    a("v_mul_lo_u32 v14, v3, s9")
    a("v_lshl_add_u32 v15, v4, 3, v14")
    a("v_add_u32 v15, s8, v15")
    a("v_add_u32 v15, 0x20000, v15")
    for base, wc in ((AC, 6), (20, 0)):
        a(f"s_waitcnt lgkmcnt({wc})")
        for j in range(4):
            a(f"v_add_f32 v{base+j}, v{base+j}, v{base+4+j}")
            a(f"v_add_f32 v{base+8+j}, v{base+8+j}, v{base+12+j}")
            a(f"v_add_f32 v{base+16+j}, v{base+16+j}, v{base+20+j}")
            a(f"v_add_f32 v{base+j}, v{base+j}, v{base+8+j}")
            a(f"v_add_f32 v{base+j}, v{base+j}, v{base+16+j}")
        a(f"v_cvt_pk_bf16_f32 v{base+4}, v{base}, v{base+1}")
        a(f"v_cvt_pk_bf16_f32 v{base+5}, v{base+2}, v{base+3}")
        a(f"v_lshlrev_b32 v{base}, 16, v{base+4}")
        a(f"v_and_b32 v{base+1}, 0xffff0000, v{base+4}")
        a(f"v_lshlrev_b32 v{base+2}, 16, v{base+5}")
        a(f"v_and_b32 v{base+3}, 0xffff0000, v{base+5}")
    for j in range(4):
        a(f"v_mul_f32 v{48+j}, 0xbfb8aa3b, v{AC+j}")
    for j in range(4):
        a(f"v_exp_f32 v{48+j}, v{48+j}")
    a.nop(1)
    for j in range(4):
        a(f"v_add_f32 v{48+j}, 1.0, v{48+j}")
    for j in range(4):
        a(f"v_rcp_f32 v{48+j}, v{48+j}")
    a.nop(1)
    for j in range(4):
        a(f"v_mul_f32 v{AC+j}, v{AC+j}, v{48+j}")
    a(f"v_cvt_pk_bf16_f32 v48, v{AC}, v{AC+1}")
    a(f"v_cvt_pk_bf16_f32 v49, v{AC+2}, v{AC+3}")
    a(f"v_lshlrev_b32 v{AC}, 16, v48")
    a(f"v_and_b32 v{AC+1}, 0xffff0000, v48")
    a(f"v_lshlrev_b32 v{AC+2}, 16, v49")
    a(f"v_and_b32 v{AC+3}, 0xffff0000, v49")
    for j in range(4):
        a(f"v_mul_f32 v{AC+j}, v{AC+j}, v{20+j}")
    a(f"v_cvt_pk_bf16_f32 v48, v{AC}, v{AC+1}")
    a(f"v_cvt_pk_bf16_f32 v49, v{AC+2}, v{AC+3}")
    a(f"ds_write_b64 v15, v[48:49] offset:{GU-0x20000}")
    a.lab("F_NOH")
    a("s_waitcnt vmcnt(0) lgkmcnt(0)")
    a("s_barrier")
    for q in range(3):
        for dl in range(3):
            c = 3 * q + dl
            if q:
                a(f"v_add_u32 v{116+dl}, 36864, v{116+dl}")
            a(f"ds_read_b64_tr_b16 {vr(DF+4*c,2)}, v{116+dl} offset:{DW}")
            a(f"ds_read_b64_tr_b16 {vr(DF+4*c+2,2)}, v{116+dl} offset:{DW+4608}")

    if os.environ.get("FCUT") == "4":
        a.stamp(4)
        a.stamp_out(8, SWS)
        a("s_endpgm")
    a("s_movk_i32 s9, 192")
    a("v_and_b32 v14, 7, v3")
    a("v_mul_lo_u32 v14, v14, s9")
    a("v_lshl_add_u32 v14, v4, 4, v14")
    a("v_add_u32 v14, 0x20000, v14")
    for q in range(3):
        a(f"ds_read_b128 {vr(56+4*q,4)}, v14 offset:{GU-0x20000+64*q}")
    a("s_waitcnt lgkmcnt(0)")
    for j in range(12):
        a(f"v_mov_b32 v{72+j}, 0")
    a.nop(2)
    for q in range(3):
        for dl in range(3):
            c = q * 3 + dl
            a(f"v_mfma_f32_16x16x32_bf16 {vr(72+4*dl,4)}, {vr(DF+4*c,4)}, {vr(56+4*q,4)}, {vr(72+4*dl,4)}")
    if os.environ.get("DELAYF"):
        a("s_sleep 64")
    SO, SDK = 72, 76
    srd(a, SO, P_OUT, 2359296)
    srd(a, SDK, P_DSK, 1152)
    a("s_mul_i32 s7, s4, 384")
    a(f"s_add_u32 s7, s7, {WS_PART}")
    a("v_mul_u32_u24 v14, 48, v3")
    a("s_mul_i32 s8, s3, 12")
    a("v_add_u32 v15, s8, v4")
    for dl in range(3):
        a(f"v_add_u32 v16, {4*dl}, v15")
        a("v_mul_u32_u24 v17, 171, v16")
        a("v_lshrrev_b32 v17, 9, v17")
        a("v_mul_u32_u24 v18, 3, v17")
        a("v_sub_u32 v18, v16, v18")
        a("s_movk_i32 s8, 18432")
        a("v_mul_lo_u32 v17, v17, s8")
        a("v_lshl_add_u32 v17, v18, 4, v17")
        a(f"v_add_u32 v{116+dl}, v17, v14")
    a("v_cmp_gt_u32 vcc, 8, v3")
    a.nop(4)
    for j in range(12):
        a(f"v_or_b32 v{72+j}, 1, v{72+j}")
    a("s_and_saveexec_b64 s[10:11], vcc")
    for dl in range(3):
        a(f"buffer_store_dwordx4 {vr(72+4*dl,4)}, v{116+dl}, {sr(SWS,4)}, s7 offen sc1")
    a("s_mov_b64 exec, s[10:11]")
    a.stamp(5)
    a("v_mul_u32_u24 v20, 683, v0")
    a("v_lshrrev_b32 v20, 16, v20")
    a("v_mul_u32_u24 v21, 96, v20")
    a("v_sub_u32 v21, v0, v21")
    a("v_mul_u32_u24 v22, 43, v21")
    a("v_lshrrev_b32 v22, 9, v22")
    a("v_mul_u32_u24 v23, 12, v22")
    a("v_sub_u32 v23, v21, v23")
    a("s_mul_i32 s8, s4, 12")
    a("v_add_u32 v23, s8, v23")
    a("v_mul_u32_u24 v24, 576, v20")
    a("v_add_lshl_u32 v24, v24, v21, 2")
    a("s_mul_i32 s7, s4, 18432")
    a(f"s_add_u32 s7, s7, {WS_PART}")
    a("v_lshlrev_b32 v25, 2, v22")
    a(f"buffer_load_dword v26, v25, {sr(SDB,4)}, 0 offen offset:128 sc1")
    a("v_and_b32 v34, 3, v2")
    a("s_lshl_b32 s8, s4, 2")
    a("v_add_lshl_u32 v34, v34, s8, 6")
    a(f"v_add_u32 v34, {WS_FC}, v34")
    a("s_mov_b32 s8, 0")
    a.lab("F_CPOLL")
    a(f"buffer_load_dword v35, v34, {sr(SWS,4)}, 0 offen sc1")
    a("s_waitcnt vmcnt(0)")
    a("v_cmp_eq_u32 vcc, 0, v35")
    a("s_add_u32 s8, s8, 1")
    a("s_cmp_eq_u64 vcc, 0")
    a("s_cbranch_scc1 F_COK")
    a("s_cmp_lt_u32 s8, 0x8000")
    a("s_cbranch_scc1 F_CPOLL")
    a.lab("F_COK")
    a("v_and_b32 v27, 0x7ff, v26")
    a("v_sub_u32 v27, 2047, v27")
    a("v_lshlrev_b32 v36, 12, v23")
    a("v_lshl_add_u32 v36, v27, 1, v36")
    a(f"v_add_u32 v36, {WS_YT}, v36")
    a(f"buffer_load_ushort v37, v36, {sr(SWS,4)}, 0 offen sc1")
    a("s_movk_i32 s8, 1152")
    a("v_mul_lo_u32 v38, v27, s8")
    a("v_lshl_add_u32 v38, v23, 1, v38")
    a(f"buffer_load_ushort v39, v38, {sr(SX,4)}, 0 offen")
    a("v_lshlrev_b32 v40, 1, v23")
    a(f"buffer_load_ushort v41, v40, {sr(SDK,4)}, 0 offen")
    a("v_lshlrev_b32 v40, 2, v27")
    a("v_add_u32 v40, 0x2000, v40")
    a(f"buffer_load_dword v42, v40, {sr(SWS,4)}, 0 offen sc1")
    a("s_mov_b32 s8, 0")
    a.lab("F_MPOLL")
    for k in range(6):
        a(f"buffer_load_dword v{28+k}, v24, {sr(SWS,4)}, s7 offen offset:{384*k} sc1")
    a("s_waitcnt vmcnt(0)")
    a("v_min3_u32 v35, v28, v29, v30")
    a("v_min3_u32 v35, v35, v31, v32")
    a("v_min_u32 v35, v35, v33")
    a("v_cmp_eq_u32 vcc, 0, v35")
    a("s_add_u32 s8, s8, 1")
    a("s_cmp_eq_u64 vcc, 0")
    a("s_cbranch_scc1 F_MOK")
    if SLP2:
        a(f"s_sleep {SLP2}")
    a("s_cmp_lt_u32 s8, 0x8000")
    a("s_cbranch_scc1 F_MPOLL")
    a.lab("F_MOK")
    a("v_add_f32 v28, v28, v29")
    a("v_add_f32 v30, v30, v31")
    a("v_add_f32 v32, v32, v33")
    a("v_add_f32 v28, v28, v30")
    a("v_add_f32 v28, v28, v32")
    a("v_lshlrev_b32 v43, 2, v0")
    a(f"v_add_u32 v43, {TR}, v43")
    a("ds_write_b32 v43, v28")
    a("s_waitcnt lgkmcnt(0)")
    a("s_barrier")
    a("s_cmp_ge_u32 s3, 2")
    a("s_cbranch_scc1 F_END")
    for k in range(8):
        a(f"ds_read_b32 v{28+k}, v43 offset:{384*k}")
    a("v_and_b32 v44, 0xffff0000, v26")
    a("v_xor_b32 v45, 0x80000000, v44")
    a("v_xor_b32 v46, 0xffff0000, v44")
    a("v_cmp_gt_i32 vcc, 0, v44")
    a.nop(2)
    a("v_cndmask_b32 v44, v46, v45, vcc")
    sigmoid_f32(a, 44, 44, 45)
    a("v_cvt_pk_bf16_f32 v44, v44, v44")
    a("v_and_b32 v44, 0xffff0000, v44")
    a("s_mov_b32 s8, 0")
    a.lab("F_GPOLL")
    a("s_waitcnt vmcnt(0) lgkmcnt(0)")
    a("v_cmp_eq_u32 vcc, 0, v42")
    a("s_add_u32 s8, s8, 1")
    a("s_cmp_eq_u64 vcc, 0")
    a("s_cbranch_scc1 F_GOK")
    a("s_cmp_ge_u32 s8, 0x8000")
    a("s_cbranch_scc1 F_GOK")
    a(f"buffer_load_dword v42, v40, {sr(SWS,4)}, 0 offen sc1")
    a("s_branch F_GPOLL")
    a.lab("F_GOK")
    for k in range(1, 8):
        a(f"v_add_f32 v28, v28, v{28+k}")
    def rb(r):
        a(f"v_cvt_pk_bf16_f32 v{r}, v{r}, v{r}")
        a(f"v_and_b32 v{r}, 0xffff0000, v{r}")
    rb(28)
    a("v_mul_f32 v28, v28, v44")
    rb(28)
    a("v_lshlrev_b32 v39, 16, v39")
    a("v_lshlrev_b32 v41, 16, v41")
    a("v_lshlrev_b32 v37, 16, v37")
    a("v_and_b32 v42, 0xffff0000, v42")
    a("v_add_f32 v28, v28, v39")
    rb(28)
    a("v_mul_f32 v41, v41, v39")
    rb(41)
    a("v_add_f32 v37, v37, v41")
    rb(37)
    a("v_mul_f32 v37, v37, v42")
    rb(37)
    a("v_sub_f32 v42, 1.0, v42")
    rb(42)
    a("v_mul_f32 v28, v28, v42")
    rb(28)
    a("v_add_f32 v28, v28, v37")
    a("v_cvt_pk_bf16_f32 v28, v28, v28")
    a("v_cmp_gt_u32 vcc, 96, v0")
    a("s_and_saveexec_b64 s[10:11], vcc")
    a(f"buffer_store_short v28, v38, {sr(SO,4)}, 0 offen")
    a("s_mov_b64 exec, s[10:11]")
    a.lab("F_END")
    a.stamp(4)
    a.stamp_out(8, SWS)
    a("s_endpgm")


def emit_off(a, T, rho, dst, t1, t2):
    if T == 0:
        a(f"v_lshrrev_b32 v{t1}, 3, v{rho}")
        a(f"v_and_b32 v{dst}, 7, v{rho}")
        a(f"v_lshl_add_u32 v{dst}, v{t1}, 7, v{dst}")
    elif T == 1:
        a(f"v_lshrrev_b32 v{t1}, 2, v{rho}")
        a(f"v_and_b32 v{t2}, 3, v{rho}")
        a(f"v_lshlrev_b32 v{t2}, 1, v{t2}")
        a(f"v_lshl_add_u32 v{t1}, v{t1}, 7, v{t2}")
        a(f"v_add_u32 v{t1}, 256, v{t1}")
        a(f"v_lshrrev_b32 v{t2}, 1, v{rho}")
        a(f"v_and_b32 v{dst}, 1, v{rho}")
        a(f"v_lshlrev_b32 v{dst}, 2, v{dst}")
        a(f"v_lshl_add_u32 v{dst}, v{t2}, 7, v{dst}")
        a(f"v_cmp_gt_u32 vcc, 8, v{rho}")
        a.nop(2)
        a(f"v_cndmask_b32 v{dst}, v{dst}, v{t1}, vcc")
    else:
        a(f"v_lshlrev_b32 v{dst}, 7, v{rho}")
        a(f"v_add_u32 v{dst}, 1024, v{dst}")


def scale_from_max(a, m, dst, inv, target, t):
    a(f"v_lshrrev_b32 v{t}, 23, v{m}")
    a(f"v_sub_u32 v{t}, {253+target}, v{t}")
    a(f"v_max_i32 v{t}, 1, v{t}")
    a(f"v_min_i32 v{t}, 253, v{t}")
    a(f"v_lshlrev_b32 v{dst}, 23, v{t}")
    a(f"v_sub_u32 v{t}, 254, v{t}")
    a(f"v_lshlrev_b32 v{inv}, 23, v{t}")


def role_C(a):
    a.lab("ROLE_C")
    SX, SP, SWS = 52, 56, 80
    TS = 544
    a("s_sub_u32 s101, s2, 64")
    a("s_and_b32 s4, s101, 7")
    a("s_mul_i32 s4, s4, 24")
    a("s_lshr_b32 s5, s101, 3")
    a("s_add_u32 s4, s4, s5")
    a("s_lshr_b32 s5, s3, 2")
    a("s_and_b32 s6, s3, 3")
    a("s_mul_i32 s7, s4, 3")
    a("s_add_u32 s7, s7, s5")
    a(f"s_mul_i32 s8, s5, {CHSZ}")
    a("v_lshlrev_b32 v6, 2, v2")
    a("v_and_b32 v5, 255, v0")
    for j in range(4):
        a(f"v_mov_b32 v{148+j}, 0")
    a("v_min_u32 v44, 63, v5")
    a("v_lshlrev_b32 v44, 4, v44")
    a("v_add_u32 v44, s8, v44")
    a(f"ds_write_b128 v44, v[148:151] offset:{KH}")
    a("v_min_u32 v44, 3, v5")
    a("v_lshlrev_b32 v44, 4, v44")
    a("v_add_u32 v44, s8, v44")
    a(f"ds_write_b128 v44, v[148:151] offset:{URAW+4096}")
    PR, PR2 = 16, 8
    U = 120
    a("s_waitcnt lgkmcnt(0)")
    if TOUCH == 2:
        a("s_cmp_lg_u32 s3, 5")
        a("s_cbranch_scc1 NOTOUCH_C")
        srd(a, 84, P_WS, WS_SIZE)
        srd(a, 88, P_OUT, 2359296)
        srd(a, 92, P_DBG, 256)
        srd(a, 96, P_DSK, 1152)
        a("v_lshlrev_b32 v160, 16, v2")
        a("buffer_load_dword v161, v160, s[84:87], 0 offen sc1")
        a("v_min_u32 v160, 0x23f000, v160")
        a("buffer_load_dword v162, v160, s[88:91], 0 offen")
        a("v_mov_b32 v160, 0")
        a("buffer_load_dword v163, v160, s[92:95], 0 offen sc1")
        a("buffer_load_dword v163, v160, s[96:99], 0 offen")
        a.lab("NOTOUCH_C")
    a("s_cmp_ge_u32 s3, 8")
    a("s_cbranch_scc1 C_LOADER")
    if os.environ.get("CONLYPF"):
        a("s_endpgm")
    for k, p in enumerate([P_ARE, P_AIM, P_BRE, P_BIM, P_CRE, P_CIM]):
        srd(a, SP + 4 * k, p, 147456)
    a("s_lshl_b32 s11, s7, 8")
    for k in range(6):
        a(f"buffer_load_dword v{PR+k}, v6, {sr(SP+4*k,4)}, s11 offen")
    for k in range(6):
        a(f"buffer_load_dword v{PR2+k}, v6, {sr(SP+4*k,4)}, s11 offen offset:512")
    a("s_lshl_b32 s11, s7, 1")
    a("s_andn2_b32 s12, s11, 3")
    a(f"s_load_dword s72, {sr(P_LDT,2)}, s12")
    a("s_add_u32 s12, s12, 4")
    a("s_min_u32 s12, s12, 1148")
    a(f"s_load_dword s73, {sr(P_LDT,2)}, s12")
    a("s_and_b32 s11, s11, 2")
    a("s_lshl_b32 s11, s11, 3")
    a("s_branch C_NOU")
    def prefetch(W='s3'):
        if PFC:
            a(f"s_lshr_b32 s68, {W}, 2")
            a(f"s_and_b32 s69, {W}, 3")
            a("s_cmp_eq_u32 s68, 1")
            a(f"s_cselect_b32 s56, s{P_WU}, s{P_WG}")
            a(f"s_cselect_b32 s57, s{P_WU+1}, s{P_WG+1}")
            a("s_cmp_eq_u32 s68, 2")
            a(f"s_cselect_b32 s56, s{P_WD}, s56")
            a(f"s_cselect_b32 s57, s{P_WD+1}, s57")
            a("s_mov_b32 s58, 5308416")
            a("s_mov_b32 s59, 0x20000")
            a("s_mul_i32 s68, s101, 27648")
            a("s_mul_i32 s69, s69, 6912")
            a("s_add_u32 s68, s68, s69")
            a("v_min_u32 v152, 53, v2")
            a("v_lshlrev_b32 v152, 7, v152")
            a("buffer_load_dword v164, v152, s[56:59], s68 offen")
            if PFC == 2:
                a("buffer_load_dword v165, v152, s[56:59], s68 offen offset:64")
            return
        SG, SD = 56, 64
        a("s_lshr_b32 s14, s101, 3")
        a("s_mul_i32 s68, s14, 43")
        a("s_lshr_b32 s68, s68, 8")
        a("s_mul_i32 s69, s68, 6")
        a("s_sub_u32 s14, s14, s69")
        a("s_and_b32 s69, s101, 7")
        a("s_mul_i32 s69, s69, 6")
        a("s_add_u32 s14, s14, s69")
        a(f"s_bitcmp1_b32 {W}, 0")
        a(f"s_cselect_b32 s{SG}, s{P_WU}, s{P_WG}")
        a(f"s_cselect_b32 s{SG+1}, s{P_WU+1}, s{P_WG+1}")
        a(f"s_mov_b32 s{SG+2}, 5308416")
        a(f"s_mov_b32 s{SG+3}, 0x20000")
        srd(a, SD, P_WD, 5308416)
        a("s_mul_i32 s69, s68, 144")
        a(f"s_lshr_b32 s70, {W}, 1")
        a("s_mul_i32 s70, s70, 24")
        a("s_add_u32 s69, s69, s70")
        a("s_mul_i32 s69, s69, 9216")
        a("s_mul_i32 s70, s14, 192")
        a("s_add_u32 s69, s69, s70")
        a("v_lshrrev_b32 v152, 1, v2")
        a("v_min_u32 v152, 23, v152")
        a("s_movk_i32 s70, 9216")
        a("v_mul_lo_u32 v152, v152, s70")
        a("v_and_b32 v153, 1, v2")
        a("v_lshl_add_u32 v152, v153, 7, v152")
        a(f"buffer_load_dword v164, v152, {sr(SG,4)}, s69 offen")
        a("s_mul_i32 s69, s14, 96")
        a("s_mul_i32 s70, s68, 24")
        a("s_add_u32 s69, s69, s70")
        a(f"s_lshl_b32 s70, {W}, 1")
        a("s_add_u32 s69, s69, s70")
        a("s_mul_i32 s69, s69, 1152")
        a("v_min_u32 v153, 17, v2")
        a("v_lshlrev_b32 v153, 7, v153")
        a(f"buffer_load_dword v165, v153, {sr(SD,4)}, s69 offen")

    a.lab("C_LOADER")
    if PREFETCH == 4:
        a("s_mul_i32 s77, s6, 3")
        for i in range(3):
            prefetch("s77")
            a("s_add_u32 s77, s77, 1")
    if os.environ.get("CONLYPF"):
        a("s_endpgm")
    srd(a, SX, P_U, 2359296)
    a("s_mul_i32 s9, s4, 6")
    a("s_and_b32 s10, s9, 2")
    a("s_andn2_b32 s9, s9, 3")
    a("s_lshl_b32 s10, s10, 3")
    a("s_lshr_b32 s14, s101, 3")
    a("s_mul_i32 s14, s14, 11")
    a("v_add_u32 v7, s14, v0")
    a("v_and_b32 v7, 255, v7")
    a("s_movk_i32 s14, 9216")
    a("v_mul_lo_u32 v16, v7, s14")
    a("s_add_u32 s14, s9, 4608")
    for r in range(8):
        a(f"buffer_load_dwordx2 {vr(U+2*r,2)}, v16, {sr(SX,4)}, {'s9' if r < 4 else 's14'} offen offset:{1152*(r&3)}")
    if PREFETCH == 5:
        a("s_mul_i32 s77, s6, 3")
        for i in range(3):
            prefetch("s77")
            a("s_add_u32 s77, s77, 1")
    a.lab("C_NOU")
    srd(a, SWS, P_WS, WS_SIZE)
    KA = 24
    a("v_lshlrev_b32 v46, 2, v4")
    a("v_lshlrev_b32 v48, 3, v3")
    for j in range(4):
        a(f"v_add_u32 v47, {j}, v46")
        d = KA + j
        emit_off(a, 0, 47, 49, 44, 45)
        emit_off(a, 1, 47, 50, 44, 45)
        emit_off(a, 2, 47, d, 44, 45)
        a("s_cmp_eq_u32 s6, 1")
        a("s_cselect_b64 vcc, -1, 0")
        a(f"v_cndmask_b32 v{d}, v{d}, v50, vcc")
        a("s_cmp_eq_u32 s6, 0")
        a("s_cselect_b64 vcc, -1, 0")
        a(f"v_cndmask_b32 v{d}, v{d}, v49, vcc")
        a(f"v_add_u32 v{d}, v{d}, v48")
        a(f"v_cvt_f32_u32 v44, v{d}")
        a(f"v_lshrrev_b32 v44, 16, v44")
        a(f"v_subrev_u32 v44, 0x4280, v44")
        a(f"v_cmp_gt_u32 vcc, 128, v{d}")
        a.nop(2)
        a(f"v_cndmask_b32 v44, v44, v{d}, vcc")
        a(f"v_cmp_lt_u32 vcc, 0x800, v{d}")
        a("v_mov_b32 v45, 650")
        a.nop(1)
        a(f"v_cndmask_b32 v44, v44, v45, vcc")
        a(f"v_lshlrev_b32 v44, 2, v44")
        a(f"v_add_u32 v{d}, s8, v44")
    EA = 28
    a("v_lshlrev_b32 v46, 3, v5")
    a("s_movk_i32 s14, 0x7fff")
    for e in range(8):
        d = EA + e
        a(f"v_add_u32 v47, {e}, v46")
        a(f"v_cvt_f32_u32 v44, v47")
        a(f"v_bfe_u32 v45, v44, 16, 1")
        a(f"v_add3_u32 v44, v44, v45, s14")
        a(f"v_lshrrev_b32 v44, 16, v44")
        a(f"v_subrev_u32 v44, 0x4280, v44")
        a(f"v_cmp_gt_u32 vcc, 128, v47")
        a.nop(2)
        a(f"v_cndmask_b32 v44, v44, v47, vcc")
        a(f"v_lshlrev_b32 v44, 2, v44")
        a(f"v_add_u32 v{d}, s8, v44")
    a("s_and_b32 s12, s6, 1")
    a("s_lshl_b32 s14, s12, 8")
    a("s_add_u32 s14, s14, s8")
    a("v_add_u32 v39, s14, v6")
    a(f"v_mul_u32_u24 v44, {TS}, v3")
    a("v_lshl_add_u32 v44, v4, 4, v44")
    a("v_add_u32 v44, s8, v44")
    a(f"s_mul_i32 s14, s6, {16*TS}")
    a("v_add_u32 v22, s14, v44")
    a(f"v_add_u32 v23, {41*TS}, v44")
    a("s_lshl_b32 s12, s12, 4")
    a("s_sub_u32 s12, 16, s12")
    a("s_mov_b32 s15, 0x07060302")
    a("s_cmp_ge_u32 s3, 8")
    a("s_cbranch_scc1 C_KG_END")
    a("s_waitcnt vmcnt(0) lgkmcnt(0)")
    a.stamp(1)
    a("s_mov_b32 s13, s72")
    a("s_mov_b32 s71, s8")
    a.lab("C_KG_LOOP")
    a("s_lshr_b32 s13, s13, s11")
    a("s_lshl_b32 s13, s13, 16")
    a("v_mov_b32 v44, s13")
    a(f"v_mul_f32 v45, {L2E:#x}, v44")
    a(f"v_mov_b32 v46, {L2E:#x}")
    a("v_fma_f32 v46, v44, v46, -v45")
    a(f"v_mov_b32 v47, {L2E_LO:#x}")
    a("v_fma_f32 v46, v44, v47, v46")
    a("v_exp_f32 v45, v45")
    a(f"v_mul_f32 v46, {LN2:#x}, v46")
    a("v_fma_f32 v45, v45, v46, v45")
    a("v_cvt_pk_bf16_f32 v45, v45, v45")
    DT, DTL, DTR = 36, 37, 38
    a(f"v_and_b32 v{DT}, 0xffff0000, v45")
    a(f"v_mul_f32 v{DTL}, {L2E:#x}, v{DT}")
    a(f"v_mul_f32 v{DTR}, {INV2PI:#x}, v{DT}")
    a("s_mov_b32 s14, 0x7fff7fff")
    for k in range(2, 6):
        a(f"v_and_b32 v{44+k}, s14, v{PR+k}")
    a("v_pk_max_u16 v46, v46, v47")
    a("v_pk_max_u16 v48, v48, v49")
    a("v_lshlrev_b32 v44, 16, v46")
    a("v_and_b32 v45, 0xffff0000, v46")
    a("v_lshlrev_b32 v46, 16, v48")
    a("v_and_b32 v47, 0xffff0000, v48")
    a("v_mul_f32 v44, v44, v46")
    a("v_mul_f32 v45, v45, v47")
    a("v_max_f32 v44, v44, v45")
    a(f"v_mul_f32 v44, v44, v{DT}")
    a("v_add_f32 v44, v44, v44")
    wave_max_u32(a, 44, 14)
    for k in range(6):
        a(f"v_lshlrev_b32 v{PR+k}, s12, v{PR+k}")
    a("v_mov_b32 v44, s14")
    for k in range(6):
        a(f"v_and_b32 v{PR+k}, 0xffff0000, v{PR+k}")
    SA, ISA = 146, 147
    scale_from_max(a, 44, SA, ISA, 6, 45)
    a("v_mov_b32 v44, s71")
    a(f"ds_write_b32 v44, v{ISA} offset:{MX+16}")
    ZR, ZI, WR, WI = 40, 41, 42, 43
    a(f"v_mul_f32 v{ZR}, v{PR}, v{DTL}")
    a(f"v_mul_f32 v{ZI}, v{PR+1}, v{DTR}")
    a(f"v_mul_f32 v{PR+2}, v{PR+2}, v{DT}")
    a(f"v_mul_f32 v{PR+3}, v{PR+3}, v{DT}")
    a(f"v_mul_f32 v{WR}, v{PR+5}, v{PR+3}")
    a(f"v_mul_f32 v{WI}, v{PR+5}, v{PR+2}")
    a(f"v_fma_f32 v{WR}, v{PR+4}, v{PR+2}, -v{WR}")
    a(f"v_fma_f32 v{WI}, v{PR+4}, v{PR+3}, v{WI}")
    a(f"v_mul_f32 v{WR}, v{WR}, v{SA}")
    a(f"v_mul_f32 v{WI}, v{WI}, v{SA}")
    T0_ = 16
    OT = [18, 19, 20, 21]

    def direct(dst, c, conj=False):
        a(f"v_mul_f32 v{dst}, {float(c)}, v{ZR}" if c in (1, 2, 4) else f"v_mul_f32 v{dst}, {fbits(c):#x}, v{ZR}")
        a(f"v_mul_f32 v{dst+1}, {float(c)}, v{ZI}" if c in (1, 2, 4) else f"v_mul_f32 v{dst+1}, {fbits(c):#x}, v{ZI}")
        a(f"v_exp_f32 v{T0_}, v{dst}")
        a(f"v_fract_f32 v{dst+1}, v{dst+1}")
        a(f"v_cos_f32 v{dst}, v{dst+1}")
        a(f"v_sin_f32 v{dst+1}, v{dst+1}")
        a(f"v_mul_f32 v{dst}, v{T0_}, v{dst}")
        a(f"v_mul_f32 v{dst+1}, {'-' if conj else ''}v{T0_}, v{dst+1}")

    def cmul2(d, x, y):
        a(f"v_mul_f32 v{d}, v{x+1}, v{y+1}")
        a(f"v_mul_f32 v{d+1}, v{x+1}, v{y}")
        a(f"v_fma_f32 v{d}, v{x}, v{y}, -v{d}")
        a(f"v_fma_f32 v{d+1}, v{x}, v{y+1}, v{d+1}")

    cnt = [0]

    def emit(row, x):
        o = OT[cnt[0] % 4]
        cnt[0] += 1
        a(f"v_cvt_pk_f16_f32 v{o}, v{x}, v{x+1}")
        a(f"ds_write_b32 v39, v{o} offset:{UC+row*TS}")

    a("s_cmp_ge_u32 s6, 2")
    a("s_cbranch_scc1 C_PARTY")
    R1, R4, P4, Q1 = 44, 46, 48, 50
    direct(R1, 128); direct(R4, 512); direct(P4, 4); direct(Q1, 8, conj=True)
    CA, CB, CC, QA, QB = 52, 54, 56, 58, 60
    cmul2(CA, WR, R4)
    a("v_mov_b32 v17, 0x3c00")
    a(f"ds_write_b32 v39, v17 offset:{UC+41*TS}")
    emit(42, Q1)
    cmul2(QA, Q1, Q1)
    cur, nxt = CA, CB
    qc, qn = QA, QB
    b = 2
    for aa in range(4, 17):
        if aa < 16:
            cmul2(nxt, cur, R1)
        if b < 15:
            cmul2(qn, qc, Q1)
        if aa < 8:
            cmul2(CC, cur, P4)
            emit(24 + 2 * (aa - 4), cur)
            emit(24 + 2 * (aa - 4) + 1, CC)
        else:
            emit(32 + aa - 8, cur)
        emit(41 + b, qc)
        b += 1
        cur, nxt = nxt, cur
        qc, qn = qn, qc
    emit(41 + 15, qc)
    a("s_branch C_KG_DONE")
    a.lab("C_PARTY")
    PB = 46
    direct(R1, 128); direct(PB, 1)
    pc = lambda c: PB + 2 * (c - 1)
    cmul2(pc(2), pc(1), pc(1)); cmul2(pc(3), pc(2), pc(1)); cmul2(pc(4), pc(2), pc(2))
    cmul2(pc(5), pc(4), pc(1)); cmul2(pc(6), pc(3), pc(3)); cmul2(pc(7), pc(6), pc(1))
    YA, YB = 60, 62
    YC = [64, 66]
    cur = WR
    regs = [YA, YB]
    yi = 0
    for aa in range(4):
        if aa < 3:
            nx = regs[aa & 1]
            cmul2(nx, cur, R1)
        cs = range(8) if aa < 2 else (0, 2, 4, 6)
        for c in cs:
            row = 8 * aa + c if aa < 2 else 16 + 4 * (aa - 2) + c // 2
            if c == 0:
                emit(row, cur)
            else:
                y = YC[yi & 1]; yi += 1
                cmul2(y, cur, pc(c))
                emit(row, y)
        if aa < 3:
            cur = nx
    a.lab("C_KG_DONE")
    a("s_cmp_lg_u32 s71, 0")
    a("s_cbranch_scc1 C_KG_END")
    a(f"s_mov_b32 s71, {2*CHSZ}")
    a("s_mov_b32 s13, s73")
    for k in range(6):
        a(f"v_mov_b32 v{PR+k}, v{PR2+k}")
    a(f"v_add_u32 v39, {2*CHSZ}, v39")
    a("s_branch C_KG_LOOP")
    a.lab("C_KG_END")
    a.stamp(3)
    if PREFETCH == 3:
        a("s_lshr_b32 s77, s3, 2")
        a("s_cmp_lg_u32 s77, 1")
        a("s_cbranch_scc1 C_NOPF3")
        a("s_mul_i32 s77, s6, 3")
        for i in range(3):
            prefetch("s77")
            a("s_add_u32 s77, s77, 1")
        a.lab("C_NOPF3")
    ACC = 76
    for j in range(4):
        a(f"v_mov_b32 v{ACC+j}, 0")
    TM = 80
    a("s_cmp_lt_u32 s3, 8")
    a("s_cbranch_scc1 C_NOU2")
    a(f"s_waitcnt vmcnt({(3*max(PFC,1) if PFC else 6) if PREFETCH == 5 else 0})")
    for r in range(8):
        a(f"v_alignbit_b32 v{TM+2*r}, v{U+2*r+1}, v{U+2*r}, s10")
        a(f"v_lshrrev_b32 v{TM+2*r+1}, s10, v{U+2*r+1}")
    a("s_mov_b32 s14, 0x05040100")
    a("v_lshlrev_b32 v16, 4, v7")
    a("v_sub_u32 v16, 4080, v16")
    PK = 96
    for ch in range(3):
        off = 0 if ch < 2 else 1
        sel = "s15" if ch == 1 else "s14"
        for p in range(4):
            a(f"v_perm_b32 v{PK+4*ch+p}, v{TM+2*(6-2*p)+off}, v{TM+2*(7-2*p)+off}, {sel}")
    for ch in range(3):
        if ch * CHSZ + URAW < 65536:
            a(f"ds_write_b128 v16, {vr(PK+4*ch,4)} offset:{ch*CHSZ+URAW}")
        else:
            a(f"v_add_u32 v17, {ch*CHSZ}, v16")
            a(f"ds_write_b128 v17, {vr(PK+4*ch,4)} offset:{URAW}")
    a("s_mov_b32 s14, 0x7fff7fff")
    for ch in range(3):
        for p in range(4):
            a(f"v_and_b32 v{TM+4*ch+p}, s14, v{PK+4*ch+p}")
        a(f"v_pk_max_u16 v{TM+4*ch}, v{TM+4*ch}, v{TM+4*ch+1}")
        a(f"v_pk_max_u16 v{TM+4*ch+2}, v{TM+4*ch+2}, v{TM+4*ch+3}")
        a(f"v_pk_max_u16 v{TM+4*ch}, v{TM+4*ch}, v{TM+4*ch+2}")
        a(f"v_lshlrev_b32 v{TM+4*ch+1}, 16, v{TM+4*ch}")
        a(f"v_max_u32 v{TM+4*ch}, v{TM+4*ch}, v{TM+4*ch+1}")
        wave_max_u32(a, TM + 4 * ch, 68 + ch)
    a("s_lshl_b32 s14, s6, 2")
    a("v_mov_b32 v16, s14")
    for ch in range(3):
        a(f"v_mov_b32 v17, s{68+ch}")
        a(f"v_add_u32 v{TM+ch}, {ch*CHSZ+MX}, v16")
        a(f"ds_write_b32 v{TM+ch}, v17")
    a.lab("C_NOU2")
    a("s_waitcnt lgkmcnt(0)")
    a("s_barrier")
    FR = 44
    a("s_cmp_eq_u32 s6, 3")
    a("s_cbranch_scc1 C_NOKT")
    for half in range(2):
        for q in range(4):
            kq = 4 * half + q
            a(f"ds_read_b128 {vr(FR+8*q,4)}, v22 offset:{UC+64*kq}")
            a(f"ds_read_b128 {vr(FR+8*q+4,4)}, v23 offset:{UC+64*kq}")
        for q in range(4):
            a(f"s_waitcnt lgkmcnt({6-2*q})")
            a(f"v_mfma_f32_16x16x32_f16 {vr(ACC,4)}, {vr(FR+8*q,4)}, {vr(FR+8*q+4,4)}, {vr(ACC,4)}")
    a.nop(8)
    for j in range(4):
        a(f"ds_write_b32 v{KA+j}, v{ACC+j} offset:{KT}")
    a.lab("C_NOKT")
    D0 = 84
    a("v_lshlrev_b32 v44, 4, v5")
    a("v_add_u32 v44, s8, v44")
    a("v_mov_b32 v45, s8")
    a(f"ds_read_b128 {vr(D0,4)}, v44 offset:{URAW}")
    a(f"ds_read_b128 {vr(D0+4,4)}, v44 offset:{URAW+16}")
    a(f"ds_read_b128 v[48:51], v45 offset:{MX}")
    a(f"ds_read_b32 v{ISA}, v45 offset:{MX+16}")
    a("s_waitcnt lgkmcnt(0)")
    a("s_barrier")
    a.stamp(4)
    if PREFETCH == 2:
        prefetch()
    KV = 72
    for e in range(8):
        a(f"ds_read_b32 v{KV+e}, v{EA+e} offset:{KT}")
    a("v_max3_u32 v48, v48, v49, v50")
    a("v_max_u32 v48, v48, v51")
    a("v_and_b32 v48, 0xffff0000, v48")
    SU, ISU = 144, 145
    scale_from_max(a, 48, SU, ISU, 14, 49)
    for i in range(8):
        a(f"v_lshlrev_b32 v48, 16, v{D0+i}")
        a(f"v_and_b32 v49, 0xffff0000, v{D0+i}")
        a(f"v_mul_f32 v48, v48, v{SU}")
        a(f"v_mul_f32 v49, v49, v{SU}")
        a(f"v_cvt_pk_f16_f32 v{D0+i}, v48, v49")
    DP, E0, EP = 100, 108, 116
    for i in range(1, 7):
        a(f"v_mov_b32 v{DP+i-1}, v{D0+i}")
    for i in range(7):
        a(f"v_alignbit_b32 v{E0+i}, v{D0+i+1}, v{D0+i}, 16")
    for i in range(1, 7):
        a(f"v_alignbit_b32 v{EP+i-1}, v{D0+i+1}, v{D0+i}, 16")
    srcs = {0: D0, 2: DP, 4: D0 + 2, 6: DP + 2, 1: E0, 3: EP, 5: E0 + 2, 7: EP + 2}
    for sg in range(8):
        a(f"ds_write_b128 v44, {vr(srcs[sg],4)} offset:{UC+sg*CPY}")
    a("v_lshrrev_b32 v45, 2, v5")
    a("v_lshrrev_b32 v46, 1, v45")
    a("v_and_b32 v46, 2, v46")
    a("v_and_b32 v47, 3, v5")
    a("v_xor_b32 v46, v46, v47")
    a("v_lshlrev_b32 v46, 4, v46")
    a("v_lshl_add_u32 v45, v45, 6, v46")
    a("v_add_u32 v45, s8, v45")
    a("v_min_u32 v48, 31, v5")
    a("v_lshrrev_b32 v49, 2, v48")
    a(f"v_mul_u32_u24 v49, {CPY}, v49")
    a("v_and_b32 v48, 3, v48")
    a("v_lshl_add_u32 v48, v48, 4, v49")
    a("v_add_u32 v48, s8, v48")
    a(f"ds_write_b128 v48, v[148:151] offset:{UC+4096}")
    a("s_waitcnt lgkmcnt(9)")
    HI = 92
    for p in range(4):
        a(f"v_cvt_pk_f16_f32 v{HI+p}, v{KV+2*p}, v{KV+2*p+1}")
    a(f"ds_write_b128 v45, {vr(HI,4)} offset:{KH+1024}")
    a("v_and_b32 v46, 7, v3")
    a("v_sub_u32 v46, 7, v46")
    a(f"v_mul_u32_u24 v46, {CPY}, v46")
    a("v_lshrrev_b32 v47, 3, v3")
    a("v_sub_u32 v47, v4, v47")
    a("v_lshl_add_u32 v46, v47, 4, v46")
    a("v_add_u32 v46, 976, v46")
    a("v_add_u32 v6, s8, v46")
    AC = 8
    for j in range(32):
        a(f"v_mov_b32 v{AC+j}, 0")
    AA, AB = 104, 108
    for it in range(4):
        a("s_lshl_b32 s14, s6, 2")
        a(f"s_add_u32 s14, s14, {it}")
        a("s_lshl_b32 s15, s14, 6")
        a(f"v_subrev_u32 v{AA+it}, s15, v6")
        a("s_sub_u32 s15, 16, s14")
        a(f"v_add_u32 v{AB+it}, s15, v3")
        a(f"v_lshrrev_b32 v46, 1, v{AB+it}")
        a("v_and_b32 v46, 2, v46")
        a("v_xor_b32 v46, v46, v4")
        a("v_lshlrev_b32 v46, 4, v46")
        a(f"v_lshl_add_u32 v{AB+it}, v{AB+it}, 6, v46")
        a(f"v_add_u32 v{AB+it}, s8, v{AB+it}")
    a("s_waitcnt lgkmcnt(0)")
    a("s_barrier")
    a.stamp(5)
    if STAMP and os.environ.get("CLK"):
        a("s_memtime s[86:87]")
    FAs, FBs = [40, 112], [72, 88]
    assert FAs[1] + 32 <= 144

    def reads(it):
        FA, FB = FAs[it & 1], FBs[it & 1]
        for aa in range(4):
            if aa == 0:
                for R in range(2):
                    a(f"ds_read_b128 {vr(FA+R*4,4)}, v{AA+it} offset:{UC+3072+32*(1-R)}")
                for cc in range(4):
                    a(f"ds_read_b128 {vr(FB+4*cc,4)}, v{AB+it} offset:{KH+1024*cc}")
            else:
                for R in range(2):
                    a(f"ds_read_b128 {vr(FA+(2*aa+R)*4,4)}, v{AA+it} offset:{UC+1024*(3-aa)+32*(1-R)}")

    reads(0)
    for it in range(4):
        FA, FB = FAs[it & 1], FBs[it & 1]
        if it < 3:
            reads(it + 1)
        if it == 0 and PREFETCH == 1:
            prefetch()
        extra = 12 if it < 3 else 0
        need_of = {("A", 0): 1, ("B", 0): 2, ("B", 1): 3, ("B", 2): 4, ("B", 3): 5, ("A", 1): 7, ("A", 2): 9, ("A", 3): 11}
        waited = -1
        for aa in range(4):
            for cc in range(4 - aa):
                need = max(need_of[("A", aa)], need_of[("B", cc)])
                if need > waited:
                    a(f"s_waitcnt lgkmcnt({min(15, 11-need+extra)})")
                    waited = need
                C = aa + cc
                for R in range(2):
                    acc = vr(AC + (2 * C + R) * 4, 4)
                    a(f"v_mfma_f32_16x16x32_f16 {acc}, {vr(FA+(2*aa+R)*4,4)}, {vr(FB+4*cc,4)}, {acc}")
    a.stamp(6)
    if os.environ.get("DELAYC"):
        a("s_sleep 64")
    if TOUCH == 1:
        srd(a, 56, P_OUT, 2359296)
        srd(a, 60, P_DSK, 1152)
        a("v_lshlrev_b32 v152, 16, v2")
        a("v_min_u32 v152, 0x23f000, v152")
        a("buffer_load_dword v166, v152, s[56:59], 0 offen")
        a("v_lshlrev_b32 v153, 6, v2")
        a("buffer_load_dword v167, v153, s[60:63], 0 offen")
    a("s_barrier")
    a("s_lshl_b32 s14, s6, 11")
    a("s_add_u32 s14, s14, s8")
    a("v_lshlrev_b32 v104, 4, v2")
    a("v_add_u32 v105, s14, v104")
    a.nop(8)
    for C in range(4):
        for R in range(2):
            a(f"ds_write_b128 v105, {vr(AC+(2*C+R)*4,4)} offset:{UC+C*8192+R*1024}")
    a("s_lshl_b32 s14, s6, 13")
    a("s_add_u32 s14, s14, s8")
    a("v_add_u32 v105, s14, v104")
    a("s_waitcnt lgkmcnt(0)")
    a("s_barrier")
    for s_ in range(4):
        for R in range(2):
            a(f"ds_read_b128 {vr(40+(2*s_+R)*4,4)}, v105 offset:{UC+s_*2048+R*1024}")
    srd(a, 60, P_DBG, 256)
    a("v_mov_b32 v121, 0")
    a("buffer_load_dword v120, v121, s[60:63], 0 offen offset:4 sc1")
    a("s_lshl_b32 s14, s7, 12")
    a("s_lshl_b32 s15, s6, 10")
    a("s_add_u32 s14, s14, s15")
    a(f"s_add_u32 s14, s14, {WS_YT}")
    a("v_lshlrev_b32 v104, 6, v3")
    a("v_lshl_add_u32 v104, v4, 3, v104")
    a("s_waitcnt lgkmcnt(0)")
    for R in range(2):
        for j in range(4):
            r0 = 40 + R * 4 + j
            a(f"v_add_f32 v{r0}, v{r0}, v{r0+8}")
            a(f"v_add_f32 v{r0+16}, v{r0+16}, v{r0+24}")
            a(f"v_add_f32 v{r0}, v{r0}, v{r0+16}")
            a(f"v_mul_f32 v{r0}, v{r0}, v{ISA}")
            a(f"v_mul_f32 v{r0}, v{r0}, v{ISU}")
        a(f"v_cvt_pk_bf16_f32 v{106+2*R}, v{40+4*R}, v{41+4*R}")
        a(f"v_cvt_pk_bf16_f32 v{107+2*R}, v{42+4*R}, v{43+4*R}")
    a(f"buffer_store_dwordx2 v[106:107], v104, {sr(SWS,4)}, s14 offen sc1")
    a(f"buffer_store_dwordx2 v[108:109], v104, {sr(SWS,4)}, s14 offen offset:32 sc1")
    SO, SDB, SDK = 56, 60, 64
    RS = 144
    srd(a, SO, P_OUT, 2359296)
    srd(a, SDB, P_DBG, 256)
    srd(a, SDK, P_DSK, 1152)
    srd(a, SX, P_U, 2359296)
    a("s_mul_i32 s68, s101, 3")
    a("s_add_u32 s68, s68, s5")
    a("s_mul_i32 s69, s68, 3641")
    a("s_lshr_b32 s69, s69, 16")
    a("s_mul_i32 s70, s69, 18")
    a("s_sub_u32 s70, s68, s70")
    a("s_lshl_b32 s14, s69, 6")
    a("s_lshl_b32 s15, s6, 4")
    a("s_add_u32 s14, s14, s15")
    a("v_add_u32 v110, s14, v3")
    a("s_movk_i32 s14, 1152")
    a("v_mul_lo_u32 v111, v110, s14")
    a("s_lshl_b32 s14, s70, 6")
    a("v_lshl_add_u32 v112, v4, 4, s14")
    a("v_add_u32 v111, v111, v112")
    a(f"buffer_load_dwordx4 v[44:47], v111, {sr(SX,4)}, 0 offen")
    a(f"buffer_load_dwordx4 v[48:51], v112, {sr(SDK,4)}, 0 offen")
    a("s_lshl_b32 s14, s70, 5")
    a("s_mul_i32 s14, s14, 21846")
    a("s_lshr_b32 s14, s14, 16")
    a("v_min_u32 v113, 11, v2")
    a("v_add_u32 v113, s14, v113")
    a("v_min_u32 v113, 191, v113")
    a("v_lshlrev_b32 v113, 6, v113")
    a(f"v_add_u32 v113, {WS_FC}, v113")
    a("v_lshlrev_b32 v114, 2, v110")
    a("v_add_u32 v114, 0x2000, v114")
    a("v_and_b32 v115, 7, v2")
    a("v_lshlrev_b32 v115, 2, v115")
    a("v_lshrrev_b32 v116, 3, v5")
    a("v_and_b32 v117, 7, v5")
    a("v_lshlrev_b32 v118, 12, v116")
    a("v_lshl_add_u32 v118, v117, 4, v118")
    a("s_lshl_b32 s14, s70, 17")
    a("s_lshl_b32 s15, s69, 7")
    a("s_add_u32 s14, s14, s15")
    a(f"s_add_u32 s71, s14, {WS_YT}")
    a(f"v_mul_u32_u24 v116, {RS}, v116")
    a("v_lshl_add_u32 v116, v117, 4, v116")
    a("v_add_u32 v116, s8, v116")
    a("v_lshrrev_b32 v117, 2, v3")
    a("v_lshl_add_u32 v117, v4, 3, v117")
    a(f"v_mul_u32_u24 v117, {RS}, v117")
    a("v_and_b32 v119, 3, v3")
    a("v_lshl_add_u32 v117, v119, 3, v117")
    a("s_lshl_b32 s14, s6, 5")
    a("s_add_u32 s14, s14, s8")
    a("v_add_u32 v117, s14, v117")
    a("s_waitcnt vmcnt(2)")
    a("s_barrier")
    a("s_mov_b32 s15, 0")
    a.lab("C_GO")
    a("v_readfirstlane_b32 s14, v120")
    a("s_add_u32 s15, s15, 1")
    a("s_cmp_lg_u32 s14, 0")
    a("s_cbranch_scc1 C_GO_OK")
    a("s_cmp_ge_u32 s15, 0x8000")
    a("s_cbranch_scc1 C_GO_OK")
    a(f"buffer_load_dword v120, v121, {sr(SDB,4)}, 0 offen offset:4 sc1")
    a("s_waitcnt vmcnt(0)")
    a("s_branch C_GO")
    a.lab("C_GO_OK")
    a("s_cmp_lg_u32 s3, 0")
    a("s_cbranch_scc1 C_NOFLAG")
    a("s_lshl_b32 s15, s4, 6")
    a(f"s_add_u32 s15, s15, {WS_FC}")
    a("v_mov_b32 v54, 1")
    a("v_mov_b32 v55, 0")
    a("v_cmp_eq_u32 vcc, 0, v2")
    a("s_and_saveexec_b64 s[72:73], vcc")
    a(f"buffer_store_dword v54, v55, {sr(SWS,4)}, s15 offen sc1")
    a("s_mov_b64 exec, s[72:73]")
    a.lab("C_NOFLAG")
    a("s_mov_b32 s15, 0")
    a.lab("C_POLL")
    a(f"buffer_load_dword v52, v113, {sr(SWS,4)}, 0 offen sc1")
    a(f"buffer_load_dword v53, v114, {sr(SWS,4)}, 0 offen sc1")
    a(f"buffer_load_dword v54, v115, {sr(SDB,4)}, 0 offen offset:128 sc1")
    a("s_waitcnt vmcnt(0)")
    a("v_min3_u32 v55, v52, v53, v54")
    a("v_cmp_eq_u32 vcc, 0, v55")
    a("s_add_u32 s15, s15, 1")
    a("s_cmp_eq_u64 vcc, 0")
    a("s_cbranch_scc1 C_GOT")
    if SLP:
        a(f"s_sleep {SLP}")
    a("s_cmp_lt_u32 s15, 0x8000")
    a("s_cbranch_scc1 C_POLL")
    a.lab("C_GOT")
    a(f"buffer_load_dwordx4 v[40:43], v118, {sr(SWS,4)}, s71 offen sc1")
    a("v_and_b32 v54, 0x7ff, v54")
    a("v_sub_u32 v54, 2047, v54")
    a("s_mov_b64 s[74:75], -1")
    for j in range(8):
        a(f"v_readlane_b32 s72, v54, {j}")
        a.nop(2)
        a("v_cmp_ne_u32 vcc, s72, v110")
        a("s_and_b64 s[74:75], s[74:75], vcc")
    a("v_and_b32 v53, 0xffff0000, v53")
    a("v_sub_f32 v55, 1.0, v53")
    a("v_cvt_pk_bf16_f32 v55, v55, v55")
    a("v_and_b32 v55, 0xffff0000, v55")
    a("s_waitcnt vmcnt(0)")
    a("ds_write_b128 v116, v[40:43]")
    a("s_waitcnt lgkmcnt(0)")
    a("s_barrier")
    a("ds_read_b64_tr_b16 v[40:41], v117")
    a(f"ds_read_b64_tr_b16 v[42:43], v117 offset:{4*RS}")
    a("s_waitcnt lgkmcnt(0)")
    for p in range(4):
        y, x, ds = 40 + p, 44 + p, 48 + p
        a(f"v_lshlrev_b32 v56, 16, v{x}")
        a(f"v_and_b32 v57, 0xffff0000, v{x}")
        a(f"v_lshlrev_b32 v58, 16, v{ds}")
        a(f"v_and_b32 v59, 0xffff0000, v{ds}")
        a("v_mul_f32 v58, v56, v58")
        a("v_mul_f32 v59, v57, v59")
        a("v_cvt_pk_bf16_f32 v58, v58, v59")
        a("v_and_b32 v59, 0xffff0000, v58")
        a("v_lshlrev_b32 v58, 16, v58")
        a(f"v_lshlrev_b32 v60, 16, v{y}")
        a(f"v_and_b32 v61, 0xffff0000, v{y}")
        a("v_add_f32 v58, v58, v60")
        a("v_add_f32 v59, v59, v61")
        a("v_cvt_pk_bf16_f32 v58, v58, v59")
        a("v_and_b32 v59, 0xffff0000, v58")
        a("v_lshlrev_b32 v58, 16, v58")
        a("v_mul_f32 v58, v58, v53")
        a("v_mul_f32 v59, v59, v53")
        a("v_cvt_pk_bf16_f32 v58, v58, v59")
        a("v_mul_f32 v56, v56, v55")
        a("v_mul_f32 v57, v57, v55")
        a("v_cvt_pk_bf16_f32 v56, v56, v57")
        a("v_and_b32 v59, 0xffff0000, v58")
        a("v_lshlrev_b32 v58, 16, v58")
        a("v_and_b32 v57, 0xffff0000, v56")
        a("v_lshlrev_b32 v56, 16, v56")
        a("v_add_f32 v58, v58, v56")
        a("v_add_f32 v59, v59, v57")
        a(f"v_cvt_pk_bf16_f32 v{64+p}, v58, v59")
    a("s_mov_b64 exec, s[74:75]")
    a(f"buffer_store_dwordx4 v[64:67], v111, {sr(SO,4)}, 0 offen {OUTF}")
    a("s_mov_b64 exec, -1")
    a.stamp(7)
    if STAMP and os.environ.get("CLK"):
        a("s_memtime s[88:89]")
    a.stamp_out(8, SWS)
    a("s_endpgm")


def kernel1(a):
    a.L.append(".p2align 8")
    a.L.append(".globl k1_kernel")
    a.L.append(".type k1_kernel,@function")
    a.lab("k1_kernel")
    a("s_cmp_ge_u32 s2, 256")
    a("s_cbranch_scc1 K1_END")
    a("s_load_dwordx16 s[16:31], s[0:1], 0")
    a("s_load_dwordx16 s[32:47], s[0:1], 64")
    a("s_load_dwordx4 s[48:51], s[0:1], 128")
    a("v_lshrrev_b32 v1, 6, v0")
    a("v_and_b32 v2, 63, v0")
    a("v_readfirstlane_b32 s3, v1")
    a("v_and_b32 v3, 15, v2")
    a("v_lshrrev_b32 v4, 4, v2")
    if CODEPF:
        a("s_cmp_lg_u32 s3, 0")
        a("s_cbranch_scc1 K1_NOCPF")
        a("s_getpc_b64 s[4:5]")
        a("s_and_b32 s4, s4, 0xffffff00")
        a("v_lshlrev_b32 v160, 7, v2")
        for k in range(CODEPF):
            if k == CODEPF - 1:
                a(f"v_min_u32 v160, CODE_END-k1_kernel-{8192*k+4}, v160")
            a(f"global_load_dword v{161+(k&3)}, v160, s[4:5]")
            a("s_add_u32 s4, s4, 8192")
            a("s_addc_u32 s5, s5, 0")
        a.lab("K1_NOCPF")
    only = os.environ.get("ONLY", "")
    a.stamp(0)
    a("s_cmp_ge_u32 s2, 64")
    a("s_cbranch_scc1 " + ("K1_END" if only == "RF" else "ROLE_C"))
    a("s_waitcnt lgkmcnt(0)")
    if only == "C":
        a("s_branch K1_END")
    a("s_cmp_ge_u32 s3, 2")
    a("s_cbranch_scc1 K1_NORT")
    rtile(a)
    a("s_branch K1_RTD")
    a.lab("K1_NORT")
    a("s_cmp_lg_u32 s2, 0")
    a("s_cbranch_scc1 K1_NOSEL")
    selector(a)
    a.lab("K1_NOSEL")
    a("v_mov_b32 v8, 0")
    a("v_mov_b32 v9, 0")
    a(f"v_mov_b32 v10, {XSF}")
    a("ds_write_b64 v10, v[8:9]")
    a("s_waitcnt lgkmcnt(0)")
    a("s_barrier")
    a.lab("K1_RTD")
    a.stamp(5)
    a("s_cmp_lt_u32 s2, 16")
    a("s_cbranch_scc1 " + ("K1_END" if only == "C" else "ROLE_R"))
    a("s_cmp_lt_u32 s2, 64")
    a("s_cbranch_scc1 " + ("K1_END" if only == "C" else "ROLE_F"))
    if only == "RF":
        a("s_branch K1_END")
    role_C(a)
    role_R(a)
    role_F(a)
    if GPF:
        g_prefetch(a)
    a.lab("K1_END")
    a("s_endpgm")


def kernel2(a):
    RS = 144
    RED = 64 * RS
    UPD = RED + 1024
    a.L.append(".p2align 8")
    a.L.append(".globl k2_kernel")
    a.L.append(".type k2_kernel,@function")
    a.lab("k2_kernel")
    a("s_cmp_ge_u32 s2, 288")
    a("s_cbranch_scc1 K2_END")
    a("s_load_dwordx2 s[16:17], s[0:1], 0")
    a("s_load_dwordx2 s[18:19], s[0:1], 64")
    a("s_load_dwordx2 s[20:21], s[0:1], 120")
    a("s_load_dwordx2 s[22:23], s[0:1], 136")
    a("s_and_b32 s4, s2, 31")
    a("s_lshr_b32 s5, s2, 5")
    a("v_lshrrev_b32 v1, 6, v0")
    a("v_and_b32 v2, 63, v0")
    a("v_readfirstlane_b32 s3, v1")
    a("v_and_b32 v3, 15, v2")
    a("v_lshrrev_b32 v4, 4, v2")
    a("s_waitcnt lgkmcnt(0)")
    if STAMP:
        a("s_cmp_lg_u32 s2, 0")
        a("s_cbranch_scc1 K2_NODBG")
        a("s_cmp_lg_u32 s3, 0")
        a("s_cbranch_scc1 K2_NODBG")
        a("s_memrealtime s[60:61]")
        a("s_load_dwordx2 s[48:49], s[0:1], 128")
        lst = [(0, 2, 0), (0, 2, 2), (0, 2, 4), (20, 11, 1), (20, 2, 3), (20, 2, 5), (20, 0, 4), (50, 11, 1), (50, 0, 5), (50, 0, 4), (64, 0, 4), (64, 0, 5), (64, 0, 7), (200, 11, 7), (5, 3, 4)]
        for i, (wg, wv, k) in enumerate(lst):
            a(f"s_mov_b32 s62, {WS_STAMP + (wg*16+wv)*64 + 4*k}")
            a(f"s_load_dword s{64+i}, s[22:23], s62")
        a("s_waitcnt lgkmcnt(0)")
        srd(a, 52, 48, 256)
        a("v_mov_b32 v70, 0")
        for i in range(15):
            a(f"s_sub_u32 s{64+i}, s{64+i}, s64" if i else "s_mov_b32 s63, s64")
        a("s_sub_u32 s60, s60, s63")
        for i in range(1, 15):
            a(f"v_mov_b32 v71, s{64+i}")
            a(f"buffer_store_dword v71, v70, s[52:55], 0 offen offset:{4*i}")
        a("v_mov_b32 v71, s60")
        a("buffer_store_dword v71, v70, s[52:55], 0 offen offset:60")
        a.lab("K2_NODBG")
    a.lab("K2_END")
    a("s_endpgm")
    a.lab("CODE_END")
    return UPD + 256


def main():
    ref = open(os.path.join(HERE, NAME + ".s.ref")).read().splitlines()
    head = [l for l in ref if l.startswith(";") and "@launch" not in l and "Override" not in l and "grid=ceil" not in l]
    a = Asm()
    kernel1(a)
    K2 = STAMP and not AMP
    lds2 = kernel2(a) if K2 else 0
    if not K2:
        a.lab("CODE_END")
    out = head + [
        f"; @launch kernel=k1_kernel grid=(256,1,1) block=(768,1,1) lds={LDS1}",
    ] + ([f"; @launch kernel=k2_kernel grid=(1,1,1) block=(64,1,1) lds=0"] if K2 else []) + [
        '.amdgcn_target "amdgcn-amd-amdhsa--gfx950"',
        ".text",
    ] + a.L + [
        '.section .rodata,"a"',
    ]
    for k, nv in (("k1_kernel", 168), ("k2_kernel", 80))[:2 if K2 else 1]:
        out += [
            ".p2align 6",
            f".amdhsa_kernel {k}",
            f"  .amdhsa_next_free_vgpr {nv}",
            "  .amdhsa_next_free_sgpr 102",
            f"  .amdhsa_accum_offset {nv}",
            "  .amdhsa_group_segment_fixed_size 0",
            "  .amdhsa_kernarg_size 144",
            "  .amdhsa_user_sgpr_count 2",
            "  .amdhsa_user_sgpr_kernarg_segment_ptr 1",
            "  .amdhsa_system_sgpr_workgroup_id_x 1",
            ".end_amdhsa_kernel",
        ]
    path = sys.argv[1] if len(sys.argv) > 1 else os.path.join(HERE, NAME + ".s")
    open(path, "w").write("\n".join(out) + "\n")


if __name__ == "__main__":
    main()
```

```python
import sys, os, struct

NAME = "gated_mix__ssm_conv_s4__moe_arch_mod__prompt"
HERE = os.path.dirname(os.path.abspath(__file__))
env = lambda k, d: int(os.environ.get(k, str(d)))

AMP = os.environ.get("AMP", "")
STAMP = env("STAMP", 1 if AMP else 0)
RA = env("RA", 1)
RB = env("RB", 5)
RC = env("RC", 8)
HA = env("HA", 1)
HR0 = env("HR0", 3)
HR1 = env("HR1", 6)
CR0 = env("CR0", 6)
CDN = env("CDN", 1)
NPF = -(-(9 - CR0 + (5 if CDN else 0) - 4) // 4)
PSL = env("PSL", 4)
PW = env("PW", 0)
WIN = env("WIN", 4)
DLATE = env("DLATE", 1)
HB = env("HB", 0)
UWAIT = env("UWAIT", 0)
ZPRIO = env("ZPRIO", 2)
UFL = os.environ.get("UFL", "sc1")
PFL = os.environ.get("PFL", "")
SPIN = 0x4000

WS_KEY = 4096
WS_G = 20480
WS_PART = 40960
WS_SIZE = 0x10000000
WS_STAMP = 4 << 20

TSP = 1056
STG2 = 57 * TSP
CH0 = 120832
CHP = 8192
TE, TO, TS2, TS3 = 0, 1216, 2336, 2848
FLG = 3200
U0 = 4096
ZT = CH0 + 4 * CHP
SYN = ZT
YCH = 20480
L_UP = 73728
XS, XSP = 147456, 1312
EX = 157952
HH, HP = 162048, 144
CAND = 163200
M3 = 163456
LT = 163460
RKL = 163520
SELL = RKL + 96
LDS_BYTES = 163840

L2E = 0x3fb8aa3b
L2E_LO = 0x32a57060
LN2 = 0x3f317218
INV2PI = 0x3e22f983

P_U, P_ARE, P_AIM, P_BRE, P_BIM, P_CRE, P_CIM, P_LDT = 16, 18, 20, 22, 24, 26, 28, 30
P_DSK, P_BX, P_WR, P_WG, P_WU, P_WD, P_GW, P_OUT = 32, 34, 36, 38, 40, 42, 44, 46
P_DBG, P_WS = 48, 50


def fbits(x):
    return struct.unpack("<I", struct.pack("<f", float(x)))[0]


def vr(i, n):
    return f"v[{i}:{i+n-1}]"


def sr(i, n):
    return f"s[{i}:{i+n-1}]"


class Asm:
    def __init__(s):
        s.L = []
        s.nl = 0

    def __call__(s, x):
        s.L.append("    " + x)

    def lab(s, x):
        s.L.append(x + ":")

    def nop(s, n):
        while n > 0:
            k = min(n, 16)
            s(f"s_nop {k-1}")
            n -= k

    def stamp(s, i):
        if STAMP:
            s(f"s_memrealtime s[{84+2*i}:{85+2*i}]")

    def end(s):
        if STAMP:
            s("s_branch STAMP_OUT")
        else:
            s("s_endpgm")


def stamp_out(a):
    if not STAMP:
        return
    a.lab("STAMP_OUT")
    a("s_mov_b64 exec, -1")
    a("s_waitcnt lgkmcnt(0)")
    if AMP:
        wg, wv, i, mult = [int(x) for x in AMP.split(",")]
        a(f"s_cmp_lg_u32 s2, {wg}")
        a("s_cbranch_scc1 K_END")
        a(f"s_cmp_lg_u32 s3, {wv}")
        a("s_cbranch_scc1 K_END")
        a(f"s_sub_u32 s100, s{84+2*i}, s84")
        a("s_min_u32 s100, s100, 4000")
        a(f"s_mul_i32 s100, s100, {mult}")
        a("s_add_u32 s100, s100, s84")
        a("s_add_u32 s100, s100, 3000")
        a.lab("AMPL")
        a("s_memrealtime s[84:85]")
        a("s_waitcnt lgkmcnt(0)")
        a("s_sub_u32 s86, s84, s100")
        a("s_cmp_lt_i32 s86, 0")
        a("s_cbranch_scc1 AMPL")
        a("s_endpgm")
        return
    a("s_lshl_b32 s100, s2, 4")
    a("s_add_u32 s100, s100, s3")
    a("s_lshl_b32 s100, s100, 6")
    a(f"s_add_u32 s100, s100, {WS_STAMP}")
    a("v_mov_b32 v1, s100")
    for i in range(8):
        a(f"v_mov_b32 v2, s{84+2*i}")
        a(f"global_store_dword v1, v2, {sr(P_WS,2)} offset:{4*i}")
    a("s_endpgm")


def srd(a, d, p, size):
    a(f"s_mov_b32 s{d}, s{p}")
    a(f"s_mov_b32 s{d+1}, s{p+1}")
    a(f"s_mov_b32 s{d+2}, {size}")
    a(f"s_mov_b32 s{d+3}, 0x20000")


DPPF = "row_mask:0xf bank_mask:0xf"


def gran_addr(a, d, d7, t):
    a(f"v_lshlrev_b32 v{t}, 4, v2")
    a(f"v_and_b32 v{d}, 0x3c0, v{t}")
    a(f"v_add_u32 v{d}, v{d}, v{t}")
    a(f"v_and_b32 v{d7}, 0x3e0, v{t}")
    a(f"v_mul_u32_u24 v{d7}, 3, v{d7}")
    a(f"v_add_u32 v{d7}, v{d7}, v{t}")
    a(f"v_add_u32 v{d7}, {80*128+64}, v{d7}")


def sigmoid_bf16(a, x, t):
    a(f"v_mul_f32 v{t}, 0xbfb8aa3b, v{x}")
    a(f"v_exp_f32 v{t}, v{t}")
    a.nop(1)
    a(f"v_add_f32 v{t}, 1.0, v{t}")
    a(f"v_rcp_f32 v{t}, v{t}")
    a.nop(1)
    a(f"v_cvt_pk_bf16_f32 v{x}, v{t}, v{t}")


RX, RW, RG = 16, 34, 52


def router_pro(a):
    a.lab("RT_PRO")
    a("s_add_u32 s6, s6, s7")
    a("v_add_u32 v5, s6, v4")
    a("v_lshlrev_b32 v6, 4, v3")
    a("v_lshlrev_b32 v7, 3, v3")
    a("v_mul_u32_u24 v9, 1152, v5")
    a("v_add_u32 v8, v9, v6")
    a("v_add_u32 v9, v9, v7")
    a("v_mov_b32 v10, 0")
    a("v_lshlrev_b32 v11, 2, v2")
    a(f"v_add_u32 v11, {RKL}, v11")
    a("ds_write_b32 v11, v10")
    a("s_waitcnt lgkmcnt(0)")
    a(f"s_load_dword s12, {sr(P_WS,2)}, 0")
    for base, p, va, vb in ((RW, P_WR, 6, 7), (RX, P_U, 8, 9), (RG, P_GW, 6, 7)):
        for i in range(4):
            a(f"global_load_dwordx4 {vr(base+4*i,4)}, v{va}, {sr(p,2)} offset:{256*i}")
        a(f"global_load_dwordx2 {vr(base+16,2)}, v{vb}, {sr(p,2)} offset:1024")
    a("s_barrier")
    a("s_branch RT_MAIN")


def row_sum(a, v):
    for k in (8, 4, 2, 1):
        a.nop(2)
        a(f"v_add_f32_dpp v{v}, v{v}, v{v} row_ror:{k} {DPPF}")


def publish(a, off, lab):
    a("v_or_b32 v12, 1, v12")
    a("s_mov_b64 exec, s[10:11]")
    a(f"ds_write_b32 v13, v12 offset:{off}")
    a("s_mov_b64 exec, -1")
    a("s_cmp_lg_u32 s7, 0")
    a(f"s_cbranch_scc1 {lab}_X")
    a("s_mov_b32 s9, 0")
    a.lab(lab)
    a(f"ds_read_b32 v12, v14 offset:{off}")
    a("s_add_u32 s9, s9, 1")
    a("s_waitcnt lgkmcnt(0)")
    a("v_cmp_eq_u32 vcc, 0, v12")
    a("s_cmp_ge_u32 s9, 0x40000")
    a(f"s_cbranch_scc1 {lab}_S")
    a(f"s_cbranch_vccnz {lab}")
    a.lab(lab + "_S")
    a("v_bfi_b32 v12, s8, v11, v12")
    a("s_mov_b64 exec, 0xffffff")
    a(f"global_store_dword v5, v12, {sr(P_WS,2)} sc1")
    a("s_mov_b64 exec, -1")
    a.lab(lab + "_X")


def router_main(a):
    a.lab("RT_MAIN")
    a("s_lshl_b32 s6, s2, 7")
    a(f"s_add_u32 s6, s6, {WS_KEY}")
    a("s_cmp_lt_u32 s2, 80")
    a("s_cselect_b32 s8, 15, 23")
    a("v_min_u32 v14, s8, v2")
    a("v_lshl_add_u32 v5, v14, 2, s6")
    a(f"s_mov_b32 s8, {RKL}")
    a("v_lshl_add_u32 v14, v14, 2, s8")
    a("v_add_u32 v13, s7, v4")
    a("v_lshl_add_u32 v13, v13, 2, s8")
    a("s_mov_b32 s8, 0xffff")
    a("s_mov_b32 s10, 0x00010001")
    a("s_mov_b32 s11, 0x00010001")
    a("v_mov_b32 v15, 0x3f803f80")
    a(f"v_mov_b32 v12, {M3}")
    a("s_waitcnt lgkmcnt(0)")
    a("s_add_u32 s12, s12, 1")
    a("v_mov_b32 v11, s12")
    a("ds_write_b64 v12, v[10:11]")
    a("s_waitcnt vmcnt(5)")
    a.stamp(1)
    a(f"v_dot2_f32_bf16 v12, v{RX}, v{RW}, 0")
    for i in range(1, 18):
        a(f"v_dot2_f32_bf16 v12, v{RX+i}, v{RW+i}, v12")
    a.nop(1)
    row_sum(a, 12)
    a("v_cvt_pk_bf16_f32 v12, v12, v12")
    a("v_ashrrev_i32 v9, 31, v12")
    a("v_or_b32 v9, 0x80000000, v9")
    a("v_xor_b32 v12, v12, v9")
    a("s_waitcnt vmcnt(0)")
    publish(a, 0, "RT_PK")
    a.stamp(2)
    a("s_barrier")
    a("s_or_b32 s9, s2, s7")
    a("s_cmp_lg_u32 s9, 0")
    a("s_cbranch_scc1 RT_NOT")
    a("v_and_b32 v12, s8, v11")
    a("v_or_b32 v12, 0x10000, v12")
    a(f"global_store_dword v10, v12, {sr(P_DBG,2)} offset:128 sc1")
    a.lab("RT_NOT")
    T = 70
    for b in range(3):
        for i in range(6):
            k = 6 * b + i
            a(f"v_and_b32 v{RW+k}, 0xffff, v{RG+k}")
            a(f"v_and_b32 v{RG+k}, 0xffff0000, v{RG+k}")
        for i in range(6):
            k = 6 * b + i
            a(f"v_dot2_f32_bf16 v{T+2*i}, v{RX+k}, v{RW+k}, 0")
            a(f"v_dot2_f32_bf16 v{T+2*i+1}, v{RX+k}, v{RG+k}, 0")
        a.nop(1)
        for i in range(6):
            a(f"v_cvt_pk_bf16_f32 v{T+2*i}, v{T+2*i}, v{T+2*i+1}")
        for i in range(6):
            a(f"v_dot2_f32_bf16 v12, v{T+2*i}, v15, {'0' if b == 0 and i == 0 else 'v12'}")
    a(f"v_add_u32 v5, {WS_G-WS_KEY}, v5")
    row_sum(a, 12)
    a("v_cvt_pk_bf16_f32 v12, v12, v12")
    a("v_and_b32 v12, 0xffff0000, v12")
    sigmoid_bf16(a, 12, 9)
    publish(a, 128, "RT_PG")
    a.stamp(3)
    a("s_cmp_ge_u32 s2, 72")
    a("s_cbranch_scc1 W_END")
    a("s_cmp_lg_u32 s3, 8")
    a("s_cbranch_scc1 W_END")
    a("s_mul_i32 s6, s4, 9")
    a("s_add_u32 s6, s6, s5")
    a("v_mov_b32 v14, v11")
    srd(a, SD, P_WD, 5308416)
    a("s_barrier")
    a("s_cmp_lg_u32 s2, 0")
    a("s_cbranch_scc1 F_DOWN")
    a("v_and_b32 v17, 7, v2")
    a("v_lshlrev_b32 v17, 2, v17")
    a(f"v_add_u32 v19, {SELL}, v17")
    a("s_mov_b32 s9, 0")
    a.lab("RT_SEL")
    a("ds_read_b32 v18, v19")
    a("s_add_u32 s9, s9, 1")
    a("s_waitcnt lgkmcnt(0)")
    a("v_cmp_eq_u32 vcc, 0, v18")
    a("s_cmp_ge_u32 s9, 0x40000")
    a("s_cbranch_scc1 RT_SELP")
    a("s_cbranch_vccnz RT_SEL")
    a.lab("RT_SELP")
    a("s_mov_b64 exec, 0xff")
    a(f"global_store_dword v17, v18, {sr(P_DBG,2)} sc1")
    a("s_mov_b64 exec, -1")
    a("s_branch F_DOWN")


def helper(a):
    a.lab("HELPER")
    n = (HR1 - HR0) * 18
    a("s_sub_u32 s6, s5, 9")
    a("s_mul_i32 s7, s3, 5")
    a("s_add_u32 s6, s6, s7")
    a("v_mul_u32_u24 v5, 9216, v2")
    a("s_mul_i32 s7, s4, 1152")
    a("v_add_u32 v5, s7, v5")
    a("s_waitcnt lgkmcnt(0)")
    a("s_barrier")
    a("s_cmp_ge_u32 s3, 4")
    a("s_cbranch_scc1 W_END")
    a("s_cmp_lt_u32 s2, 80")
    a(f"s_cselect_b32 s14, {HA}, {HB}")
    a("s_cmp_lt_u32 s3, s14")
    a("s_cbranch_scc1 HP_LOOP")
    a.lab("HP_BAR")
    a("s_barrier")
    a("s_mov_b32 s14, 0")
    a.lab("HP_LOOP")
    a(f"s_cmp_ge_u32 s6, {n}")
    a("s_cbranch_scc1 W_END")
    pf_gu(a, 6, HR0, 5, 6)
    a("s_add_u32 s6, s6, 20")
    a("s_cmp_lg_u32 s14, 0")
    a("s_cbranch_scc1 HP_BAR")
    a("s_branch HP_LOOP")


def pf_gu(a, sq, r0, vbase, vt):
    a(f"s_mul_i32 s8, s{sq}, 7282")
    a("s_lshr_b32 s8, s8, 16")
    a("s_mul_i32 s9, s8, 9")
    a(f"s_sub_u32 s9, s{sq}, s9")
    a("s_lshl_b32 s9, s9, 7")
    a("s_bitcmp1_b32 s8, 0")
    a(f"s_cselect_b32 s12, s{P_WU}, s{P_WG}")
    a(f"s_cselect_b32 s13, s{P_WU+1}, s{P_WG+1}")
    a("s_lshr_b32 s8, s8, 1")
    a(f"s_add_u32 s8, s8, {r0}")
    a(f"s_mul_i32 s8, s8, {64*9216}")
    a("s_add_u32 s8, s8, s9")
    a(f"v_add_u32 v{vt}, s8, v{vbase}")
    a(f"global_load_dword v{vt+1}, v{vt}, s[12:13] {PFL}")


SG, SU, SD, SX, SDB, SW = 52, 56, 60, 64, 68, 72


def ffn_round(a, h):
    i = h >> 1
    a(f"s_add_u32 m0, s15, {8192*i+L_UP*(h&1)}")
    a(f"s_add_u32 s8, s14, {64*9216*i}")
    a(f"buffer_load_dwordx4 v5, {sr(SU if h & 1 else SG,4)}, s8 offen lds")


def ffn_pro(a):
    a.lab("F_PRO")
    a("s_mul_i32 s6, s4, 9")
    a("s_add_u32 s6, s6, s5")
    a("v_lshrrev_b32 v6, 3, v2")
    a("v_and_b32 v7, 4, v6")
    a("v_add_u32 v7, v6, v7")
    a("v_mul_u32_u24 v5, 9216, v7")
    a("v_and_b32 v7, 6, v6")
    a("v_xor_b32 v7, v7, v2")
    a("v_and_b32 v7, 7, v7")
    a("v_lshl_add_u32 v5, v7, 4, v5")
    a("s_and_b32 s8, s3, 1")
    a("s_lshr_b32 s9, s3, 1")
    a("s_lshl_b32 s9, s9, 2")
    a("s_add_u32 s8, s8, s9")
    a(f"s_mul_i32 s14, s8, {4*9216}")
    a("s_lshl_b32 s8, s6, 7")
    a("s_add_u32 s14, s14, s8")
    a("s_lshl_b32 s15, s3, 10")
    a(f"s_mov_b32 s{SG+2}, 5308416")
    a(f"s_mov_b32 s{SG+3}, 0x20000")
    a(f"s_mov_b32 s{SU+2}, 5308416")
    a(f"s_mov_b32 s{SU+3}, 0x20000")
    a("s_waitcnt lgkmcnt(0)")
    a(f"s_mov_b64 {sr(SG,2)}, {sr(P_WG,2)}")
    a(f"s_mov_b64 {sr(SU,2)}, {sr(P_WU,2)}")
    a("s_barrier")
    a("s_branch F_MAIN")


def win_row(a, skey, srank):
    a(f"s_and_b32 s8, s{skey}, 0x7ff")
    a("s_sub_u32 s8, 2047, s8")
    a("s_mul_i32 s8, s8, 1152")
    a(f"s_mul_i32 s9, s{srank}, {XSP}")
    a(f"s_add_u32 m0, s9, {XS}")
    a(f"s_lshl_b32 s9, s{srank}, 2")
    a(f"buffer_load_dwordx4 v9, {sr(SX,4)}, s8 offen lds")
    a(f"buffer_load_dword v10, {sr(SX,4)}, s8 offen offset:1024 lds")
    a(f"v_mov_b32 v12, s{skey}")
    a("v_add_u32 v17, s9, v13")
    a(f"ds_write_b32 v17, v12 offset:{SELL-M3}")


def ffn_main(a):
    a.lab("F_MAIN")
    for i in range(RA):
        ffn_round(a, i)
    srd(a, SD, P_WD, 5308416)
    srd(a, SX, P_U, 2359296)
    a("v_lshlrev_b32 v9, 4, v2")
    a("v_lshlrev_b32 v10, 2, v2")
    a("v_mov_b32 v11, 0")
    gran_addr(a, 8, 12, 13)
    a("s_lshl_b32 s8, s3, 11")
    a("v_add_u32 v8, s8, v8")
    a("s_cmp_eq_u32 s3, 7")
    a("s_cselect_b64 vcc, -1, 0")
    a("v_cndmask_b32 v8, v8, v12, vcc")
    a(f"v_add_u32 v8, {WS_KEY}, v8")
    a("s_lshl_b32 s8, s3, 8")
    a("s_sub_u32 s8, 0xfff, s8")
    K0, IX = 16, 20
    a(f"v_sub_u32 v{IX}, s8, v10")
    for i in range(1, 4):
        a(f"v_subrev_u32 v{IX+i}, {i}, v{IX}")
    a(f"v_mov_b32 v13, {M3}")
    a("s_lshl_b32 s8, s3, 5")
    a(f"s_add_u32 s8, s8, {CAND}")
    a("v_lshl_add_u32 v15, v4, 3, s8")
    a(f"v_add_u32 v24, {CAND}, v10")
    a("s_mov_b32 s76, 0xffff")
    a("s_mov_b32 s10, 0x00010001")
    a("s_mov_b32 s11, 0x00010001")
    a("s_barrier")
    a("ds_read_b32 v14, v13 offset:4")
    for i in range(RA, RB):
        if i - RA >= WIN:
            a(f"s_waitcnt vmcnt({WIN-1})")
        ffn_round(a, i)
    a.stamp(1)
    a("s_mov_b32 s7, 0")
    a("s_waitcnt lgkmcnt(0)")
    if PW >= 0:
        a(f"s_waitcnt vmcnt({PW})")
    a.lab("F_POLL")
    a(f"global_load_dwordx4 {vr(K0,4)}, v8, {sr(P_WS,2)} sc1")
    a("s_add_u32 s7, s7, 1")
    a("s_waitcnt vmcnt(0)")
    a(f"v_xor_b32 v25, v{K0}, v14")
    for i in range(1, 4):
        a(f"v_bitop3_b32 v25, v25, v{K0+i}, v14 bitop3:0xf6")
    a("v_and_b32 v25, 0xffff, v25")
    a("v_cmp_ne_u32 vcc, 0, v25")
    a(f"s_cmp_ge_u32 s7, {SPIN}")
    a("s_cbranch_scc1 F_GOT")
    a("s_cbranch_vccz F_GOT")
    a("s_mov_b64 exec, vcc")
    if PSL:
        a(f"s_sleep {PSL}")
    a("s_branch F_POLL")
    a.lab("F_GOT")
    a("s_mov_b64 exec, -1")
    a.stamp(2)
    for i in range(4):
        a(f"v_bfi_b32 v{K0+i}, s76, v{IX+i}, v{K0+i}")
    a(f"v_max_u32 v25, v{K0}, v{K0+1}")
    a(f"v_min_u32 v26, v{K0}, v{K0+1}")
    a(f"v_max3_u32 v20, v25, v{K0+2}, v{K0+3}")
    a(f"v_med3_u32 v21, v25, v{K0+2}, v{K0+3}")
    a(f"v_med3_u32 v22, v26, v{K0+2}, v{K0+3}")
    a("v_max_u32 v21, v21, v26")
    a("v_min_u32 v22, v22, v25")
    rounds = list(range(RB, RC))
    for r in range(3):
        c = 28 + r
        a(f"v_max_u32_dpp v{c}, v20, v20 row_ror:8 {DPPF}")
        for k in (4, 2, 1):
            a.nop(2)
            a(f"v_max_u32_dpp v{c}, v{c}, v{c} row_ror:{k} {DPPF}")
        if r < 2:
            a(f"v_cmp_eq_u32 vcc, v20, v{c}")
            a.nop(2)
            a("v_cndmask_b32 v20, v20, v21, vcc")
            if r == 0:
                a("v_cndmask_b32 v21, v21, v22, vcc")
                a.nop(1)
            else:
                a.nop(2)
    a("s_mov_b64 exec, s[10:11]")
    a("ds_write_b64 v15, v[28:29]")
    a("ds_max_u32 v13, v30")
    a("s_mov_b64 exec, -1")
    cand = [77, 78, 79, 80, 81, 82, 83, 100]
    for i in range(8):
        a(f"v_readlane_b32 s{cand[i]}, v{28+(i&1)}, {16*(i>>1)}")
    for i in rounds:
        ffn_round(a, i)
    a("s_waitcnt lgkmcnt(0)")
    a("s_barrier")
    a("ds_read_b32 v25, v24")
    a("ds_read_b32 v26, v13")
    a("s_or_b32 s8, s2, s3")
    a("s_cmp_lg_u32 s8, 0")
    a("s_cbranch_scc1 F_NOGEN")
    a(f"global_store_dword v11, v14, {sr(P_WS,2)} sc1")
    a.lab("F_NOGEN")
    a("s_waitcnt lgkmcnt(0)")
    a("v_cmp_gt_u32 vcc, v25, v26")
    pairs = [18, 20, 22, 24, 26, 28, 30, 34]
    for i in range(8):
        a(f"v_cmp_lt_u32 {sr(pairs[i],2)}, s{cand[i]}, v25")
    a("s_bcnt1_i32_b64 s8, vcc")
    a("s_cmp_lt_u32 s8, 8")
    a("s_cbranch_scc1 F_SLOW")
    for i in range(8):
        a(f"s_bcnt1_i32_b64 s7, {sr(pairs[i],2)}")
        a("s_cmp_lt_u32 s7, 8")
        a(f"s_cbranch_scc0 F_NW{i}")
        win_row(a, cand[i], 7)
        a.lab(f"F_NW{i}")
    a.lab("F_REST")
    a.stamp(3)
    for i in range(RC, 18):
        ffn_round(a, i)
    a.lab("F_DOWN")
    DL, DA = 96, 128
    a("v_lshrrev_b32 v6, 3, v2")
    a("v_mul_u32_u24 v6, 9216, v6")
    a("v_and_b32 v7, 7, v2")
    a("v_lshl_add_u32 v6, v7, 4, v6")
    a("s_mul_i32 s8, s6, 73728")
    a("s_lshl_b32 s9, s3, 7")
    a("s_add_u32 s8, s8, s9")
    a("s_add_u32 s9, s8, 4608")
    a("s_mov_b64 s[80:81], s[8:9]")
    a("v_mov_b32 v17, v6")

    def dload(i):
        a(f"buffer_load_dwordx4 {vr(DL+4*i,4)}, v17, {sr(SD,4)}, s{80+(i>>2)} offen offset:{1152*(i&3)}")
    if not DLATE:
        for i in range(8):
            dload(i)
    a("s_and_b32 s12, s3, 3")
    a("s_lshr_b32 s13, s3, 2")
    a("v_and_b32 v5, 1, v4")
    a("v_bfe_u32 v6, v2, 2, 2")
    a("v_lshl_add_u32 v5, v5, 2, v6")
    a("v_lshrrev_b32 v6, 1, v5")
    a("v_xor_b32 v6, s12, v6")
    a("v_lshlrev_b32 v5, 7, v5")
    a("v_lshl_add_u32 v5, v6, 5, v5")
    a("v_and_b32 v6, 3, v2")
    a("v_lshl_add_u32 v5, v6, 3, v5")
    a("v_lshrrev_b32 v6, 1, v4")
    a("v_lshl_add_u32 v5, v6, 11, v5")
    a("s_mul_i32 s8, s13, 36864")
    a("v_add_u32 v5, s8, v5")
    a(f"v_add_u32 v6, {L_UP}, v5")
    a(f"v_mul_u32_u24 v8, {XSP}, v7")
    a("v_lshl_add_u32 v8, v4, 4, v8")
    a("s_mul_i32 s8, s13, 576")
    a(f"s_add_u32 s8, s8, {XS}")
    a("v_add_u32 v8, s8, v8")
    a("s_lshl_b32 s8, s3, 9")
    a(f"s_add_u32 s8, s8, {EX}")
    a("v_lshl_add_u32 v9, v2, 3, s8")
    a("s_xor_b32 s8, s3, 4")
    a("s_lshl_b32 s8, s8, 9")
    a(f"s_add_u32 s8, s8, {EX}")
    a("v_lshl_add_u32 v10, v2, 3, s8")
    a(f"v_mul_u32_u24 v11, {HP}, v7")
    a(f"v_add_u32 v11, {HH}, v11")
    a("v_lshrrev_b32 v12, 3, v3")
    a("v_lshl_add_u32 v13, v4, 1, v12")
    a("v_lshl_add_u32 v13, v13, 4, v11")
    a("v_lshl_add_u32 v15, v4, 2, v12")
    a("s_lshl_b32 s8, s12, 4")
    a("s_lshl_b32 s9, s13, 1")
    a("s_add_u32 s8, s8, s9")
    a("v_add_u32 v15, s8, v15")
    a("v_lshl_add_u32 v11, v15, 1, v11")
    a("v_and_b32 v15, 1, v4")
    a("v_lshlrev_b32 v15, 2, v15")
    a("v_add_u32 v15, v15, v12")
    a("v_lshrrev_b32 v16, 1, v4")
    a("v_lshl_add_u32 v15, v15, 1, v16")
    a("v_mul_u32_u24 v15, 9216, v15")
    a("v_lshl_add_u32 v15, v7, 4, v15")
    a(f"s_mul_i32 s8, s3, {16*9216}")
    a("s_lshl_b32 s9, s6, 7")
    a("s_add_u32 s8, s8, s9")
    a(f"s_add_u32 s8, s8, {WS_PART}")
    a("v_add_u32 v15, s8, v15")
    a("v_add_u32 v16, 36864, v15")
    a("s_mov_b32 s10, 0xff00ff00")
    a("s_mov_b32 s11, 0xff00ff00")
    a("s_mov_b32 s76, 0x05040100")
    a("s_mov_b32 s77, 0x07060302")
    a("s_movk_i32 s78, 0xff")
    a(f"s_waitcnt vmcnt({0 if DLATE else 8}) lgkmcnt(0)")
    a("s_barrier")
    a.stamp(4)
    a("s_cmp_ge_u32 s3, 8")
    a("s_cbranch_scc1 F_W8")
    AG, XB, AC = 24, DA, 160

    def rd(ks):
        a(f"ds_read_b128 {vr(XB+4*(ks%8),4)}, v8 offset:{64*ks}")
        for m, va in ((0, 5), (1, 6)):
            for hf in range(2):
                a(f"ds_read_b64_tr_b16 {vr(AG+8*ks+4*m+2*hf,2)}, v{va} offset:{4096*ks+1024*hf}")
    rd(0); rd(1); rd(2)
    for ks in range(9):
        a(f"s_waitcnt lgkmcnt({5*min(2, 8-ks)})")
        for m in range(2):
            c = "0" if ks == 0 else vr(AC+4*m, 4)
            a(f"v_mfma_f32_16x16x32_bf16 {vr(AC+4*m,4)}, {vr(AG+8*ks+4*m,4)}, {vr(XB+4*(ks%8),4)}, {c}")
        if ks + 3 < 9:
            rd(ks + 3)
        if DLATE and ks < 8:
            dload(ks)
    a("s_cmp_eq_u32 s13, 0")
    a("s_cselect_b64 vcc, -1, 0")
    a.nop(6)
    a(f"v_cndmask_b32 v24, v{AC}, v{AC+1}, s[10:11]")
    a(f"v_cndmask_b32 v25, v{AC+2}, v{AC+3}, s[10:11]")
    a(f"v_cndmask_b32 v26, v{AC+4}, v{AC+5}, s[10:11]")
    a(f"v_cndmask_b32 v27, v{AC+6}, v{AC+7}, s[10:11]")
    a("v_cndmask_b32 v28, v24, v25, vcc")
    a("v_cndmask_b32 v29, v26, v27, vcc")
    a("ds_write_b64 v9, v[28:29]")
    a("v_cndmask_b32 v24, v25, v24, vcc")
    a("v_cndmask_b32 v25, v27, v26, vcc")
    a("s_waitcnt lgkmcnt(0)")
    a("s_barrier")
    a("ds_read_b64 v[28:29], v10")
    a("s_waitcnt lgkmcnt(0)")
    a("v_add_f32 v24, v24, v28")
    a("v_add_f32 v25, v25, v29")
    a("v_cvt_pk_bf16_f32 v24, v24, v25")
    a("v_lshlrev_b32 v25, 16, v24")
    a("v_mul_f32 v26, 0xbfb8aa3b, v25")
    a("v_exp_f32 v26, v26")
    a("v_and_b32 v24, 0xffff0000, v24")
    a("v_add_f32 v26, 1.0, v26")
    a("v_rcp_f32 v26, v26")
    a.nop(1)
    a("v_mul_f32 v25, v25, v26")
    a("v_cvt_pk_bf16_f32 v25, v25, v25")
    a("v_and_b32 v25, 0xffff0000, v25")
    a("v_mul_f32 v24, v24, v25")
    a("v_cvt_pk_bf16_f32 v24, v24, v24")
    a("ds_write_b16 v11, v24")
    a("s_branch F_H")
    a.lab("F_W8")
    if DLATE:
        for i in range(8):
            dload(i)
    a("s_barrier")
    a.lab("F_H")
    a("s_waitcnt vmcnt(0)")
    for e in range(8):
        for p in range(4):
            a(f"v_perm_b32 v{DA+4*e+p}, v{DL+8*p+4+(e>>1)}, v{DL+8*p+(e>>1)}, s{76+(e&1)}")
    a("s_waitcnt lgkmcnt(0)")
    a("s_barrier")
    a.stamp(5)
    a("ds_read_b128 v[24:27], v13")
    a("s_waitcnt lgkmcnt(0)")
    DD = 32
    for e in (0, 4, 1, 5, 2, 6, 3, 7):
        a(f"v_mfma_f32_16x16x32_bf16 {vr(DD+4*e,4)}, {vr(DA+4*e,4)}, v[24:27], 0")
    a.nop(2)
    for e in range(4):
        for j in range(4):
            a(f"v_permlane32_swap_b32 v{DD+4*e+j}, v{DD+16+4*e+j}")
    S = 64
    for j in range(4):
        for e in range(4):
            x, y, d = DD + 4 * e + j, DD + 16 + 4 * e + j, S + 4 * (j >> 1) + e
            if j & 1:
                a(f"v_add_f32_dpp v{d}, v{x}, v{y} row_ror:8 row_mask:0xf bank_mask:0xc")
            else:
                a(f"v_add_f32_dpp v{d}, v{y}, v{x} row_ror:8 row_mask:0xf bank_mask:0x3")
    for i in range(8):
        a(f"v_bfi_b32 v{S+i}, s78, v14, v{S+i}")
        if i == 3:
            a(f"global_store_dwordx4 v15, {vr(S,4)}, {sr(P_WS,2)} sc1")
    a(f"global_store_dwordx4 v16, {vr(S+4,4)}, {sr(P_WS,2)} sc1")
    a.stamp(6)
    a.end()
    a.lab("F_SLOW")
    KY, TK = 24, 56
    gran_addr(a, 8, 21, 20)
    a(f"v_add_u32 v8, {WS_KEY+4096}, v8")
    a("v_add_u32 v12, 8192, v8")
    a(f"v_add_u32 v21, {WS_KEY-2048}, v21")
    for k in range(8):
        a(f"global_load_dwordx4 {vr(KY+4*k,4)}, v{8 if k < 4 else 12 if k < 7 else 21}, {sr(P_WS,2)} offset:{2048*(k&3)-4096} sc1")
    a("v_sub_u32 v20, 0xfff, v10")
    a("s_waitcnt vmcnt(0)")
    for k in range(32):
        a(f"v_subrev_u32 v21, {256*(k>>2)+(k&3)}, v20")
        a(f"v_bfi_b32 v{KY+k}, s76, v21, v{KY+k}")
    a("s_mov_b32 s77, 0")
    a("s_mov_b32 s7, 0")
    a.lab("F_SLOOP")
    for j in range(32):
        a(f"v_subrev_u32 v{TK+j}, s77, v{KY+j}")
    a(f"v_max_u32 v{TK}, v{TK}, v{TK+1}")
    for j in range(15):
        a(f"v_max3_u32 v{TK}, v{TK}, v{TK+2+2*j}, v{TK+3+2*j}")
    for m in ("row_shr:1 " + DPPF, "row_shr:2 " + DPPF, "row_shr:4 " + DPPF, "row_shr:8 " + DPPF,
              "row_bcast:15 row_mask:0xa bank_mask:0xf", "row_bcast:31 row_mask:0xc bank_mask:0xf"):
        a.nop(2)
        a(f"v_max_u32_dpp v{TK}, v{TK}, v{TK} {m}")
    a.nop(1)
    a(f"v_readlane_b32 s8, v{TK}, 63")
    a("s_add_u32 s77, s77, s8")
    a("s_add_u32 s7, s7, 1")
    a("s_cmp_le_u32 s7, s3")
    a("s_cbranch_scc1 F_SLOOP")
    win_row(a, 77, 3)
    a("s_branch F_REST")


def ck_pro(a):
    a.lab("CK_PRO")
    a("s_and_b32 s7, s3, 3")
    a("s_lshr_b32 s12, s3, 2")
    a("s_lshl_b32 s8, s6, 2")
    a("s_add_u32 s8, s8, s7")
    a("s_lshl_b32 s9, s8, 8")
    a("v_lshl_add_u32 v6, v2, 2, s9")
    a("s_lshl_b32 s10, s12, 7")
    a("s_add_u32 s9, s9, s10")
    a("v_lshl_add_u32 v5, v2, 1, s9")
    a("s_lshl_b32 s8, s8, 1")
    a("v_mov_b32 v7, s8")
    for k in range(6):
        a(f"v_mov_b32 v{8+k}, 0")
    a("v_mov_b32 v18, 0")
    a("s_waitcnt lgkmcnt(0)")
    a(f"global_load_short_d16_hi v18, v7, {sr(P_LDT,2)}")
    for k in range(6):
        a(f"global_load_short_d16_hi v{8+k}, v5, {sr(P_ARE+2*k,2)}")
    for k in range(4):
        a(f"global_load_dword v{14+k}, v6, {sr(P_BRE+2*k,2)}")
    a("s_barrier")
    a("s_branch CK_MAIN")


def cmul(a, d, x, y, t):
    a(f"v_pk_mul_f32 {vr(t,2)}, {vr(x,2)}, {vr(y,2)} op_sel:[1,1] op_sel_hi:[1,0]")
    a(f"v_pk_fma_f32 {vr(d,2)}, {vr(x,2)}, {vr(y,2)}, {vr(t,2)} op_sel:[0,0,0] op_sel_hi:[0,1,1] neg_lo:[0,0,1]")


ZC = 140


def zconst(a):
    a("s_cmp_eq_u32 s12, 0")
    a("s_cbranch_scc1 CK_NOC")
    S, H = 76, 80
    a("v_lshlrev_b32 v74, 3, v4")
    a("v_sub_u32 v74, v74, v3")
    a("v_and_b32 v74, 0xffff, v74")
    a("v_lshl_or_b32 v74, v74, 16, v74")
    a("v_mov_b32 v75, 0x3c003c00")
    for p in range(4):
        k = ((2 * p + 1 - 16) & 0xffff) | (((2 * p - 16) & 0xffff) << 16)
        a(f"s_mov_b32 s8, {k:#x}")
        a(f"v_pk_add_u16 v{S+p}, v74, s8")
    th = (3, 4, 5, 6, 11, 12, 13)
    for i, t in enumerate(th):
        for p in range(4):
            a(f"v_pk_add_u16 v{H+4*i+p}, v{S+p}, {t-1} op_sel_hi:[1,0]")
            a(f"v_pk_ashrrev_i16 v{H+4*i+p}, 15, v{H+4*i+p} op_sel_hi:[0,1]")
    for m, (lo, hi) in enumerate(((3, 6), (6, 11), (5, 12), (4, 13), (3, 5))):
        x, y = H + 4 * th.index(lo), H + 4 * th.index(hi)
        for p in range(4):
            if m < 4:
                a(f"v_bitop3_b32 v{ZC+4*m+p}, v{x+p}, v{y+p}, v75 bitop3:0x28")
            else:
                a(f"v_xor_b32 v{ZC+4*m+p}, v{x+p}, v{y+p}")
    a.lab("CK_NOC")


def ck_main(a):
    a.lab("CK_MAIN")
    a("s_lshl_b32 s13, s7, 13")
    a(f"s_add_u32 s13, s13, {CH0}")
    a("s_lshr_b32 s14, s7, 1")
    a(f"s_mul_i32 s14, s14, {STG2}")
    a("s_and_b32 s8, s7, 1")
    a("s_lshl_b32 s8, s8, 9")
    a("s_add_u32 s14, s14, s8")
    a("s_lshl_b32 s8, s12, 8")
    a("s_add_u32 m0, s14, s8")
    for j in range(4):
        a(f"v_mov_b32 v{124+j}, 0")
    a("s_lshl_b32 s8, s12, 11")
    a("s_add_u32 s8, s8, s13")
    a("v_lshl_add_u32 v20, v2, 4, s8")
    a("ds_write_b128 v20, v[124:127]")
    a("ds_write_b128 v20, v[124:127] offset:1024")
    a(f"v_mul_u32_u24 v128, {TSP}, v3")
    a("v_lshl_add_u32 v128, v4, 4, v128")
    a("v_add_u32 v128, s14, v128")
    a("s_lshl_b32 s8, s3, 2")
    a(f"s_add_u32 s9, s8, {SYN+32}")
    a("v_mov_b32 v129, s9")
    a("s_xor_b32 s8, s8, 16")
    a(f"s_add_u32 s9, s8, {SYN+32}")
    a("v_mov_b32 v130, s9")
    a("v_mov_b32 v21, 0x3c00")
    a(f"ds_write_addtid_b32 v21 offset:{41*TSP}")
    a(f"v_mov_b32 v22, {L2E:#x}")
    a(f"v_mov_b32 v23, {L2E_LO:#x}")
    a(f"v_mov_b32 v24, {L2E:#x}")
    a(f"v_mov_b32 v25, {INV2PI:#x}")
    a("s_mov_b32 s15, 0x7fff7fff")
    zconst(a)
    a("s_waitcnt vmcnt(10)")
    a("v_mul_f32 v19, v18, v22")
    a("v_fma_f32 v22, v18, v22, -v19")
    a("v_exp_f32 v19, v19")
    a("v_fma_f32 v22, v18, v23, v22")
    a(f"v_mul_f32 v22, {LN2:#x}, v22")
    a("v_fma_f32 v19, v19, v22, v19")
    a("v_cvt_pk_bf16_f32 v19, v19, v19")
    a("v_and_b32 v18, 0xffff0000, v19")
    a("v_pk_mul_f32 v[24:25], v[24:25], v[18:19] op_sel_hi:[1,0]")
    a("s_waitcnt vmcnt(0)")
    a.stamp(1)
    X, W, E1, Q, R, QC, T1, T2 = 40, 56, 58, 60, 62, 64, 66, 68
    Z = 8
    for k in range(4):
        a(f"v_and_b32 v{14+k}, s15, v{14+k}")
    a("v_pk_max_u16 v14, v14, v15")
    a("v_pk_max_u16 v16, v16, v17")
    a("v_lshlrev_b32 v15, 16, v14")
    a("v_lshlrev_b32 v17, 16, v16")
    a("v_pk_mul_f32 v[14:15], v[14:15], v[16:17]")
    a(f"v_pk_mul_f32 {vr(Z,2)}, {vr(Z,2)}, v[24:25]")
    a("v_max_f32 v14, v14, v15")
    a("v_pk_mul_f32 v[10:11], v[10:11], v[18:19] op_sel_hi:[1,0]")
    a("v_mul_f32 v14, v14, v18")
    dpp = ["row_shr:1 " + DPPF, "row_shr:2 " + DPPF, "row_shr:4 " + DPPF, "row_shr:8 " + DPPF,
           "row_bcast:15 row_mask:0xa bank_mask:0xf", "row_bcast:31 row_mask:0xc bank_mask:0xf"]
    fill = []
    b = Asm()
    cmul(b, W, 12, 10, T1)
    b(f"v_mul_f32 v{Q}, {fbits(8):#x}, v{Z}")
    b(f"v_mul_f32 v{Q+1}, {fbits(-8):#x}, v{Z+1}")
    b(f"v_mul_f32 v{R}, {fbits(128):#x}, v{Z}")
    b(f"v_mul_f32 v{R+1}, {fbits(128):#x}, v{Z+1}")
    b(f"v_fract_f32 v{E1+1}, v{Z+1}")
    b(f"v_fract_f32 v{Q+1}, v{Q+1}")
    b(f"v_fract_f32 v{R+1}, v{R+1}")
    b(f"v_exp_f32 v20, v{Z}")
    b(f"v_exp_f32 v22, v{Q}")
    b(f"v_exp_f32 v26, v{R}")
    for r_ in (Q, E1, R):
        b(f"v_cos_f32 v{r_}, v{r_+1}")
        b(f"v_sin_f32 v{r_+1}, v{r_+1}")
    fill = b.L
    fi = 0
    for m in dpp:
        a.L += fill[fi:fi + 2]
        fi += 2
        a(f"v_max_u32_dpp v14, v14, v14 {m}")
    a.L += fill[fi:fi + 1]
    fi += 1
    a("v_readlane_b32 s8, v14, 63")
    a.L += fill[fi:]
    a("s_lshr_b32 s8, s8, 23")
    a("s_sub_i32 s8, 258, s8")
    a("s_max_i32 s8, s8, 1")
    a("s_min_i32 s8, s8, 253")
    a("s_lshl_b32 s10, s8, 23")
    a(f"v_pk_mul_f32 {vr(Q,2)}, {vr(Q,2)}, v[22:23] op_sel_hi:[1,0]")
    a(f"v_pk_mul_f32 {vr(E1,2)}, {vr(E1,2)}, v[20:21] op_sel_hi:[1,0]")
    a(f"v_pk_mul_f32 {vr(R,2)}, {vr(R,2)}, v[26:27] op_sel_hi:[1,0]")
    a(f"v_pk_mul_f32 {vr(W,2)}, {vr(W,2)}, s[10:11] op_sel_hi:[1,0]")
    cnt = [0]

    def emit(row, x):
        o = 70 + cnt[0] % 4
        cnt[0] += 1
        a(f"v_cvt_pk_f16_f32 v{o}, v{x}, v{x+1}")
        if env("KSKIP", 0) != 2:
            a(f"ds_write_addtid_b32 v{o} offset:{row*TSP}")

    xc = lambda c: X + 2 * (c - 1)
    if env("KSKIP", 0) == 1:
        a("s_branch CK_SKIP")
    emit(42, Q)
    emit(40, W)
    for c in range(1, 9):
        cmul(a, xc(c), W if c == 1 else xc(c - 1), E1, T1)
        emit(c - 1, xc(c))
    for c in range(1, 9):
        cmul(a, xc(c), xc(c), R, T1)
        emit(8 + c - 1, xc(c))
    for aa in (2, 3):
        for c in (2, 4, 6, 8):
            cmul(a, xc(c), xc(c), R, T1)
            emit(16 + 4 * (aa - 2) + c // 2 - 1, xc(c))
    for aa in range(4, 8):
        for c in (4, 8):
            cmul(a, xc(c), xc(c), R, T1)
            emit(24 + 2 * (aa - 4) + c // 4 - 1, xc(c))
    for aa in range(8, 16):
        cmul(a, xc(8), xc(8), R, T1)
        emit(32 + aa - 8, xc(8))
    for bb in range(2, 16):
        cmul(a, QC, Q if bb == 2 else QC, Q, T1)
        emit(41 + bb, QC)
    a.lab("CK_SKIP")
    a.stamp(2)
    a("ds_write_b32 v129, v129")
    a("s_mov_b32 s9, 0")
    a.lab("CK_PAIR")
    a("ds_read_b32 v8, v130")
    a("s_add_u32 s9, s9, 1")
    a("s_waitcnt lgkmcnt(0)")
    a("v_cmp_eq_u32 vcc, 0, v8")
    a("s_cmp_ge_u32 s9, 0x40000")
    a("s_cbranch_scc1 CK_PAIRED")
    a("s_cbranch_vccnz CK_PAIR")
    a.lab("CK_PAIRED")
    CF, RF, RF2, AC = 8, 40, 72, 104
    a("s_cmp_eq_u32 s12, 0")
    a("s_cbranch_scc0 CK_T1")
    for q in range(8):
        a(f"ds_read_b128 {vr(CF+4*q,4)}, v128 offset:{41*TSP+64*q}")
        a(f"ds_read_b128 {vr(RF+4*q,4)}, v128 offset:{64*q}")
        if q == 3:
            a("s_lshl_b32 s9, s7, 2")
            a(f"s_add_u32 s9, s9, {SYN+16}")
            a("v_mov_b32 v112, s9")
            a("v_mov_b32 v113, s8")
    a("v_lshrrev_b32 v114, 1, v4")
    a("v_lshlrev_b32 v114, 8, v114")
    a("v_lshl_add_u32 v114, v3, 4, v114")
    a("v_and_b32 v115, 1, v4")
    a("v_lshl_add_u32 v114, v115, 3, v114")
    a("v_add_u32 v114, s13, v114")
    a("v_lshlrev_b32 v115, 5, v3")
    a("v_lshl_add_u32 v115, v4, 3, v115")
    a("v_add_u32 v115, s13, v115")
    a("v_mov_b32 v116, s13")
    for q in range(8):
        a(f"s_waitcnt lgkmcnt({min(15, 14-2*q+q)})")
        a(f"v_mfma_f32_16x16x32_f16 {vr(AC,4)}, {vr(RF+4*q,4)}, {vr(CF+4*q,4)}, {'0' if q == 0 else vr(AC,4)}")
        a(f"ds_read_b128 {vr(RF2+4*q,4)}, v128 offset:{32*TSP+64*q}")
    for q in range(8):
        a(f"s_waitcnt lgkmcnt({7-q})")
        a(f"v_mfma_f32_16x16x32_f16 {vr(AC+4,4)}, {vr(CF+4*q,4)}, {vr(RF2+4*q,4)}, {'0' if q == 0 else vr(AC+4,4)}")
    a("ds_write_b32 v112, v113")
    a(f"v_cvt_pk_f16_f32 v118, v{AC}, v{AC+1}")
    a(f"v_cvt_pk_f16_f32 v119, v{AC+2}, v{AC+3}")
    a(f"v_cvt_pk_f16_f32 v120, v{AC+1}, v{AC+2}")
    a(f"v_cvt_pk_f16_f32 v121, v{AC+3}, v{AC+3}")
    a(f"ds_write_b16 v114, v121 offset:{TO+4*(7+3)}")
    a(f"ds_write_b64 v114, v[120:121] offset:{TE+4*(7+1)}")
    a(f"ds_write_b64 v114, v[118:119] offset:{TO+4*(7+1)}")
    a(f"ds_write_b16 v114, v118 offset:{TE+4*7+2}")
    a(f"v_cvt_pk_f16_f32 v118, v{AC+4}, v{AC+5}")
    a(f"v_cvt_pk_f16_f32 v119, v{AC+6}, v{AC+7}")
    a("s_mov_b32 s10, 0x00ff00ff")
    a("s_mov_b32 s11, 0x00ff00ff")
    a("s_mov_b64 exec, s[10:11]")
    a(f"ds_write_b64 v115, v[118:119] offset:{TS3+64}")
    a("s_mov_b64 exec, 0x100")
    a(f"ds_write_b16 v116, v118 offset:{TE+4*7}")
    a(f"ds_write_b16 v116, v118 offset:{TO+4*7+2}")
    a("s_mov_b64 exec, -1")
    a.stamp(6)
    a("s_mov_b32 s72, s13")
    wait_issued(a, "D")
    pf_item(a, 7, "D")
    a("s_mov_b32 s13, s72")
    a("s_barrier")
    d_wave(a)
    a.lab("CK_T1")
    for q in range(8):
        a(f"ds_read_b128 {vr(CF+4*q,4)}, v128 offset:{41*TSP+64*q}")
        a(f"ds_read_b128 {vr(RF+4*q,4)}, v128 offset:{16*TSP+64*q}")
    a("v_lshlrev_b32 v114, 8, v4")
    a("v_lshl_add_u32 v114, v3, 4, v114")
    a("v_add_u32 v114, s13, v114")
    a("v_lshlrev_b32 v115, 7, v4")
    a("v_lshl_add_u32 v115, v3, 2, v115")
    a("v_add_u32 v115, s13, v115")
    for q in range(8):
        a(f"s_waitcnt lgkmcnt({14-2*q})")
        a(f"v_mfma_f32_16x16x32_f16 {vr(AC,4)}, {vr(RF+4*q,4)}, {vr(CF+4*q,4)}, {'0' if q == 0 else vr(AC,4)}")
    a.nop(8)
    a(f"v_cvt_pk_f16_f32 v116, v{AC}, v{AC+1}")
    a(f"v_cvt_pk_f16_f32 v117, v{AC+1}, v{AC+1}")
    a(f"v_cvt_pk_f16_f32 v118, v{AC+2}, v{AC+3}")
    a(f"v_cvt_pk_f16_f32 v119, v{AC+3}, v{AC+3}")
    a(f"v_cvt_pk_f16_f32 v120, v{AC+1}, v{AC+2}")
    a("s_mov_b32 exec_hi, 0")
    a(f"ds_write_b16 v114, v119 offset:{TE+512+4*(7+5)}")
    a(f"v_add_u32 v121, {TO+512}, v114")
    a(f"ds_write_b128 v114, v[116:119] offset:{TE+512+4*(7+1)}")
    a(f"ds_write2_b32 v121, v119, v119 offset0:{7+4} offset1:{7+5}")
    a(f"ds_write2_b32 v121, v117, v120 offset0:{7+2} offset1:{7+3}")
    a(f"ds_write_b16 v121, v116 offset:{4*(7+1)+2}")
    a("s_not_b64 exec, exec")
    a(f"ds_write_b32 v115, v116 offset:{TS2+128-256}")
    a(f"ds_write_b32 v115, v118 offset:{TS2+128-256+64}")
    a("s_mov_b64 exec, -1")
    a("s_waitcnt lgkmcnt(0)")
    a("s_barrier")
    z_wave(a)


def pf_item(a, sm, tag):
    ng = 9 - CR0
    a(f"s_mul_i32 s14, s{sm}, 18")
    a("s_add_u32 s14, s14, s101")
    a(f"s_cmp_ge_u32 s14, {18*ng}")
    a(f"s_cbranch_scc1 CPF_D{tag}")
    a("v_mul_u32_u24 v140, 9216, v2")
    a("s_mul_i32 s8, s4, 1152")
    a("v_add_u32 v140, s8, v140")
    pf_gu(a, 14, CR0, 140, 141)
    a(f"s_branch CPF_X{tag}")
    a.lab(f"CPF_D{tag}")
    a(f"s_sub_u32 s14, s14, {18*ng}")
    a("s_min_u32 s14, s14, 80")
    a("s_mul_i32 s8, s4, 81")
    a("s_add_u32 s8, s8, s14")
    a("s_lshl_b32 s8, s8, 13")
    a("v_lshl_add_u32 v141, v2, 7, s8")
    a(f"global_load_dword v142, v141, {sr(P_WD,2)} {PFL}")
    a.lab(f"CPF_X{tag}")


def wait_issued(a, tag):
    a(f"v_mov_b32 v8, {SYN}")
    a("s_mov_b32 s9, 0")
    a.lab(f"CK_ISS{tag}")
    a("ds_read_b32 v9, v8 offset:64")
    a("s_add_u32 s9, s9, 1")
    a("s_waitcnt lgkmcnt(0)")
    a("v_cmp_ne_u32 vcc, 4, v9")
    a("s_cmp_ge_u32 s9, 0x40000")
    a(f"s_cbranch_scc1 CK_ISSD{tag}")
    a(f"s_cbranch_vccz CK_ISSD{tag}")
    a("s_sleep 2")
    a(f"s_branch CK_ISS{tag}")
    a.lab(f"CK_ISSD{tag}")


def y_addr(a, v):
    a(f"v_mul_u32_u24 v{v}, 320, v4")
    a(f"v_lshl_add_u32 v{v}, v3, 4, v{v}")
    a(f"s_mul_i32 s8, s7, {YCH}")
    a(f"v_add_u32 v{v}, s8, v{v}")
    a("s_lshl_b32 s8, s3, 2")
    a(f"s_add_u32 s8, s8, {CH0+FLG}")
    a(f"v_mov_b32 v{v+1}, s8")
    a(f"v_mov_b32 v{v+2}, 1")


def d_wave(a):
    T, UR, AC = 8, 76, 108
    NR = 8
    a("v_and_b32 v5, 1, v3")
    a(f"v_mul_u32_u24 v5, {TO}, v5")
    a(f"v_sub_u32 v5, {TO+48}, v5")
    a("v_lshrrev_b32 v6, 1, v3")
    a("v_lshl_add_u32 v5, v6, 2, v5")
    a("v_lshlrev_b32 v6, 4, v4")
    a("v_sub_u32 v5, v5, v6")
    a("v_add_u32 v5, s13, v5")
    a("v_add_u32 v7, 576, v5")
    for kp in range(17):
        va, o = (5, 16 * kp) if kp < 9 else (7, 16 * (kp - 9))
        a(f"ds_read2_b32 {vr(T+4*kp,2)}, v{va} offset0:{o+3} offset1:{o+2}")
        a(f"ds_read2_b32 {vr(T+4*kp+2,2)}, v{va} offset0:{o+1} offset1:{o}")
    a("v_lshl_add_u32 v6, v3, 5, v6")
    a(f"v_add_u32 v6, {U0-480}, v6")
    a("v_add_u32 v6, s13, v6")
    y_addr(a, 124)
    a.stamp(3)
    a("s_waitcnt lgkmcnt(0)")
    a("s_barrier")
    a.stamp(4)
    AH = NR - 1
    betas = list(range(-7, 57))
    q = []

    def rd(i):
        a(f"ds_read_b128 {vr(UR+4*(i%NR),4)}, v6 offset:{64*i}")
        q.append(("r", i))
    for i in range(AH):
        rd(i)
    started = set()
    pend = []
    for i, beta in enumerate(betas):
        pos = q.index(("r", i))
        a(f"s_waitcnt lgkmcnt({min(15, len(q)-1-pos)})")
        del q[:pos + 1]
        tiles = [A for A in range(8) if 0 <= 8 * A - beta <= 16]
        for A in tiles:
            acc = vr(AC + 4 * (A % 4), 4)
            a(f"v_mfma_f32_16x16x32_f16 {acc}, {vr(T+4*(8*A-beta),4)}, {vr(UR+4*(i%NR),4)}, {acc if A in started else '0'}")
            started.add(A)
        if i + AH < len(betas):
            rd(i + AH)
        if beta % 8 == 0 and beta >= 0:
            pend.append((beta // 8, i + 3))
        if pend and pend[0][1] <= i:
            A = pend.pop(0)[0]
            a(f"ds_write_b128 v124, {vr(AC+4*(A%4),4)} offset:{1280*A}")
            a(f"ds_write_b32 v125, v126 offset:{32*A}")
            q += [("w", A), ("f", A)]
    a.nop(8)
    a(f"ds_write_b128 v124, {vr(AC+12,4)} offset:{1280*7}")
    a(f"ds_write_b32 v125, v126 offset:{32*7}")
    a.stamp(5)
    a("s_waitcnt lgkmcnt(0)")
    a.end()


def z_wave(a):
    S2F, S3F, WN, FO, V, AC = 8, 32, 48, 64, 88, 100
    TB = ZC + 16
    a("v_lshlrev_b32 v5, 2, v4")
    a("v_sub_u32 v5, v3, v5")
    a("v_lshl_add_u32 v7, v5, 2, s13")
    a("v_lshl_add_u32 v5, v5, 3, s13")
    a(f"v_add_u32 v7, {TS3}, v7")
    a("v_mov_b32 v6, s13")
    a(f"ds_read_b32 v128, v6 offset:{TS2+128+252}")
    for D in (2, 3, 4):
        for h in range(2):
            for jj in range(2):
                a(f"ds_read_b64 {vr(S2F+8*(D-2)+4*h+2*jj,2)}, v5 offset:{TS2+8*(16*D-16-2*h-jj)}")
    for D in range(4, 8):
        o = 16 * D - 48
        a(f"ds_read2_b32 {vr(S3F+4*(D-4),2)}, v7 offset0:{o} offset1:{o-1}")
        a(f"ds_read2_b32 {vr(S3F+4*(D-4)+2,2)}, v7 offset0:{o-2} offset1:{o-3}")
    a("v_lshlrev_b32 v6, 4, v4")
    a("v_lshl_add_u32 v6, v3, 5, v6")
    a(f"v_add_u32 v6, {U0-48}, v6")
    a("v_add_u32 v6, s13, v6")
    y_addr(a, 129)
    for A in range(2):
        a(f"ds_write_b128 v129, v[124:127] offset:{1280*(8+A)}")
        a(f"ds_write_b32 v130, v131 offset:{32*A}")
    a("s_mov_b32 s8, 0x07060706")
    a("s_waitcnt lgkmcnt(0)")
    a("v_perm_b32 v128, v128, v128, s8")
    for j in range(4):
        a(f"v_and_b32 v{TB+j}, v128, v{TB+j}")
    a.stamp(3)
    if ZPRIO:
        a(f"s_setprio {ZPRIO}")
    a("s_barrier")
    a.stamp(4)
    w1 = lambda B: vr(WN + 8 * (B & 1), 4)
    w2 = lambda B: vr(WN + 8 * (B & 1) + 4, 4)

    def rdw(B):
        a(f"ds_read_b128 {w1(B)}, v6 offset:{512*B+16}")
        a(f"ds_read_b128 {w2(B)}, v6 offset:{512*B}")

    def filters(B):
        for i in range(6 if B < 4 else 4):
            w = w2(B) if i in (2, 3, 5) else w1(B)
            a(f"v_mfma_f32_16x16x32_f16 {vr(FO+4*i,4)}, {w}, {vr(ZC+4*(0,1,0,1,2,3)[i],4)}, 0")

    def cvt(B):
        for j in range(4):
            a(f"v_cvt_pk_f16_f32 v{V+2*j}, v{FO+j}, v{FO+4+j}")
            a(f"v_cvt_pk_f16_f32 v{V+2*j+1}, v{FO+8+j}, v{FO+12+j}")
        if B < 4:
            for j in range(4):
                a(f"v_cvt_pk_f16_f32 v{V+8+j}, v{FO+16+j}, v{FO+20+j}")

    started = set()

    def mm(A, x, y):
        acc = vr(AC + 4 * (A - 2), 4)
        a(f"v_mfma_f32_16x16x32_f16 {acc}, {x}, {y}, {acc if A in started else '0'}")
        started.add(A)

    rdw(0); rdw(1)
    a("s_waitcnt lgkmcnt(2)")
    filters(0)
    a.nop(6)
    cvt(0)
    for B in range(6):
        n = 0
        if B < 5:
            a(f"s_waitcnt lgkmcnt({0 if B == 0 else 2})")
            filters(B + 1)
        else:
            a.nop(2)
        for D in (2, 3, 4):
            if B + D <= 7:
                for h in range(2):
                    mm(B + D, vr(V + 4 * h, 4), vr(S2F + 8 * (D - 2) + 4 * h, 4))
                    n += D > 2
        if B < 4:
            mm(B + 4, vr(TB, 4), w1(B))
            for D in range(4, 8 - B):
                mm(B + D, vr(V + 8, 4), vr(S3F + 4 * (D - 4), 4))
            n += 5 - B
            rdw(B + 2)
            n += 2
        a.nop(8 - n)
        a(f"ds_write_b128 v129, {vr(AC+4*B,4)} offset:{1280*(10+B)}")
        a(f"ds_write_b32 v130, v131 offset:{32*(B+2)}")
        if B < 5:
            cvt(B + 1)
    a.stamp(5)
    a("s_cmp_eq_u32 s3, 4")
    a("s_cbranch_scc1 FINAL")
    a("s_waitcnt lgkmcnt(0)")
    a.end()


UL, UX = 8, 24


def cu_pro(a):
    a.lab("CU_PRO")
    a("s_sub_u32 s7, s3, 8")
    a("s_lshl_b32 s8, s101, 2")
    a("s_add_u32 s8, s8, s7")
    a("s_min_u32 s8, s8, 63")
    a(f"s_mul_i32 s8, s8, {32*1152}")
    a("s_lshl_b32 s9, s4, 7")
    a("s_add_u32 s8, s8, s9")
    a("v_lshrrev_b32 v5, 1, v2")
    a("v_mul_u32_u24 v5, 1152, v5")
    a("v_and_b32 v6, 1, v2")
    a("v_lshl_add_u32 v5, v6, 7, v5")
    a("v_add_u32 v7, s8, v5")
    a(f"s_mul_i32 s8, s7, {256*1152}")
    a("s_lshl_b32 s9, s6, 3")
    a("s_add_u32 s8, s8, s9")
    a("v_mul_u32_u24 v5, 4608, v2")
    a("v_add_u32 v5, s8, v5")
    a(f"v_add_u32 v6, {1024*1152}, v5")
    a("v_mov_b32 v59, 0")
    a(f"v_mov_b32 v57, {SYN}")
    a("v_lshl_add_u32 v56, v2, 2, v57")
    a("ds_write_b32 v56, v59")
    a("s_waitcnt lgkmcnt(0)")
    a(f"global_load_dword v60, v7, {sr(P_U,2)} {PFL}")
    a("s_barrier")
    if UWAIT:
        a("s_waitcnt vmcnt(0)")
    if env("UST", 0):
        a.stamp(6)
    for t in range(2):
        for i in range(4):
            a(f"global_load_dwordx2 {vr(UL+8*t+2*i,2)}, v{5+t}, {sr(P_U,2)} offset:{1152*i} {UFL}")
    a("s_branch CU_MAIN")


def cu_main(a):
    a.lab("CU_MAIN")
    a(f"s_load_dwordx2 s[52:53], {sr(P_DSK,2)}, s9")
    G = 128
    a("v_mov_b32 v58, 1")
    a("s_mov_b64 exec, 1")
    a("ds_add_u32 v57, v58 offset:64")
    a("s_mov_b64 exec, -1")
    gran_addr(a, 7, 138, 137)
    a("s_lshl_b32 s8, s7, 11")
    a(f"s_add_u32 s8, s8, {WS_G}")
    a("v_add_u32 v7, s8, v7")
    a("v_add_u32 v137, 8192, v7")
    a(f"v_add_u32 v138, {WS_G}, v138")
    a("s_cmp_eq_u32 s7, 3")
    a("s_cselect_b64 vcc, -1, 0")
    a("v_cndmask_b32 v137, v137, v138, vcc")
    a.stamp(7)

    def gload():
        a(f"global_load_dword v136, v59, {sr(P_DBG,2)} offset:128 sc1")
        a(f"global_load_dwordx4 {vr(G,4)}, v7, {sr(P_WS,2)} sc1")
        a(f"global_load_dwordx4 {vr(G+4,4)}, v137, {sr(P_WS,2)} sc1")
    a("v_and_b32 v56, 12, v3")
    a(f"v_add_u32 v56, {SYN}, v56")
    a("v_and_b32 v57, 3, v2")
    a("v_lshlrev_b32 v57, 2, v57")
    a(f"v_add_u32 v57, {SYN}, v57")
    a("s_lshl_b32 s8, s7, 9")
    a(f"s_add_u32 s8, s8, {CH0+U0}")
    a("v_lshl_add_u32 v58, v2, 3, s8")
    a("s_mov_b32 s10, 0x11111111")
    a("s_mov_b32 s11, 0x11111111")
    X = lambda t, ch, i: UX + 16 * t + 4 * ch + i
    M = 62
    for t in range(2):
        for i in range(4):
            a(f"s_waitcnt vmcnt({7-4*t-i})")
            r = UL + 8 * t + 2 * i
            a(f"v_lshlrev_b32 v{X(t,0,i)}, 16, v{r}")
            a(f"v_and_b32 v{X(t,1,i)}, 0xffff0000, v{r}")
            a(f"v_lshlrev_b32 v{X(t,2,i)}, 16, v{r+1}")
            a(f"v_and_b32 v{X(t,3,i)}, 0xffff0000, v{r+1}")
            if i & 1:
                for ch in range(4):
                    prev = "0" if t == 0 and i == 1 else f"v{M+ch}"
                    a(f"v_max3_f32 v{M+ch}, |v{X(t,ch,i-1)}|, |v{X(t,ch,i)}|, {prev}")
    a.stamp(1)
    for ch in range(4):
        a(f"v_max_u32_dpp v{M+ch}, v{M+ch}, v{M+ch} row_ror:4 {DPPF}")
    for ch in range(4):
        a(f"v_max_u32_dpp v61, v{M+ch}, v{M+ch} row_ror:8 row_mask:0xf bank_mask:{1<<ch:#x}")
        a.nop(2)
    a(f"v_max_u32_dpp v61, v61, v61 quad_perm:[1,0,3,2] {DPPF}")
    a.nop(2)
    a(f"v_max_u32_dpp v61, v61, v61 quad_perm:[2,3,0,1] {DPPF}")
    a("s_mov_b64 exec, s[10:11]")
    a("ds_max_u32 v56, v61")
    a("s_mov_b64 exec, -1")
    a("s_waitcnt lgkmcnt(0)")
    a("s_barrier")
    a("ds_read2_b32 v[62:63], v57 offset0:0 offset1:4")
    a("s_waitcnt lgkmcnt(0)")
    a("v_lshrrev_b32 v62, 23, v62")
    a("v_sub_u32 v62, 265, v62")
    a("v_min_i32 v62, 253, v62")
    a("v_lshlrev_b32 v64, 23, v62")
    a("v_add_u32 v62, v62, v63")
    for ch in range(4):
        a(f"v_readlane_b32 s{56+ch}, v64, {ch}")
    a("v_sub_u32 v62, 381, v62")
    C = 66
    for t in range(2):
        for ch in range(4):
            sel = "op_sel:[0,1] op_sel_hi:[1,1]" if ch & 1 else "op_sel_hi:[1,0]"
            sp = sr(56 + (ch & 2), 2)
            o = C + 6 * (ch & 1)
            a(f"v_pk_mul_f32 {vr(o,2)}, {vr(X(t,ch,0),2)}, {sp} {sel}")
            a(f"v_pk_mul_f32 {vr(o+2,2)}, {vr(X(t,ch,2),2)}, {sp} {sel}")
            a(f"v_cvt_pk_f16_f32 v{o+4}, v{o+1}, v{o}")
            a(f"v_cvt_pk_f16_f32 v{o+5}, v{o+3}, v{o+2}")
            a(f"ds_write_b64 v58, {vr(o+4,2)} offset:{CHP*ch+2048*t}")
    a.stamp(2)
    a("s_waitcnt lgkmcnt(0)")
    a("s_barrier")
    gload()
    for k in range(NPF):
        a(f"s_add_u32 s15, s7, {4*k+4}")
        pf_item(a, 15, f"E{k}")
    a("v_max_i32 v62, 0, v62")
    a("v_min_i32 v62, 254, v62")
    a("v_lshlrev_b32 v62, 23, v62")
    a("s_nop 0")
    for ch in range(4):
        a(f"v_readlane_b32 s{56+ch}, v62, {ch}")
    a("s_lshl_b32 s60, s52, 16")
    a("s_and_b32 s61, s52, 0xffff0000")
    a("s_lshl_b32 s62, s53, 16")
    a("s_and_b32 s63, s53, 0xffff0000")
    a("s_mov_b32 s12, 0")
    a(f"s_waitcnt vmcnt({NPF})")
    a("s_branch E_GCHK")
    a.lab("E_GPOLL")
    gload()
    a("s_add_u32 s12, s12, 1")
    a("s_waitcnt vmcnt(0)")
    a.lab("E_GCHK")
    a("v_lshrrev_b32 v61, 16, v136")
    a("v_xor_b32 v61, 1, v61")
    for i in range(8):
        a(f"v_bitop3_b32 v61, v61, v{G+i}, v136 bitop3:0xf6")
    a("v_and_b32 v61, 0xffff, v61")
    a("v_cmp_ne_u32 vcc, 0, v61")
    a(f"s_cmp_ge_u32 s12, {SPIN}")
    a("s_cbranch_scc1 E_GOK")
    a("s_cbranch_vccnz E_GPOLL")
    a.lab("E_GOK")
    a.stamp(3)
    a("v_and_b32 v56, 3, v2")
    a("v_mul_u32_u24 v56, 320, v56")
    a("v_lshrrev_b32 v57, 2, v2")
    a("v_lshl_add_u32 v56, v57, 4, v56")
    a("s_mul_i32 s8, s7, 1280")
    a("v_add_u32 v56, s8, v56")
    a(f"v_add_u32 v57, {2*YCH}, v56")
    a("v_and_b32 v58, 7, v2")
    a("s_lshl_b32 s8, s7, 5")
    a(f"s_add_u32 s8, s8, {CH0+FLG}")
    a("v_lshl_add_u32 v58, v58, 2, s8")
    a("v_mov_b32 v59, 0x3f803f80")
    OM, XD, OX, Y, YF = 16, 64, 80, 96, 112
    for t in range(2):
        g = G + 4 * t
        for i in range(4):
            a(f"v_and_b32 v{g+i}, 0xffff0000, v{g+i}")
            a(f"v_sub_f32 v{OM+i}, 1.0, v{g+i}")
        a(f"v_cvt_pk_bf16_f32 v{OM+4}, v{OM}, v{OM+1}")
        a(f"v_cvt_pk_bf16_f32 v{OM+5}, v{OM+2}, v{OM+3}")
        a(f"v_lshrrev_b32 v{g}, 16, v{g}")
        a(f"v_lshrrev_b32 v{g+2}, 16, v{g+2}")
        a(f"v_lshlrev_b32 v{OM}, 16, v{OM+4}")
        a(f"v_and_b32 v{OM+1}, 0xffff0000, v{OM+4}")
        a(f"v_lshlrev_b32 v{OM+2}, 16, v{OM+5}")
        a(f"v_and_b32 v{OM+3}, 0xffff0000, v{OM+5}")
        for ch in range(4):
            sel = "op_sel:[0,1] op_sel_hi:[1,1]" if ch & 1 else "op_sel_hi:[1,0]"
            for p in range(2):
                a(f"v_pk_mul_f32 {vr(XD+4*ch+2*p,2)}, {vr(X(t,ch,2*p),2)}, {sr(60+(ch&2),2)} {sel}")
                a(f"v_pk_mul_f32 {vr(OX+4*ch+2*p,2)}, {vr(X(t,ch,2*p),2)}, {vr(OM+2*p,2)}")
        a("s_mov_b32 s12, 0")
        a.lab(f"E_WAIT{t}")
        a(f"ds_read_b32 v60, v58 offset:{128*t}")
        a("s_add_u32 s12, s12, 1")
        a("s_waitcnt lgkmcnt(0)")
        a("v_cmp_eq_u32 vcc, 0, v60")
        a("s_cmp_ge_u32 s12, 0x40000")
        a(f"s_cbranch_scc1 E_RDY{t}")
        a(f"s_cbranch_vccz E_RDY{t}")
        a("s_sleep 1")
        a(f"s_branch E_WAIT{t}")
        a.lab(f"E_RDY{t}")
        a.stamp(4 + t)
        for ch in range(4):
            va, o = 56 + (ch >> 1), YCH * (ch & 1) + 5120 * t
            a(f"ds_read_b128 {vr(Y+4*ch,4)}, v{va} offset:{o}")
            a(f"ds_read_b128 {vr(YF+4*ch,4)}, v{va} offset:{o+10240}")
        for ch in range(4):
            sel = "op_sel:[0,1] op_sel_hi:[1,1]" if ch & 1 else "op_sel_hi:[1,0]"
            a(f"s_waitcnt lgkmcnt({6-2*ch})")
            for p in range(2):
                y = Y + 4 * ch + 2 * p
                a(f"v_pk_add_f32 {vr(y,2)}, {vr(y,2)}, {vr(YF+4*ch+2*p,2)}")
            for p in range(2):
                y = Y + 4 * ch + 2 * p
                a(f"v_pk_mul_f32 {vr(y,2)}, {vr(y,2)}, {sr(56+(ch&2),2)} {sel}")
            for i in range(4):
                a(f"v_cvt_pk_bf16_f32 v{Y+4*ch+i}, v{Y+4*ch+i}, v{XD+4*ch+i}")
            for i in range(4):
                a(f"v_dot2_f32_bf16 v{Y+4*ch+i}, v{Y+4*ch+i}, v59, 0")
        a.nop(1)
        for k in range(8):
            a(f"v_cvt_pk_bf16_f32 v{YF+k}, v{Y+2*k}, v{Y+2*k+1}")
        for k in range(16):
            a(f"v_dot2_f32_bf16 v{Y+k}, v{YF+(k>>1)}, v{g+(k&3)}, 0")
        for k in range(16):
            a(f"v_cvt_pk_bf16_f32 v{Y+k}, v{Y+k}, v{OX+k}")
        for i in range(4):
            for ch in range(4):
                a(f"v_dot2_f32_bf16 v{Y+4*ch+i}, v{Y+4*ch+i}, v59, 0")
        for i in range(4):
            if i == 3:
                a.nop(1)
            a(f"v_cvt_pk_bf16_f32 v{YF+2*i}, v{Y+i}, v{Y+4+i}")
            a(f"v_cvt_pk_bf16_f32 v{YF+2*i+1}, v{Y+8+i}, v{Y+12+i}")
            a(f"global_store_dwordx2 v{5+t}, {vr(YF+2*i,2)}, {sr(P_OUT,2)} offset:{1152*i}")
    if not env("UST", 0):
        a.stamp(6)
    a("s_waitcnt vmcnt(0)")
    a.end()


def finalizer(a):
    a.lab("FINAL")
    a("v_and_b32 v5, 7, v2")
    a("v_lshlrev_b32 v5, 2, v5")
    a("v_mov_b32 v6, 0")
    a("s_lshl_b32 s9, s6, 3")
    a(f"s_load_dwordx2 s[52:53], {sr(P_DSK,2)}, s9")
    a("s_mov_b32 s12, 0")
    a.lab("FN_SEL")
    a(f"global_load_dword v8, v5, {sr(P_DBG,2)} sc1")
    a(f"global_load_dword v9, v6, {sr(P_DBG,2)} offset:128 sc1")
    a("s_add_u32 s12, s12, 1")
    a("s_waitcnt vmcnt(0)")
    a("v_min_u32 v10, v8, v9")
    a("v_cmp_eq_u32 vcc, 0, v10")
    a(f"s_cmp_ge_u32 s12, {SPIN}")
    a("s_cbranch_scc1 FN_SELOK")
    a("s_cbranch_vccnz FN_SEL")
    a.lab("FN_SELOK")
    a("v_not_b32 v10, v8")
    a("v_and_b32 v10, 0x7ff, v10")
    a("v_mul_u32_u24 v11, 1152, v10")
    a("v_add_u32 v11, s9, v11")
    a(f"global_load_dwordx2 v[12:13], v11, {sr(P_U,2)}")
    a("v_and_b32 v14, 0x7f0, v10")
    a("v_add_lshl_u32 v14, v14, v10, 2")
    a("v_and_b32 v16, 0xf8, v10")
    a("v_mul_u32_u24 v16, 3, v16")
    a("v_and_b32 v17, 0xff, v10")
    a("v_add_lshl_u32 v16, v16, v17, 2")
    a("v_cmp_le_u32 vcc, 0x700, v10")
    a(f"v_add_u32 v16, {80*128+64}, v16")
    a("s_nop 0")
    a("v_cndmask_b32 v14, v14, v16, vcc")
    a(f"v_add_u32 v14, {WS_G}, v14")
    a("s_mov_b32 s12, 0")
    a.lab("FN_G")
    a(f"global_load_dword v15, v14, {sr(P_WS,2)} sc1")
    a("s_add_u32 s12, s12, 1")
    a("s_waitcnt vmcnt(0)")
    a("v_xor_b32 v16, v15, v9")
    a("v_and_b32 v16, 0xffff, v16")
    a("v_cmp_ne_u32 vcc, 0, v16")
    a(f"s_cmp_ge_u32 s12, {SPIN}")
    a("s_cbranch_scc1 FN_GOK")
    a("s_cbranch_vccnz FN_G")
    a.lab("FN_GOK")
    a("v_lshrrev_b32 v16, 8, v10")
    a("v_mul_u32_u24 v16, 1280, v16")
    a("v_and_b32 v17, 0xf0, v10")
    a("v_add_u32 v16, v16, v17")
    a("v_bfe_u32 v17, v10, 2, 2")
    a("v_mul_u32_u24 v17, 320, v17")
    a("v_add_u32 v16, v16, v17")
    a("v_and_b32 v17, 3, v10")
    a("v_lshl_add_u32 v16, v17, 2, v16")
    a(f"v_add_u32 v17, {2*YCH}, v16")
    a(f"v_add_u32 v18, {CH0+FLG+224}, v5")
    a(f"v_mov_b32 v19, {SYN}")
    a("ds_read_b128 v[36:39], v19")
    a("ds_read_b128 v[44:47], v19 offset:16")
    a("v_and_b32 v20, 0xffff0000, v8")
    a("v_not_b32 v21, v20")
    a("v_ashrrev_i32 v21, 31, v21")
    a("v_and_b32 v21, 0x7fff0000, v21")
    a("v_or_b32 v21, 0x80000000, v21")
    a("v_xor_b32 v20, v20, v21")
    sigmoid_bf16(a, 20, 21)
    a("v_and_b32 v20, 0xffff0000, v20")
    a("v_and_b32 v15, 0xffff0000, v15")
    a("v_sub_f32 v21, 1.0, v15")
    a("v_cvt_pk_bf16_f32 v21, v21, v21")
    a("v_and_b32 v21, 0xffff0000, v21")
    a("v_lshlrev_b32 v24, 16, v12")
    a("v_and_b32 v25, 0xffff0000, v12")
    a("v_lshlrev_b32 v26, 16, v13")
    a("v_and_b32 v27, 0xffff0000, v13")
    a("s_waitcnt lgkmcnt(0)")
    for c in range(36, 40):
        a(f"v_lshrrev_b32 v{c}, 23, v{c}")
        a(f"v_sub_u32 v{c}, 265, v{c}")
        a(f"v_min_i32 v{c}, 253, v{c}")
        a(f"v_add_u32 v{c}, v{c}, v{c+8}")
        a(f"v_sub_u32 v{c}, 381, v{c}")
        a(f"v_max_i32 v{c}, 0, v{c}")
        a(f"v_min_i32 v{c}, 254, v{c}")
        a(f"v_lshlrev_b32 v{c}, 23, v{c}")
    a("s_mov_b32 s12, 0")
    a.lab("FN_WAIT")
    a("ds_read_b32 v22, v18")
    a("s_add_u32 s12, s12, 1")
    a("s_waitcnt lgkmcnt(0)")
    a("v_cmp_eq_u32 vcc, 0, v22")
    a("s_cmp_ge_u32 s12, 0x40000")
    a("s_cbranch_scc1 FN_RDY")
    a("s_cbranch_vccz FN_RDY")
    a("s_sleep 1")
    a("s_branch FN_WAIT")
    a.lab("FN_RDY")
    for ch in range(4):
        va, o = 16 + (ch >> 1), YCH * (ch & 1)
        a(f"ds_read_b32 v{28+ch}, v{va} offset:{o}")
        a(f"ds_read_b32 v{32+ch}, v{va} offset:{o+10240}")
    a("s_lshl_b32 s60, s52, 16")
    a("s_and_b32 s61, s52, 0xffff0000")
    a("s_lshl_b32 s62, s53, 16")
    a("s_and_b32 s63, s53, 0xffff0000")
    a("s_mul_i32 s8, s6, 9216")
    a(f"s_add_u32 s8, s8, {WS_PART+4096}")
    a("v_lshl_add_u32 v22, v2, 4, s8")
    a("v_add_u32 v23, 4096, v22")
    a("s_waitcnt lgkmcnt(0)")

    def rb4(r):
        a(f"v_cvt_pk_bf16_f32 v40, v{r}, v{r+1}")
        a(f"v_cvt_pk_bf16_f32 v41, v{r+2}, v{r+3}")
        a(f"v_lshlrev_b32 v{r}, 16, v40")
        a(f"v_and_b32 v{r+1}, 0xffff0000, v40")
        a(f"v_lshlrev_b32 v{r+2}, 16, v41")
        a(f"v_and_b32 v{r+3}, 0xffff0000, v41")
    for ch in range(4):
        a(f"v_add_f32 v{28+ch}, v{28+ch}, v{32+ch}")
        a(f"v_mul_f32 v{28+ch}, v{28+ch}, v{36+ch}")
        a(f"v_mul_f32 v{32+ch}, s{60+ch}, v{24+ch}")
    rb4(28); rb4(32)
    for ch in range(4):
        a(f"v_add_f32 v{28+ch}, v{28+ch}, v{32+ch}")
    rb4(28)
    for ch in range(4):
        a(f"v_mul_f32 v{28+ch}, v{28+ch}, v15")
    rb4(28)
    a.stamp(6)
    P = 48
    a("s_mov_b32 s12, 0")
    a.lab("FN_P")
    for k in range(9):
        va, o = (22, 1024 * k - 4096) if k < 8 else (23, 0)
        a(f"global_load_dwordx4 {vr(P+4*k,4)}, v{va}, {sr(P_WS,2)} offset:{o} sc1")
    a("s_add_u32 s12, s12, 1")
    for k in range(9):
        a(f"s_waitcnt vmcnt({8-k})")
        if k == 0:
            a(f"v_xor_b32 v32, v{P}, v9")
        for i in range(4):
            if k or i:
                a(f"v_bitop3_b32 v32, v32, v{P+4*k+i}, v9 bitop3:0xf6")
        if k:
            a(f"v_pk_add_f32 {vr(P,2)}, {vr(P,2)}, {vr(P+4*k,2)}")
            a(f"v_pk_add_f32 {vr(P+2,2)}, {vr(P+2,2)}, {vr(P+4*k+2,2)}")
    a("v_and_b32 v32, 0xff, v32")
    a("v_cmp_ne_u32 vcc, 0, v32")
    a(f"s_cmp_ge_u32 s12, {SPIN}")
    a("s_cbranch_scc1 FN_POK")
    a("s_cbranch_vccnz FN_P")
    a.lab("FN_POK")
    a.stamp(2)
    for i in range(4):
        a(f"v_add_f32_dpp v{P+i}, v{P+i}, v{P+i} row_ror:8 {DPPF}")
    for sw in ("v_permlane16_swap_b32", "v_permlane32_swap_b32"):
        for i in range(4):
            a(f"v_mov_b32 v{P+4+i}, v{P+i}")
        for i in range(4):
            a(f"{sw} v{P+i}, v{P+4+i}")
        for i in range(4):
            a(f"v_add_f32 v{P+i}, v{P+i}, v{P+4+i}")
    rb4(P)
    for ch in range(4):
        a(f"v_mul_f32 v{P+ch}, v{P+ch}, v20")
    rb4(P)
    for ch in range(4):
        a(f"v_add_f32 v{P+ch}, v{P+ch}, v{24+ch}")
    rb4(P)
    for ch in range(4):
        a(f"v_mul_f32 v{P+ch}, v{P+ch}, v21")
    rb4(P)
    for ch in range(4):
        a(f"v_add_f32 v{P+ch}, v{P+ch}, v{28+ch}")
    a(f"v_cvt_pk_bf16_f32 v40, v{P}, v{P+1}")
    a(f"v_cvt_pk_bf16_f32 v41, v{P+2}, v{P+3}")
    a("s_barrier")
    a("s_mov_b64 exec, 0xff")
    a(f"global_store_dwordx2 v11, v[40:41], {sr(P_OUT,2)}")
    a.stamp(7)
    a.end()


def const_table(a):
    a.L.append(".p2align 7")
    a.lab("CONST_TAB")
    perm = [1, 0, 3, 2, 5, 4, 7, 6]
    for w0, lo, hi, one in ((-16, 3, 5, 0x3c00), (-16, 6, 10, 0x3c00),
                            (-16, 5, 11, 0x3c00), (-24, 12, 20, 0x3c00), (-16, 3, 4, 0xffff)):
        for lane in range(64):
            c, g = lane & 15, lane >> 4
            e = [one if lo <= c - (w0 + 8 * g + perm[k]) <= hi else 0 for k in range(8)]
            a(".long " + ", ".join(f"{e[2*p] | e[2*p+1] << 16:#x}" for p in range(4)))


def kernel(a):
    a.L.append(".p2align 8")
    a.L.append(".globl k1_kernel")
    a.L.append(".type k1_kernel,@function")
    a.lab("k1_kernel")
    a.stamp(0)
    a("s_cmp_ge_u32 s2, 256")
    a("s_cbranch_scc1 K_END")
    a("s_load_dwordx16 s[16:31], s[0:1], 0")
    a("s_load_dwordx16 s[32:47], s[0:1], 64")
    a("s_load_dwordx4 s[48:51], s[0:1], 128")
    a("v_lshrrev_b32 v1, 6, v0")
    a("v_and_b32 v2, 63, v0")
    a("v_readfirstlane_b32 s3, v1")
    a("v_and_b32 v3, 15, v2")
    a("v_lshrrev_b32 v4, 4, v2")
    a("s_and_b32 s4, s2, 7")
    a("s_lshr_b32 s5, s2, 3")
    a("s_cmp_lg_u32 s3, 0")
    a("s_cbranch_scc1 K_NOCPF")
    a("s_getpc_b64 s[8:9]")
    a("s_and_b32 s8, s8, 0xffffff00")
    a("v_and_b32 v5, 7, v2")
    a("v_lshl_add_u32 v5, s5, 3, v5")
    a("v_lshlrev_b32 v5, 7, v5")
    a("v_min_u32 v5, CODE_END-k1_kernel-4, v5")
    a("global_load_dword v167, v5, s[8:9]")
    a.lab("K_NOCPF")
    a("s_cmp_lt_u32 s2, 112")
    a("s_cbranch_scc1 K_NC")
    a("s_sub_u32 s101, s5, 14")
    a("s_mul_i32 s6, s4, 18")
    a("s_add_u32 s6, s6, s101")
    a("s_cmp_lt_u32 s3, 8")
    a("s_cbranch_scc1 CK_PRO")
    cu_pro(a)
    ck_pro(a)
    a.lab("K_NC")
    a("s_lshl_b32 s6, s2, 4")
    a("s_lshl_b32 s7, s3, 2")
    a("s_sub_u32 s7, s7, 32")
    a("s_cmp_ge_u32 s3, 8")
    a("s_cbranch_scc1 RT_PRO")
    a("s_cmp_lt_u32 s2, 72")
    a("s_cbranch_scc1 F_PRO")
    a("s_cmp_lt_u32 s3, 6")
    a("s_cbranch_scc1 HELPER")
    a("s_cmp_lt_u32 s2, 80")
    a("s_cbranch_scc1 HELPER")
    a("s_add_u32 s7, s7, 24")
    a("s_lshr_b32 s6, s6, 1")
    a(f"s_add_u32 s6, s6, {1792-640-16}")
    router_pro(a)
    ffn_pro(a)
    helper(a)
    router_main(a)
    ffn_main(a)
    ck_main(a)
    cu_main(a)
    finalizer(a)
    a.lab("W_END")
    a.end()
    stamp_out(a)
    a.lab("K_END")
    a("s_endpgm")
    a.lab("CODE_END")


def main():
    ref = open(os.path.join(HERE, NAME + ".s.ref")).read().splitlines()
    head = [l for l in ref if l.startswith(";") and "@launch" not in l and "Override" not in l and "grid=ceil" not in l]
    a = Asm()
    kernel(a)
    grp = []
    if STAMP and not AMP:
        F, H, C = "list(range(72))", "list(range(72,112))", "list(range(112,256))"
        grp = [f'; GROUPS ([("rt",list(range(112)),[8,9,10,11]),("ffn",{F},list(range(8))),("D",{C},[0,1,2,3]),("Z",{C},[5,6,7]),("fin",{C},[4]),("E",{C},[8,9,10,11])],12)']
    out = head + grp + [
        f"; @launch kernel=k1_kernel grid=(256,1,1) block=(768,1,1) lds={LDS_BYTES}",
        '.amdgcn_target "amdgcn-amd-amdhsa--gfx950"',
        ".text",
    ] + a.L + [
        '.section .rodata,"a"',
        ".p2align 6",
        ".amdhsa_kernel k1_kernel",
        "  .amdhsa_next_free_vgpr 168",
        "  .amdhsa_next_free_sgpr 102",
        "  .amdhsa_accum_offset 168",
        "  .amdhsa_group_segment_fixed_size 0",
        "  .amdhsa_kernarg_size 144",
        "  .amdhsa_user_sgpr_count 2",
        "  .amdhsa_user_sgpr_kernarg_segment_ptr 1",
        "  .amdhsa_system_sgpr_workgroup_id_x 1",
        ".end_amdhsa_kernel",
    ]
    path = sys.argv[1] if len(sys.argv) > 1 else os.path.join(HERE, NAME + ".s")
    open(path, "w").write("\n".join(out) + "\n")


if __name__ == "__main__":
    main()
```

```python
import sys, os, struct

NAME = "gated_mix__ssm_conv_s4__moe_arch_mod__prompt"
HERE = os.path.dirname(os.path.abspath(__file__))
env = lambda k, d: int(os.environ.get(k, str(d)))

AMP = os.environ.get("AMP", "")
STAMP = env("STAMP", 1 if AMP else 0)
RA = env("RA", 1)
RB = env("RB", 5)
RC = env("RC", 8)
HA = env("HA", 1)
HR0 = env("HR0", 3)
HR1 = env("HR1", 6)
CR0 = env("CR0", 6)
CDN = env("CDN", 1)
PSL = env("PSL", 4)
PW = env("PW", 0)
WIN = env("WIN", 4)
DP = env("DP", 0)
LATE = env("LATE", 2)
DE = env("DE", 2)
WIN2 = env("WIN2", 4)
WSW = env("WSW", 26)
SPF = env("SPF", 4)
NM = env("NM", 0)
HB = env("HB", 0)
UWAIT = env("UWAIT", 0)
ZPRIO = env("ZPRIO", 2)
UFL = os.environ.get("UFL", "sc1")
PFL = os.environ.get("PFL", "")
NPF = max(0, -(-(9 - CR0 + (5 if CDN else 0) - 4 - NM) // 4))
FREP = env("FREP", 1)
FSL = env("FSL", 2)
SPIN = 0x4000

WS_SEL = 256
WS_KEY = 4096
WS_G = 20480
WS_PART = 40960
WS_SIZE = 0x10000000
WS_STAMP = 4 << 20

TSP = 1056
STG2 = 57 * TSP
CH0 = 120832
CHP = 8192
TE, TO, TS2, TS3 = 0, 1216, 2336, 2848
FLG = 3200
U0 = 4096
ZT = CH0 + 4 * CHP
SYN = ZT
YCH = 20480
L_UP = 73728
XS, XSP = 147456, 1312
EX = 157952
HH, HP = 162048, 144
CAND = 163200
M3 = 163456
LT = 163460
RKL = 163520
SELL = RKL + 96
LDS_BYTES = 163840

L2E = 0x3fb8aa3b
L2E_LO = 0x32a57060
LN2 = 0x3f317218
INV2PI = 0x3e22f983

P_U, P_ARE, P_AIM, P_BRE, P_BIM, P_CRE, P_CIM, P_LDT = 16, 18, 20, 22, 24, 26, 28, 30
P_DSK, P_BX, P_WR, P_WG, P_WU, P_WD, P_GW, P_OUT = 32, 34, 36, 38, 40, 42, 44, 46
P_DBG, P_WS = 48, 50


def fbits(x):
    return struct.unpack("<I", struct.pack("<f", float(x)))[0]


def vr(i, n):
    return f"v[{i}:{i+n-1}]"


def sr(i, n):
    return f"s[{i}:{i+n-1}]"


class Asm:
    def __init__(s):
        s.L = []
        s.nl = 0

    def __call__(s, x):
        s.L.append("    " + x)

    def lab(s, x):
        s.L.append(x + ":")

    def nop(s, n):
        while n > 0:
            k = min(n, 16)
            s(f"s_nop {k-1}")
            n -= k

    def stamp(s, i):
        if STAMP:
            s(f"s_memrealtime s[{84+2*i}:{85+2*i}]")

    def end(s):
        if STAMP:
            s("s_branch STAMP_OUT")
        else:
            s("s_endpgm")


def stamp_out(a):
    if not STAMP:
        return
    a.lab("STAMP_OUT")
    a("s_mov_b64 exec, -1")
    a("s_waitcnt lgkmcnt(0)")
    if AMP:
        wg, wv, i, mult = [int(x) for x in AMP.split(",")]
        a(f"s_cmp_lg_u32 s2, {wg}")
        a("s_cbranch_scc1 K_END")
        a(f"s_cmp_lg_u32 s3, {wv}")
        a("s_cbranch_scc1 K_END")
        a(f"s_sub_u32 s100, s{84+2*i}, s84")
        a("s_min_u32 s100, s100, 4000")
        a(f"s_mul_i32 s100, s100, {mult}")
        a("s_add_u32 s100, s100, s84")
        a("s_add_u32 s100, s100, 3000")
        a.lab("AMPL")
        a("s_memrealtime s[84:85]")
        a("s_waitcnt lgkmcnt(0)")
        a("s_sub_u32 s86, s84, s100")
        a("s_cmp_lt_i32 s86, 0")
        a("s_cbranch_scc1 AMPL")
        a("s_endpgm")
        return
    a("s_lshl_b32 s100, s2, 4")
    a("s_add_u32 s100, s100, s3")
    a("s_lshl_b32 s100, s100, 6")
    a(f"s_add_u32 s100, s100, {WS_STAMP}")
    a("v_mov_b32 v1, s100")
    for i in range(8):
        a(f"v_mov_b32 v2, s{84+2*i}")
        a(f"global_store_dword v1, v2, {sr(P_WS,2)} offset:{4*i}")
    a("s_endpgm")


def srd(a, d, p, size):
    a(f"s_mov_b32 s{d}, s{p}")
    a(f"s_mov_b32 s{d+1}, s{p+1}")
    a(f"s_mov_b32 s{d+2}, {size}")
    a(f"s_mov_b32 s{d+3}, 0x20000")


DPPF = "row_mask:0xf bank_mask:0xf"


def gran_addr(a, d, d7, t):
    a(f"v_lshlrev_b32 v{t}, 4, v2")
    a(f"v_and_b32 v{d}, 0x3c0, v{t}")
    a(f"v_add_u32 v{d}, v{d}, v{t}")
    a(f"v_and_b32 v{d7}, 0x3e0, v{t}")
    a(f"v_mul_u32_u24 v{d7}, 3, v{d7}")
    a(f"v_add_u32 v{d7}, v{d7}, v{t}")
    a(f"v_add_u32 v{d7}, {80*128+64}, v{d7}")


def sigmoid_bf16(a, x, t):
    a(f"v_mul_f32 v{t}, 0xbfb8aa3b, v{x}")
    a(f"v_exp_f32 v{t}, v{t}")
    a.nop(1)
    a(f"v_add_f32 v{t}, 1.0, v{t}")
    a(f"v_rcp_f32 v{t}, v{t}")
    a.nop(1)
    a(f"v_cvt_pk_bf16_f32 v{x}, v{t}, v{t}")


RX, RW, RG = 16, 34, 52


def router_pro(a):
    a.lab("RT_PRO")
    a("s_add_u32 s6, s6, s7")
    a("v_add_u32 v5, s6, v4")
    a("v_lshlrev_b32 v6, 4, v3")
    a("v_lshlrev_b32 v7, 3, v3")
    a("v_mul_u32_u24 v9, 1152, v5")
    a("v_add_u32 v8, v9, v6")
    a("v_add_u32 v9, v9, v7")
    a("v_mov_b32 v10, 0")
    a("v_lshlrev_b32 v11, 2, v2")
    a(f"v_add_u32 v11, {RKL}, v11")
    a("ds_write_b32 v11, v10")
    a("s_waitcnt lgkmcnt(0)")
    a(f"s_load_dword s12, {sr(P_WS,2)}, 0")
    for base, p, va, vb in ((RW, P_WR, 6, 7), (RX, P_U, 8, 9), (RG, P_GW, 6, 7)):
        for i in range(4):
            a(f"global_load_dwordx4 {vr(base+4*i,4)}, v{va}, {sr(p,2)} offset:{256*i}")
        a(f"global_load_dwordx2 {vr(base+16,2)}, v{vb}, {sr(p,2)} offset:1024")
    a("s_barrier")
    a("s_branch RT_MAIN")


def row_sum(a, v):
    for k in (8, 4, 2, 1):
        a.nop(2)
        a(f"v_add_f32_dpp v{v}, v{v}, v{v} row_ror:{k} {DPPF}")


def publish(a, off, lab):
    a("v_or_b32 v12, 1, v12")
    a("s_mov_b64 exec, s[10:11]")
    a(f"ds_write_b32 v13, v12 offset:{off}")
    a("s_mov_b64 exec, -1")
    a("s_cmp_lg_u32 s7, 0")
    a(f"s_cbranch_scc1 {lab}_X")
    a("s_mov_b32 s9, 0")
    a.lab(lab)
    a(f"ds_read_b32 v12, v14 offset:{off}")
    a("s_add_u32 s9, s9, 1")
    a("s_waitcnt lgkmcnt(0)")
    a("v_cmp_eq_u32 vcc, 0, v12")
    a("s_cmp_ge_u32 s9, 0x40000")
    a(f"s_cbranch_scc1 {lab}_S")
    a(f"s_cbranch_vccnz {lab}")
    a.lab(lab + "_S")
    a("v_bfi_b32 v12, s8, v11, v12")
    a("s_mov_b64 exec, 0xffffff")
    a(f"global_store_dword v5, v12, {sr(P_WS,2)} sc1")
    a("s_mov_b64 exec, -1")
    a.lab(lab + "_X")


def router_main(a):
    a.lab("RT_MAIN")
    a("s_lshl_b32 s6, s2, 7")
    a(f"s_add_u32 s6, s6, {WS_KEY}")
    a("s_cmp_lt_u32 s2, 80")
    a("s_cselect_b32 s8, 15, 23")
    a("v_min_u32 v14, s8, v2")
    a("v_lshl_add_u32 v5, v14, 2, s6")
    a(f"s_mov_b32 s8, {RKL}")
    a("v_lshl_add_u32 v14, v14, 2, s8")
    a("v_add_u32 v13, s7, v4")
    a("v_lshl_add_u32 v13, v13, 2, s8")
    a("s_mov_b32 s8, 0xffff")
    a("s_mov_b32 s10, 0x00010001")
    a("s_mov_b32 s11, 0x00010001")
    a("v_mov_b32 v15, 0x3f803f80")
    a(f"v_mov_b32 v12, {M3}")
    a("s_waitcnt lgkmcnt(0)")
    a("s_add_u32 s12, s12, 1")
    a("v_mov_b32 v11, s12")
    a("ds_write_b64 v12, v[10:11]")
    a("s_waitcnt vmcnt(5)")
    a.stamp(1)
    a(f"v_dot2_f32_bf16 v12, v{RX}, v{RW}, 0")
    for i in range(1, 18):
        a(f"v_dot2_f32_bf16 v12, v{RX+i}, v{RW+i}, v12")
    a.nop(1)
    row_sum(a, 12)
    a("v_cvt_pk_bf16_f32 v12, v12, v12")
    a("v_ashrrev_i32 v9, 31, v12")
    a("v_or_b32 v9, 0x80000000, v9")
    a("v_xor_b32 v12, v12, v9")
    a("s_waitcnt vmcnt(0)")
    publish(a, 0, "RT_PK")
    a.stamp(2)
    a("s_barrier")
    a("s_or_b32 s9, s2, s7")
    a("s_cmp_lg_u32 s9, 0")
    a("s_cbranch_scc1 RT_NOT")
    a("v_mov_b32 v8, v11")
    a("v_mov_b32 v9, 1")
    a(f"global_store_dwordx2 v10, v[8:9], {sr(P_DBG,2)} sc1")
    a.lab("RT_NOT")
    T = 70
    for b in range(3):
        for i in range(6):
            k = 6 * b + i
            a(f"v_and_b32 v{RW+k}, 0xffff, v{RG+k}")
            a(f"v_and_b32 v{RG+k}, 0xffff0000, v{RG+k}")
        for i in range(6):
            k = 6 * b + i
            a(f"v_dot2_f32_bf16 v{T+2*i}, v{RX+k}, v{RW+k}, 0")
            a(f"v_dot2_f32_bf16 v{T+2*i+1}, v{RX+k}, v{RG+k}, 0")
        a.nop(1)
        for i in range(6):
            a(f"v_cvt_pk_bf16_f32 v{T+2*i}, v{T+2*i}, v{T+2*i+1}")
        for i in range(6):
            a(f"v_dot2_f32_bf16 v12, v{T+2*i}, v15, {'0' if b == 0 and i == 0 else 'v12'}")
    a(f"v_add_u32 v5, {WS_G-WS_KEY}, v5")
    row_sum(a, 12)
    a("v_cvt_pk_bf16_f32 v12, v12, v12")
    a("v_and_b32 v12, 0xffff0000, v12")
    sigmoid_bf16(a, 12, 9)
    publish(a, 128, "RT_PG")
    a.stamp(3)
    a("s_cmp_ge_u32 s2, 80")
    a("s_cbranch_scc1 W_END")
    a("s_cmp_ge_u32 s3, 10")
    a("s_cbranch_scc1 W_END")
    a("s_cmp_ge_u32 s2, 72")
    a("s_cbranch_scc1 RT_SELP")
    a("s_cmp_eq_u32 s3, 9")
    a("s_cbranch_scc1 RT_CTL")
    a("s_mul_i32 s6, s4, 9")
    a("s_add_u32 s6, s6, s5")
    a("v_mov_b32 v14, v11")
    down_addr(a)
    for i in range(8):
        if i >= WIN:
            a(f"s_waitcnt vmcnt({WIN-1})")
        dload(a, i)
    tail_addr(a)
    a("s_setprio 1")
    a("s_waitcnt vmcnt(0)")
    down_perm(a)
    a("s_barrier")
    a("s_barrier")
    a("s_branch F_H")
    a.lab("RT_CTL")
    srd(a, SX, P_U, 2359296)
    a("v_lshlrev_b32 v19, 4, v2")
    a("v_lshlrev_b32 v20, 2, v2")
    sel_poll(a, 11, "C")
    a.stamp(4)
    a("s_and_b32 s9, vcc_lo, 0xff")
    a("s_cmp_eq_u32 s9, 0xff")
    a("s_cselect_b32 s9, 0, 8")
    a("v_not_b32 v8, v8")
    a("v_and_b32 v8, 0x7ff, v8")
    a("v_mul_u32_u24 v8, 1152, v8")
    a(f"s_mov_b32 m0, {XS}")
    for i in range(8):
        a(f"v_readlane_b32 s{76+i}, v8, s9")
        a("s_add_u32 s9, s9, 1")
    for i in range(8):
        a(f"buffer_load_dwordx4 v19, {sr(SX,4)}, s{76+i} offen lds")
        a(f"buffer_load_dword v20, {sr(SX,4)}, s{76+i} offen offset:1024 lds")
        a(f"s_add_u32 m0, m0, {XSP}")
        a("s_nop 0")
    a("s_waitcnt vmcnt(0)")
    a.stamp(5)
    a("s_barrier")
    a.end()
    a.lab("RT_SELP")
    a("s_cmp_eq_u32 s3, 9")
    a("s_cbranch_scc1 W_END")
    a("v_and_b32 v18, 7, v2")
    a("v_lshlrev_b32 v19, 2, v18")
    a(f"v_add_u32 v19, {SELL}, v19")
    a("s_lshl_b32 s8, s4, 8")
    a("v_lshl_add_u32 v18, v18, 3, s8")
    a("v_mov_b32 v21, v11")
    a("s_setprio 2")
    a("s_barrier")
    a("s_mov_b32 s9, 0")
    a.lab("RT_SEL")
    a("ds_read_b32 v20, v19")
    a("s_add_u32 s9, s9, 1")
    a("s_waitcnt lgkmcnt(0)")
    a("v_cmp_eq_u32 vcc, 0, v20")
    a("s_cmp_ge_u32 s9, 0x40000")
    a("s_cbranch_scc1 RT_SELS")
    a("s_cbranch_vccnz RT_SEL")
    a.lab("RT_SELS")
    a("s_mov_b64 exec, 0xff")
    a(f"global_store_dwordx2 v18, v[20:21], {sr(P_WS,2)} offset:{WS_SEL}")
    a(f"global_store_dwordx2 v18, v[20:21], {sr(P_WS,2)} offset:{WS_SEL+128} sc1")
    a.stamp(4)
    a("s_cmp_lg_u32 s2, 72")
    a("s_cbranch_scc1 W_END")
    a(f"global_store_dword v10, v11, {sr(P_WS,2)} sc1")
    a.end()


def sel_poll(a, vtag, lab):
    a("v_and_b32 v6, 8, v2")
    a("v_lshlrev_b32 v6, 3, v6")
    a("v_lshl_add_u32 v6, v3, 3, v6")
    a("s_lshl_b32 s9, s4, 8")
    a("v_add_u32 v6, s9, v6")
    a("s_mov_b32 s12, 0")
    a.lab("SP_" + lab)
    a(f"global_load_dwordx2 v[8:9], v6, {sr(P_WS,2)} offset:{WS_SEL} sc1")
    a("s_add_u32 s12, s12, 1")
    a("s_waitcnt vmcnt(0)")
    a(f"v_cmp_eq_u32 vcc, v9, v{vtag}")
    a(f"s_cmp_ge_u32 s12, {SPIN}")
    a(f"s_cbranch_scc1 SPX_{lab}")
    a("s_and_b32 s9, vcc_lo, 0xff")
    a("s_cmp_eq_u32 s9, 0xff")
    a(f"s_cbranch_scc1 SPX_{lab}")
    a("s_and_b32 s9, vcc_lo, 0xff00")
    a("s_cmp_eq_u32 s9, 0xff00")
    a(f"s_cbranch_scc1 SPX_{lab}")
    a(f"s_sleep {env('CSL', 2)}")
    a("s_branch SP_" + lab)
    a.lab("SPX_" + lab)


def helper(a):
    a.lab("HELPER")
    n = (HR1 - HR0) * 18
    a("s_lshl_b32 s6, s3, 2")
    a("s_add_u32 s6, s6, s5")
    a(f"s_sub_u32 s6, s6, {10-SPF}")
    a("v_mul_u32_u24 v5, 9216, v2")
    a("s_mul_i32 s7, s4, 1152")
    a("v_add_u32 v5, s7, v5")
    a("s_waitcnt lgkmcnt(0)")
    a("s_barrier")
    a("s_cmp_lt_u32 s2, 80")
    a("s_cbranch_scc1 SEL_MAIN")
    a("s_cmp_ge_u32 s3, 4")
    a("s_cbranch_scc1 W_END")
    a("s_barrier")
    a.lab("HP_LOOP")
    a(f"s_cmp_ge_u32 s6, {n}")
    a("s_cbranch_scc1 W_END")
    pf_gu(a, 6, HR0, 5, 6)
    a("s_add_u32 s6, s6, 16")
    a(f"s_waitcnt vmcnt({env('HW', 0)})")
    a("s_branch HP_LOOP")


def pf_gu(a, sq, r0, vbase, vt):
    a(f"s_mul_i32 s8, s{sq}, 7282")
    a("s_lshr_b32 s8, s8, 16")
    a("s_mul_i32 s9, s8, 9")
    a(f"s_sub_u32 s9, s{sq}, s9")
    a("s_lshl_b32 s9, s9, 7")
    a("s_bitcmp1_b32 s8, 0")
    a(f"s_cselect_b32 s12, s{P_WU}, s{P_WG}")
    a(f"s_cselect_b32 s13, s{P_WU+1}, s{P_WG+1}")
    a("s_lshr_b32 s8, s8, 1")
    a(f"s_add_u32 s8, s8, {r0}")
    a(f"s_mul_i32 s8, s8, {64*9216}")
    a("s_add_u32 s8, s8, s9")
    a(f"v_add_u32 v{vt}, s8, v{vbase}")
    a(f"global_load_dword v{vt+1}, v{vt}, s[12:13] {PFL}")


SG, SU, SD, SX, SDB, SW = 52, 56, 60, 64, 68, 72


def ffn_round(a, h):
    i = h >> 1
    a(f"s_add_u32 m0, s15, {8192*i+L_UP*(h&1)}")
    a(f"s_add_u32 s8, s14, {64*9216*i}")
    a(f"buffer_load_dwordx4 v5, {sr(SU if h & 1 else SG,4)}, s8 offen lds")


def ffn_pro(a):
    a.lab("F_PRO")
    a("s_mul_i32 s6, s4, 9")
    a("s_add_u32 s6, s6, s5")
    a("v_lshrrev_b32 v6, 3, v2")
    a("v_and_b32 v7, 4, v6")
    a("v_add_u32 v7, v6, v7")
    a("v_mul_u32_u24 v5, 9216, v7")
    a("v_and_b32 v7, 6, v6")
    a("v_xor_b32 v7, v7, v2")
    a("v_and_b32 v7, 7, v7")
    a("v_lshl_add_u32 v5, v7, 4, v5")
    a("s_and_b32 s8, s3, 1")
    a("s_lshr_b32 s9, s3, 1")
    a("s_lshl_b32 s9, s9, 2")
    a("s_add_u32 s8, s8, s9")
    a(f"s_mul_i32 s14, s8, {4*9216}")
    a("s_lshl_b32 s8, s6, 7")
    a("s_add_u32 s14, s14, s8")
    a("s_lshl_b32 s15, s3, 10")
    a(f"s_mov_b32 s{SG+2}, 5308416")
    a(f"s_mov_b32 s{SG+3}, 0x20000")
    a(f"s_mov_b32 s{SU+2}, 5308416")
    a(f"s_mov_b32 s{SU+3}, 0x20000")
    a("s_waitcnt lgkmcnt(0)")
    a(f"s_mov_b64 {sr(SG,2)}, {sr(P_WG,2)}")
    a(f"s_mov_b64 {sr(SU,2)}, {sr(P_WU,2)}")
    a("s_barrier")
    a("s_branch F_MAIN")


def win_row(a, skey, srank):
    a(f"s_lshl_b32 s9, s{srank}, 2")
    a(f"v_mov_b32 v22, s{skey}")
    a("v_add_u32 v23, s9, v21")
    a(f"ds_write_b32 v23, v22 offset:{SELL-M3}")
    a(f"s_and_b32 s8, s{skey}, 0x7ff")
    a("s_sub_u32 s8, 2047, s8")
    a("s_mul_i32 s8, s8, 1152")
    a("v_add_u32 v23, s8, v19")
    a(f"global_load_dword v22, v23, {sr(P_U,2)}")


DL, DA = 96, 128


def dload(a, i):
    a(f"buffer_load_dwordx4 {vr(DL+4*i,4)}, v17, {sr(SD,4)}, s{74+(i>>2)} offen offset:{1152*(i&3)}")


def down_addr(a):
    a("v_lshrrev_b32 v17, 3, v2")
    a("v_mul_u32_u24 v17, 9216, v17")
    a("v_and_b32 v7, 7, v2")
    a("v_lshl_add_u32 v17, v7, 4, v17")
    a("s_mul_i32 s74, s6, 73728")
    a("s_lshl_b32 s9, s3, 7")
    a("s_add_u32 s74, s74, s9")
    a("s_add_u32 s75, s74, 4608")
    srd(a, SD, P_WD, 5308416)


def tail_addr(a):
    a(f"v_mul_u32_u24 v11, {HP}, v7")
    a(f"v_add_u32 v11, {HH}, v11")
    a("v_lshrrev_b32 v12, 3, v3")
    a("v_lshl_add_u32 v13, v4, 1, v12")
    a("v_lshl_add_u32 v13, v13, 4, v11")
    a("v_and_b32 v15, 1, v4")
    a("v_lshlrev_b32 v15, 2, v15")
    a("v_add_u32 v15, v15, v12")
    a("v_lshrrev_b32 v16, 1, v4")
    a("v_lshl_add_u32 v15, v15, 1, v16")
    a("v_mul_u32_u24 v15, 9216, v15")
    a("v_lshl_add_u32 v15, v7, 4, v15")
    a(f"s_mul_i32 s8, s3, {16*9216}")
    a("s_lshl_b32 s9, s6, 7")
    a("s_add_u32 s8, s8, s9")
    a(f"s_add_u32 s8, s8, {WS_PART}")
    a("v_add_u32 v15, s8, v15")
    a("v_add_u32 v16, 36864, v15")


def down_perm(a):
    a("s_mov_b32 s76, 0x05040100")
    a("s_mov_b32 s77, 0x07060302")
    for e in range(8):
        for p in range(4):
            a(f"v_perm_b32 v{DA+4*e+p}, v{DL+8*p+4+(e>>1)}, v{DL+8*p+(e>>1)}, s{76+(e&1)}")


def ffn_main(a):
    a.lab("F_MAIN")
    ops = [("H", h) for h in range(DP)] + [("D", i) for i in range(8)] + [("H", h) for h in range(DP, 18)]
    NG = 18 if DP == 18 else 26

    def issue(n):
        if ops[n][0] == "H":
            ffn_round(a, ops[n][1])
        else:
            dload(a, ops[n][1])
    down_addr(a)
    for i in range(RA):
        issue(i)
    a("s_and_b32 s12, s3, 3")
    a("s_lshr_b32 s13, s3, 2")
    a("v_and_b32 v18, 1, v4")
    a("v_bfe_u32 v6, v2, 2, 2")
    a("v_lshl_add_u32 v18, v18, 2, v6")
    a("v_lshrrev_b32 v6, 1, v18")
    a("v_xor_b32 v6, s12, v6")
    a("v_lshlrev_b32 v18, 7, v18")
    a("v_lshl_add_u32 v18, v6, 5, v18")
    a("v_and_b32 v6, 3, v2")
    a("v_lshl_add_u32 v18, v6, 3, v18")
    a("v_lshrrev_b32 v6, 1, v4")
    a("v_lshl_add_u32 v18, v6, 11, v18")
    a("s_lshl_b32 s8, s13, 12")
    a("v_add_u32 v18, s8, v18")
    a(f"v_add_u32 v6, {L_UP}, v18")
    a("v_add_u32 v0, 40960, v18")
    a("v_add_u32 v1, 40960, v6")
    a(f"v_mul_u32_u24 v8, {XSP}, v7")
    a("v_lshl_add_u32 v8, v4, 4, v8")
    a("s_lshl_b32 s8, s13, 6")
    a(f"s_add_u32 s8, s8, {XS}")
    a("v_add_u32 v8, s8, v8")
    a("s_lshl_b32 s8, s3, 9")
    a(f"s_add_u32 s8, s8, {EX}")
    a("v_lshl_add_u32 v9, v2, 3, s8")
    a("s_xor_b32 s8, s3, 4")
    a("s_lshl_b32 s8, s8, 9")
    a(f"s_add_u32 s8, s8, {EX}")
    a("v_lshl_add_u32 v10, v2, 3, s8")
    tail_addr(a)
    a("v_lshl_add_u32 v12, v4, 2, v12")
    a("s_lshl_b32 s8, s12, 4")
    a("s_lshl_b32 s9, s13, 1")
    a("s_add_u32 s8, s8, s9")
    a("v_add_u32 v12, s8, v12")
    a("v_lshl_add_u32 v11, v12, 1, v11")
    a(f"v_mov_b32 v21, {M3}")
    a("v_mov_b32 v22, 1")
    a("s_mov_b32 s10, 0xff00ff00")
    a("s_mov_b32 s11, 0xff00ff00")
    a("s_barrier")
    a("ds_read_b32 v14, v21 offset:4")
    AG, XB, AC = 24, DL, 160
    for i in range(RA, NG):
        w = WIN if i < WSW else WIN2
        if i - RA >= w:
            a(f"s_waitcnt vmcnt({w-1})")
        issue(i)
        if i == DP + 8 + w:
            down_perm(a)
        if env("FST", 0):
            if i in (5, 9, 12, 15, 18, 21, 25):
                a.stamp(1 + (5, 9, 12, 15, 18, 21, 25).index(i))
        elif i == 13:
            a.stamp(1)
    if env("FST", 0):
        a.stamp = lambda i: None
    a.stamp(2)

    def rda(i):
        for m in range(2):
            va, o = ((18, 6)[m], 8192 * i) if i < 5 else (m, 8192 * (i - 5))
            for hf in range(2):
                a(f"ds_read_b64_tr_b16 {vr(AG+8*i+4*m+2*hf,2)}, v{va} offset:{o+1024*hf}")

    def rdx(i):
        a(f"ds_read_b128 {vr(XB+4*(i%8),4)}, v8 offset:{128*i}")
    NE = 9 - LATE
    a(f"s_waitcnt vmcnt({2*LATE})")
    a("s_mov_b64 exec, 1")
    a(f"ds_add_u32 v21, v22 offset:{SELL-M3}")
    a("s_mov_b64 exec, -1")
    a("s_mov_b32 s9, 0")
    a.lab("F_LAND")
    a(f"ds_read_b32 v22, v21 offset:{SELL-M3}")
    a("s_add_u32 s9, s9, 1")
    a("s_waitcnt lgkmcnt(0)")
    a("v_cmp_ne_u32 vcc, 8, v22")
    a("s_cmp_ge_u32 s9, 0x40000")
    a("s_cbranch_scc1 F_LANDED")
    a("s_cbranch_vccnz F_LAND")
    a.lab("F_LANDED")
    for i in range(NE):
        rda(i)
    if NG == 18:
        XB = DA
        for i in range(DE):
            dload(a, i)
    a(f"s_waitcnt vmcnt({DE if NG == 18 else 0})")
    a.stamp(3)
    a("s_barrier")
    a.stamp(4)
    q = []
    for i in range(8):
        rdx(i)
        q.append(("x", i))
    for i in range(9):
        need = ("a", i) if i >= NE else ("x", i)
        if i == 8 and ("x", 8) in q and q.index(("x", 8)) > (q.index(need) if need in q else -1):
            need = ("x", 8)
        if need in q:
            pos = len(q) - 1 - q[::-1].index(need)
            a(f"s_waitcnt lgkmcnt({min(15, len(q)-1-pos)})")
            del q[:pos + 1]
        for m in range(2):
            c = "0" if i == 0 else vr(AC+4*m, 4)
            a(f"v_mfma_f32_16x16x32_bf16 {vr(AC+4*m,4)}, {vr(AG+8*i+4*m,4)}, {vr(XB+4*(i%8),4)}, {c}")
        if NG == 18 and i + DE < 8:
            dload(a, i + DE)
        if i == 1:
            rdx(8)
            q.append(("x", 8))
        if i >= 1 and NE + i - 1 < 9:
            rda(NE + i - 1)
            q += [("a", NE + i - 1)] * 4
    a("s_cmp_eq_u32 s13, 0")
    a("s_cselect_b64 vcc, -1, 0")
    a.nop(6)
    a(f"v_cndmask_b32 v24, v{AC}, v{AC+1}, s[10:11]")
    a(f"v_cndmask_b32 v25, v{AC+2}, v{AC+3}, s[10:11]")
    a(f"v_cndmask_b32 v26, v{AC+4}, v{AC+5}, s[10:11]")
    a(f"v_cndmask_b32 v27, v{AC+6}, v{AC+7}, s[10:11]")
    a("v_cndmask_b32 v28, v24, v25, vcc")
    a("v_cndmask_b32 v29, v26, v27, vcc")
    a("ds_write_b64 v9, v[28:29]")
    a("v_cndmask_b32 v24, v25, v24, vcc")
    a("v_cndmask_b32 v25, v27, v26, vcc")
    a("s_waitcnt lgkmcnt(0)")
    a("s_barrier")
    a("ds_read_b64 v[28:29], v10")
    a("s_waitcnt lgkmcnt(0)")
    a("v_add_f32 v24, v24, v28")
    a("v_add_f32 v25, v25, v29")
    a("v_cvt_pk_bf16_f32 v24, v24, v25")
    a("v_lshlrev_b32 v25, 16, v24")
    a("v_mul_f32 v26, 0xbfb8aa3b, v25")
    a("v_exp_f32 v26, v26")
    a("v_and_b32 v24, 0xffff0000, v24")
    a("v_add_f32 v26, 1.0, v26")
    a("v_rcp_f32 v26, v26")
    a.nop(1)
    a("v_mul_f32 v25, v25, v26")
    a("v_cvt_pk_bf16_f32 v25, v25, v25")
    a("v_and_b32 v25, 0xffff0000, v25")
    a("v_mul_f32 v24, v24, v25")
    a("v_cvt_pk_bf16_f32 v24, v24, v24")
    a("ds_write_b16 v11, v24")
    if NG == 18:
        a("s_waitcnt vmcnt(0)")
        down_perm(a)
    a("s_waitcnt lgkmcnt(0)")
    a.lab("F_H")
    a("s_movk_i32 s78, 0xff")
    a("s_barrier")
    a.stamp(5)
    a("ds_read_b128 v[24:27], v13")
    a("s_waitcnt lgkmcnt(0)")
    DD = 32
    for e in (0, 4, 1, 5, 2, 6, 3, 7):
        a(f"v_mfma_f32_16x16x32_bf16 {vr(DD+4*e,4)}, {vr(DA+4*e,4)}, v[24:27], 0")
    a.nop(2)
    for e in range(4):
        for j in range(4):
            a(f"v_permlane32_swap_b32 v{DD+4*e+j}, v{DD+16+4*e+j}")
    S = 64
    for j in range(4):
        for e in range(4):
            x, y, d = DD + 4 * e + j, DD + 16 + 4 * e + j, S + 4 * (j >> 1) + e
            if j & 1:
                a(f"v_add_f32_dpp v{d}, v{x}, v{y} row_ror:8 row_mask:0xf bank_mask:0xc")
            else:
                a(f"v_add_f32_dpp v{d}, v{y}, v{x} row_ror:8 row_mask:0xf bank_mask:0x3")
    for i in range(8):
        a(f"v_bfi_b32 v{S+i}, s78, v14, v{S+i}")
        if i == 3:
            a(f"global_store_dwordx4 v15, {vr(S,4)}, {sr(P_WS,2)} sc1")
    a(f"global_store_dwordx4 v16, {vr(S+4,4)}, {sr(P_WS,2)} sc1")
    a.stamp(6)
    a.end()
    if env("FST", 0):
        del a.stamp


def selector(a):
    a.lab("SEL_MAIN")
    a("v_min_u32 v19, 8, v2")
    a("v_lshlrev_b32 v19, 7, v19")
    a("v_lshlrev_b32 v20, 2, v2")
    PA, K0, IX, CS, CR, T0, T1, L0, C0 = 24, 28, 32, 25, 26, 36, 37, 40, 44
    gran_addr(a, PA, T0, T1)
    a("s_lshl_b32 s8, s3, 11")
    a(f"v_add_u32 v{PA}, s8, v{PA}")
    a("s_cmp_eq_u32 s3, 7")
    a("s_cselect_b64 vcc, -1, 0")
    a(f"v_cndmask_b32 v{PA}, v{PA}, v{T0}, vcc")
    a(f"v_add_u32 v{PA}, {WS_KEY}, v{PA}")
    a("s_lshl_b32 s8, s3, 8")
    a("s_sub_u32 s8, 0xfff, s8")
    a(f"v_sub_u32 v{IX}, s8, v20")
    for i in range(1, 4):
        a(f"v_subrev_u32 v{IX+i}, {i}, v{IX}")
    a(f"v_mov_b32 v21, {M3}")
    a("s_lshl_b32 s8, s3, 5")
    a(f"s_add_u32 s8, s8, {CAND}")
    a(f"v_lshl_add_u32 v{CS}, v4, 3, s8")
    a(f"v_add_u32 v{CR}, {CAND}, v20")
    a("s_mov_b32 s76, 0xffff")
    a("s_mov_b32 s10, 0x00010001")
    a("s_mov_b32 s11, 0x00010001")
    a("s_barrier")
    a("ds_read_b32 v14, v21 offset:4")
    if SPF:
        a("s_min_u32 s6, s3, %d" % (SPF - 1))
        pf_gu(a, 6, HR0, 5, 6)
    a.stamp(1)
    a("s_mov_b32 s7, 0")
    a("s_waitcnt lgkmcnt(0)")
    if PW >= 0:
        a(f"s_waitcnt vmcnt({PW})")
    a.lab("F_POLL")
    a(f"global_load_dwordx4 {vr(K0,4)}, v{PA}, {sr(P_WS,2)} sc1")
    a("s_add_u32 s7, s7, 1")
    a("s_waitcnt vmcnt(0)")
    a(f"v_xor_b32 v{T0}, v{K0}, v14")
    for i in range(1, 4):
        a(f"v_bitop3_b32 v{T0}, v{T0}, v{K0+i}, v14 bitop3:0xf6")
    a(f"v_and_b32 v{T0}, 0xffff, v{T0}")
    a(f"v_cmp_ne_u32 vcc, 0, v{T0}")
    a(f"s_cmp_ge_u32 s7, {SPIN}")
    a("s_cbranch_scc1 F_GOT")
    a("s_cbranch_vccz F_GOT")
    a("s_mov_b64 exec, vcc")
    if PSL:
        a(f"s_sleep {PSL}")
    a("s_branch F_POLL")
    a.lab("F_GOT")
    a("s_mov_b64 exec, -1")
    a.stamp(2)
    for i in range(4):
        a(f"v_bfi_b32 v{K0+i}, s76, v{IX+i}, v{K0+i}")
    a(f"v_max_u32 v{T0}, v{K0}, v{K0+1}")
    a(f"v_min_u32 v{T1}, v{K0}, v{K0+1}")
    a(f"v_max3_u32 v{L0}, v{T0}, v{K0+2}, v{K0+3}")
    a(f"v_med3_u32 v{L0+1}, v{T0}, v{K0+2}, v{K0+3}")
    a(f"v_med3_u32 v{L0+2}, v{T1}, v{K0+2}, v{K0+3}")
    a(f"v_max_u32 v{L0+1}, v{L0+1}, v{T1}")
    a(f"v_min_u32 v{L0+2}, v{L0+2}, v{T0}")
    for r in range(3):
        c = C0 + r
        a(f"v_max_u32_dpp v{c}, v{L0}, v{L0} row_ror:8 {DPPF}")
        for k in (4, 2, 1):
            a.nop(2)
            a(f"v_max_u32_dpp v{c}, v{c}, v{c} row_ror:{k} {DPPF}")
        if r < 2:
            a(f"v_cmp_eq_u32 vcc, v{L0}, v{c}")
            a.nop(2)
            a(f"v_cndmask_b32 v{L0}, v{L0}, v{L0+1}, vcc")
            if r == 0:
                a(f"v_cndmask_b32 v{L0+1}, v{L0+1}, v{L0+2}, vcc")
                a.nop(1)
            else:
                a.nop(2)
    a("s_mov_b64 exec, s[10:11]")
    a(f"ds_write_b64 v{CS}, {vr(C0,2)}")
    a(f"ds_max_u32 v21, v{C0+2}")
    a("s_mov_b64 exec, -1")
    cand = [77, 78, 79, 80, 81, 82, 83, 100]
    for i in range(8):
        a(f"v_readlane_b32 s{cand[i]}, v{C0+(i&1)}, {16*(i>>1)}")
    a("s_waitcnt lgkmcnt(0)")
    a("s_barrier")
    a.stamp(7)
    a(f"ds_read_b32 v{T0}, v{CR}")
    a(f"ds_read_b32 v{T1}, v21")
    a("s_waitcnt lgkmcnt(0)")
    a(f"v_cmp_gt_u32 vcc, v{T0}, v{T1}")
    pairs = [18, 20, 22, 24, 26, 28, 30, 34]
    for i in range(8):
        a(f"v_cmp_lt_u32 {sr(pairs[i],2)}, s{cand[i]}, v{T0}")
    a("s_bcnt1_i32_b64 s8, vcc")
    a("s_cmp_lt_u32 s8, 8")
    a("s_cbranch_scc1 F_SLOW")
    for i in range(8):
        a(f"s_bcnt1_i32_b64 s7, {sr(pairs[i],2)}")
        a("s_cmp_lt_u32 s7, 8")
        a(f"s_cbranch_scc0 F_NW{i}")
        win_row(a, cand[i], 7)
        a.lab(f"F_NW{i}")
    a.lab("F_REST")
    a.stamp(3)
    a.end()
    a.lab("F_SLOW")
    KY, TK = 28, 60
    gran_addr(a, 24, 26, 27)
    a(f"v_add_u32 v24, {WS_KEY+4096}, v24")
    a("v_add_u32 v25, 8192, v24")
    a(f"v_add_u32 v26, {WS_KEY-2048}, v26")
    for k in range(8):
        a(f"global_load_dwordx4 {vr(KY+4*k,4)}, v{24 if k < 4 else 25 if k < 7 else 26}, {sr(P_WS,2)} offset:{2048*(k&3)-4096} sc1")
    a("v_sub_u32 v24, 0xfff, v20")
    a("s_waitcnt vmcnt(0)")
    for k in range(32):
        a(f"v_subrev_u32 v25, {256*(k>>2)+(k&3)}, v24")
        a(f"v_bfi_b32 v{KY+k}, s76, v25, v{KY+k}")
    a("s_mov_b32 s77, 0")
    a("s_mov_b32 s7, 0")
    a.lab("F_SLOOP")
    for j in range(32):
        a(f"v_subrev_u32 v{TK+j}, s77, v{KY+j}")
    a(f"v_max_u32 v{TK}, v{TK}, v{TK+1}")
    for j in range(15):
        a(f"v_max3_u32 v{TK}, v{TK}, v{TK+2+2*j}, v{TK+3+2*j}")
    for m in ("row_shr:1 " + DPPF, "row_shr:2 " + DPPF, "row_shr:4 " + DPPF, "row_shr:8 " + DPPF,
              "row_bcast:15 row_mask:0xa bank_mask:0xf", "row_bcast:31 row_mask:0xc bank_mask:0xf"):
        a.nop(2)
        a(f"v_max_u32_dpp v{TK}, v{TK}, v{TK} {m}")
    a.nop(1)
    a(f"v_readlane_b32 s8, v{TK}, 63")
    a("s_add_u32 s77, s77, s8")
    a("s_add_u32 s7, s7, 1")
    a("s_cmp_le_u32 s7, s3")
    a("s_cbranch_scc1 F_SLOOP")
    win_row(a, 77, 3)
    a("s_branch F_REST")


def ck_pro(a):
    a.lab("CK_PRO")
    a("s_and_b32 s7, s3, 3")
    a("s_lshr_b32 s12, s3, 2")
    a("s_lshl_b32 s8, s6, 2")
    a("s_add_u32 s8, s8, s7")
    a("s_lshl_b32 s9, s8, 8")
    a("v_lshl_add_u32 v6, v2, 2, s9")
    a("s_lshl_b32 s10, s12, 7")
    a("s_add_u32 s9, s9, s10")
    a("v_lshl_add_u32 v5, v2, 1, s9")
    a("s_lshl_b32 s8, s8, 1")
    a("v_mov_b32 v7, s8")
    for k in range(6):
        a(f"v_mov_b32 v{8+k}, 0")
    a("v_mov_b32 v18, 0")
    a("s_waitcnt lgkmcnt(0)")
    a(f"global_load_short_d16_hi v18, v7, {sr(P_LDT,2)}")
    for k in range(6):
        a(f"global_load_short_d16_hi v{8+k}, v5, {sr(P_ARE+2*k,2)}")
    for k in range(4):
        a(f"global_load_dword v{14+k}, v6, {sr(P_BRE+2*k,2)}")
    a("s_barrier")
    a("s_branch CK_MAIN")


def cmul(a, d, x, y, t):
    a(f"v_pk_mul_f32 {vr(t,2)}, {vr(x,2)}, {vr(y,2)} op_sel:[1,1] op_sel_hi:[1,0]")
    a(f"v_pk_fma_f32 {vr(d,2)}, {vr(x,2)}, {vr(y,2)}, {vr(t,2)} op_sel:[0,0,0] op_sel_hi:[0,1,1] neg_lo:[0,0,1]")


ZC = 140


def zconst(a):
    a("s_cmp_eq_u32 s12, 0")
    a("s_cbranch_scc1 CK_NOC")
    S, H = 76, 80
    a("v_lshlrev_b32 v74, 3, v4")
    a("v_sub_u32 v74, v74, v3")
    a("v_and_b32 v74, 0xffff, v74")
    a("v_lshl_or_b32 v74, v74, 16, v74")
    a("v_mov_b32 v75, 0x3c003c00")
    for p in range(4):
        k = ((2 * p + 1 - 16) & 0xffff) | (((2 * p - 16) & 0xffff) << 16)
        a(f"s_mov_b32 s8, {k:#x}")
        a(f"v_pk_add_u16 v{S+p}, v74, s8")
    th = (3, 4, 5, 6, 11, 12, 13)
    for i, t in enumerate(th):
        for p in range(4):
            a(f"v_pk_add_u16 v{H+4*i+p}, v{S+p}, {t-1} op_sel_hi:[1,0]")
            a(f"v_pk_ashrrev_i16 v{H+4*i+p}, 15, v{H+4*i+p} op_sel_hi:[0,1]")
    for m, (lo, hi) in enumerate(((3, 6), (6, 11), (5, 12), (4, 13), (3, 5))):
        x, y = H + 4 * th.index(lo), H + 4 * th.index(hi)
        for p in range(4):
            if m < 4:
                a(f"v_bitop3_b32 v{ZC+4*m+p}, v{x+p}, v{y+p}, v75 bitop3:0x28")
            else:
                a(f"v_xor_b32 v{ZC+4*m+p}, v{x+p}, v{y+p}")
    a.lab("CK_NOC")


def ck_main(a):
    a.lab("CK_MAIN")
    a("s_lshl_b32 s13, s7, 13")
    a(f"s_add_u32 s13, s13, {CH0}")
    a("s_lshr_b32 s14, s7, 1")
    a(f"s_mul_i32 s14, s14, {STG2}")
    a("s_and_b32 s8, s7, 1")
    a("s_lshl_b32 s8, s8, 9")
    a("s_add_u32 s14, s14, s8")
    a("s_lshl_b32 s8, s12, 8")
    a("s_add_u32 m0, s14, s8")
    for j in range(4):
        a(f"v_mov_b32 v{124+j}, 0")
    a("s_lshl_b32 s8, s12, 11")
    a("s_add_u32 s8, s8, s13")
    a("v_lshl_add_u32 v20, v2, 4, s8")
    a("ds_write_b128 v20, v[124:127]")
    a("ds_write_b128 v20, v[124:127] offset:1024")
    a(f"v_mul_u32_u24 v128, {TSP}, v3")
    a("v_lshl_add_u32 v128, v4, 4, v128")
    a("v_add_u32 v128, s14, v128")
    a("s_lshl_b32 s8, s3, 2")
    a(f"s_add_u32 s9, s8, {SYN+32}")
    a("v_mov_b32 v129, s9")
    a("s_xor_b32 s8, s8, 16")
    a(f"s_add_u32 s9, s8, {SYN+32}")
    a("v_mov_b32 v130, s9")
    a("v_mov_b32 v21, 0x3c00")
    a(f"ds_write_addtid_b32 v21 offset:{41*TSP}")
    a(f"v_mov_b32 v22, {L2E:#x}")
    a(f"v_mov_b32 v23, {L2E_LO:#x}")
    a(f"v_mov_b32 v24, {L2E:#x}")
    a(f"v_mov_b32 v25, {INV2PI:#x}")
    a("s_mov_b32 s15, 0x7fff7fff")
    zconst(a)
    a("s_waitcnt vmcnt(10)")
    a("v_mul_f32 v19, v18, v22")
    a("v_fma_f32 v22, v18, v22, -v19")
    a("v_exp_f32 v19, v19")
    a("v_fma_f32 v22, v18, v23, v22")
    a(f"v_mul_f32 v22, {LN2:#x}, v22")
    a("v_fma_f32 v19, v19, v22, v19")
    a("v_cvt_pk_bf16_f32 v19, v19, v19")
    a("v_and_b32 v18, 0xffff0000, v19")
    a("v_pk_mul_f32 v[24:25], v[24:25], v[18:19] op_sel_hi:[1,0]")
    a("s_waitcnt vmcnt(0)")
    a.stamp(1)
    X, W, E1, Q, R, QC, T1, T2 = 40, 56, 58, 60, 62, 64, 66, 68
    Z = 8
    for k in range(4):
        a(f"v_and_b32 v{14+k}, s15, v{14+k}")
    a("v_pk_max_u16 v14, v14, v15")
    a("v_pk_max_u16 v16, v16, v17")
    a("v_lshlrev_b32 v15, 16, v14")
    a("v_lshlrev_b32 v17, 16, v16")
    a("v_pk_mul_f32 v[14:15], v[14:15], v[16:17]")
    a(f"v_pk_mul_f32 {vr(Z,2)}, {vr(Z,2)}, v[24:25]")
    a("v_max_f32 v14, v14, v15")
    a("v_pk_mul_f32 v[10:11], v[10:11], v[18:19] op_sel_hi:[1,0]")
    a("v_mul_f32 v14, v14, v18")
    dpp = ["row_shr:1 " + DPPF, "row_shr:2 " + DPPF, "row_shr:4 " + DPPF, "row_shr:8 " + DPPF,
           "row_bcast:15 row_mask:0xa bank_mask:0xf", "row_bcast:31 row_mask:0xc bank_mask:0xf"]
    fill = []
    b = Asm()
    cmul(b, W, 12, 10, T1)
    b(f"v_mul_f32 v{Q}, {fbits(8):#x}, v{Z}")
    b(f"v_mul_f32 v{Q+1}, {fbits(-8):#x}, v{Z+1}")
    b(f"v_mul_f32 v{R}, {fbits(128):#x}, v{Z}")
    b(f"v_mul_f32 v{R+1}, {fbits(128):#x}, v{Z+1}")
    b(f"v_fract_f32 v{E1+1}, v{Z+1}")
    b(f"v_fract_f32 v{Q+1}, v{Q+1}")
    b(f"v_fract_f32 v{R+1}, v{R+1}")
    b(f"v_exp_f32 v20, v{Z}")
    b(f"v_exp_f32 v22, v{Q}")
    b(f"v_exp_f32 v26, v{R}")
    for r_ in (Q, E1, R):
        b(f"v_cos_f32 v{r_}, v{r_+1}")
        b(f"v_sin_f32 v{r_+1}, v{r_+1}")
    fill = b.L
    fi = 0
    for m in dpp:
        a.L += fill[fi:fi + 2]
        fi += 2
        a(f"v_max_u32_dpp v14, v14, v14 {m}")
    a.L += fill[fi:fi + 1]
    fi += 1
    a("v_readlane_b32 s8, v14, 63")
    a.L += fill[fi:]
    a("s_lshr_b32 s8, s8, 23")
    a("s_sub_i32 s8, 258, s8")
    a("s_max_i32 s8, s8, 1")
    a("s_min_i32 s8, s8, 253")
    a("s_lshl_b32 s10, s8, 23")
    a(f"v_pk_mul_f32 {vr(Q,2)}, {vr(Q,2)}, v[22:23] op_sel_hi:[1,0]")
    a(f"v_pk_mul_f32 {vr(E1,2)}, {vr(E1,2)}, v[20:21] op_sel_hi:[1,0]")
    a(f"v_pk_mul_f32 {vr(R,2)}, {vr(R,2)}, v[26:27] op_sel_hi:[1,0]")
    a(f"v_pk_mul_f32 {vr(W,2)}, {vr(W,2)}, s[10:11] op_sel_hi:[1,0]")
    cnt = [0]

    def emit(row, x):
        o = 70 + cnt[0] % 4
        cnt[0] += 1
        a(f"v_cvt_pk_f16_f32 v{o}, v{x}, v{x+1}")
        if env("KSKIP", 0) != 2:
            a(f"ds_write_addtid_b32 v{o} offset:{row*TSP}")

    xc = lambda c: X + 2 * (c - 1)
    if env("KSKIP", 0) == 1:
        a("s_branch CK_SKIP")
    emit(42, Q)
    emit(40, W)
    for c in range(1, 9):
        cmul(a, xc(c), W if c == 1 else xc(c - 1), E1, T1)
        emit(c - 1, xc(c))
    for c in range(1, 9):
        cmul(a, xc(c), xc(c), R, T1)
        emit(8 + c - 1, xc(c))
    for aa in (2, 3):
        for c in (2, 4, 6, 8):
            cmul(a, xc(c), xc(c), R, T1)
            emit(16 + 4 * (aa - 2) + c // 2 - 1, xc(c))
    for aa in range(4, 8):
        for c in (4, 8):
            cmul(a, xc(c), xc(c), R, T1)
            emit(24 + 2 * (aa - 4) + c // 4 - 1, xc(c))
    for aa in range(8, 16):
        cmul(a, xc(8), xc(8), R, T1)
        emit(32 + aa - 8, xc(8))
    for bb in range(2, 16):
        cmul(a, QC, Q if bb == 2 else QC, Q, T1)
        emit(41 + bb, QC)
    a.lab("CK_SKIP")
    a.stamp(2)
    a("ds_write_b32 v129, v129")
    a("s_mov_b32 s9, 0")
    a.lab("CK_PAIR")
    a("ds_read_b32 v8, v130")
    a("s_add_u32 s9, s9, 1")
    a("s_waitcnt lgkmcnt(0)")
    a("v_cmp_eq_u32 vcc, 0, v8")
    a("s_cmp_ge_u32 s9, 0x40000")
    a("s_cbranch_scc1 CK_PAIRED")
    a("s_cbranch_vccnz CK_PAIR")
    a.lab("CK_PAIRED")
    CF, RF, RF2, AC = 8, 40, 72, 104
    a("s_cmp_eq_u32 s12, 0")
    a("s_cbranch_scc0 CK_T1")
    for q in range(8):
        a(f"ds_read_b128 {vr(CF+4*q,4)}, v128 offset:{41*TSP+64*q}")
        a(f"ds_read_b128 {vr(RF+4*q,4)}, v128 offset:{64*q}")
        if q == 3:
            a("s_lshl_b32 s9, s7, 2")
            a(f"s_add_u32 s9, s9, {SYN+16}")
            a("v_mov_b32 v112, s9")
            a("v_mov_b32 v113, s8")
    a("v_lshrrev_b32 v114, 1, v4")
    a("v_lshlrev_b32 v114, 8, v114")
    a("v_lshl_add_u32 v114, v3, 4, v114")
    a("v_and_b32 v115, 1, v4")
    a("v_lshl_add_u32 v114, v115, 3, v114")
    a("v_add_u32 v114, s13, v114")
    a("v_lshlrev_b32 v115, 5, v3")
    a("v_lshl_add_u32 v115, v4, 3, v115")
    a("v_add_u32 v115, s13, v115")
    a("v_mov_b32 v116, s13")
    for q in range(8):
        a(f"s_waitcnt lgkmcnt({min(15, 14-2*q+q)})")
        a(f"v_mfma_f32_16x16x32_f16 {vr(AC,4)}, {vr(RF+4*q,4)}, {vr(CF+4*q,4)}, {'0' if q == 0 else vr(AC,4)}")
        a(f"ds_read_b128 {vr(RF2+4*q,4)}, v128 offset:{32*TSP+64*q}")
    for q in range(8):
        a(f"s_waitcnt lgkmcnt({7-q})")
        a(f"v_mfma_f32_16x16x32_f16 {vr(AC+4,4)}, {vr(CF+4*q,4)}, {vr(RF2+4*q,4)}, {'0' if q == 0 else vr(AC+4,4)}")
    a("ds_write_b32 v112, v113")
    a(f"v_cvt_pk_f16_f32 v118, v{AC}, v{AC+1}")
    a(f"v_cvt_pk_f16_f32 v119, v{AC+2}, v{AC+3}")
    a(f"v_cvt_pk_f16_f32 v120, v{AC+1}, v{AC+2}")
    a(f"v_cvt_pk_f16_f32 v121, v{AC+3}, v{AC+3}")
    a(f"ds_write_b16 v114, v121 offset:{TO+4*(7+3)}")
    a(f"ds_write_b64 v114, v[120:121] offset:{TE+4*(7+1)}")
    a(f"ds_write_b64 v114, v[118:119] offset:{TO+4*(7+1)}")
    a(f"ds_write_b16 v114, v118 offset:{TE+4*7+2}")
    a(f"v_cvt_pk_f16_f32 v118, v{AC+4}, v{AC+5}")
    a(f"v_cvt_pk_f16_f32 v119, v{AC+6}, v{AC+7}")
    a("s_mov_b32 s10, 0x00ff00ff")
    a("s_mov_b32 s11, 0x00ff00ff")
    a("s_mov_b64 exec, s[10:11]")
    a(f"ds_write_b64 v115, v[118:119] offset:{TS3+64}")
    a("s_mov_b64 exec, 0x100")
    a(f"ds_write_b16 v116, v118 offset:{TE+4*7}")
    a(f"ds_write_b16 v116, v118 offset:{TO+4*7+2}")
    a("s_mov_b64 exec, -1")
    a.stamp(6)
    a("s_mov_b32 s72, s13")
    wait_issued(a, "D")
    a(f"s_add_u32 s15, s7, {NM}")
    pf_item(a, 15, "D")
    a("s_mov_b32 s13, s72")
    a("s_barrier")
    d_wave(a)
    a.lab("CK_T1")
    for q in range(8):
        a(f"ds_read_b128 {vr(CF+4*q,4)}, v128 offset:{41*TSP+64*q}")
        a(f"ds_read_b128 {vr(RF+4*q,4)}, v128 offset:{16*TSP+64*q}")
    a("v_lshlrev_b32 v114, 8, v4")
    a("v_lshl_add_u32 v114, v3, 4, v114")
    a("v_add_u32 v114, s13, v114")
    a("v_lshlrev_b32 v115, 7, v4")
    a("v_lshl_add_u32 v115, v3, 2, v115")
    a("v_add_u32 v115, s13, v115")
    for q in range(8):
        a(f"s_waitcnt lgkmcnt({14-2*q})")
        a(f"v_mfma_f32_16x16x32_f16 {vr(AC,4)}, {vr(RF+4*q,4)}, {vr(CF+4*q,4)}, {'0' if q == 0 else vr(AC,4)}")
    a.nop(8)
    a(f"v_cvt_pk_f16_f32 v116, v{AC}, v{AC+1}")
    a(f"v_cvt_pk_f16_f32 v117, v{AC+1}, v{AC+1}")
    a(f"v_cvt_pk_f16_f32 v118, v{AC+2}, v{AC+3}")
    a(f"v_cvt_pk_f16_f32 v119, v{AC+3}, v{AC+3}")
    a(f"v_cvt_pk_f16_f32 v120, v{AC+1}, v{AC+2}")
    a("s_mov_b32 exec_hi, 0")
    a(f"ds_write_b16 v114, v119 offset:{TE+512+4*(7+5)}")
    a(f"v_add_u32 v121, {TO+512}, v114")
    a(f"ds_write_b128 v114, v[116:119] offset:{TE+512+4*(7+1)}")
    a(f"ds_write2_b32 v121, v119, v119 offset0:{7+4} offset1:{7+5}")
    a(f"ds_write2_b32 v121, v117, v120 offset0:{7+2} offset1:{7+3}")
    a(f"ds_write_b16 v121, v116 offset:{4*(7+1)+2}")
    a("s_not_b64 exec, exec")
    a(f"ds_write_b32 v115, v116 offset:{TS2+128-256}")
    a(f"ds_write_b32 v115, v118 offset:{TS2+128-256+64}")
    a("s_mov_b64 exec, -1")
    a("s_waitcnt lgkmcnt(0)")
    a("s_barrier")
    z_wave(a)


def pf_item(a, sm, tag):
    ng = 9 - CR0
    a(f"s_mul_i32 s14, s{sm}, 18")
    a("s_add_u32 s14, s14, s101")
    a(f"s_cmp_ge_u32 s14, {18*ng}")
    a(f"s_cbranch_scc1 CPF_D{tag}")
    a("v_mul_u32_u24 v140, 9216, v2")
    a("s_mul_i32 s8, s4, 1152")
    a("v_add_u32 v140, s8, v140")
    pf_gu(a, 14, CR0, 140, 141)
    a(f"s_branch CPF_X{tag}")
    a.lab(f"CPF_D{tag}")
    a(f"s_sub_u32 s14, s14, {18*ng}")
    a("s_min_u32 s14, s14, 80")
    a("s_mul_i32 s8, s4, 81")
    a("s_add_u32 s8, s8, s14")
    a("s_lshl_b32 s8, s8, 13")
    a("v_lshl_add_u32 v141, v2, 7, s8")
    a(f"global_load_dword v142, v141, {sr(P_WD,2)} {PFL}")
    a.lab(f"CPF_X{tag}")


def wait_issued(a, tag):
    a(f"v_mov_b32 v8, {SYN}")
    a("s_mov_b32 s9, 0")
    a.lab(f"CK_ISS{tag}")
    a("ds_read_b32 v9, v8 offset:64")
    a("s_add_u32 s9, s9, 1")
    a("s_waitcnt lgkmcnt(0)")
    a("v_cmp_ne_u32 vcc, 4, v9")
    a("s_cmp_ge_u32 s9, 0x40000")
    a(f"s_cbranch_scc1 CK_ISSD{tag}")
    a(f"s_cbranch_vccz CK_ISSD{tag}")
    a("s_sleep 2")
    a(f"s_branch CK_ISS{tag}")
    a.lab(f"CK_ISSD{tag}")


def y_addr(a, v):
    a(f"v_mul_u32_u24 v{v}, 320, v4")
    a(f"v_lshl_add_u32 v{v}, v3, 4, v{v}")
    a(f"s_mul_i32 s8, s7, {YCH}")
    a(f"v_add_u32 v{v}, s8, v{v}")
    a("s_lshl_b32 s8, s3, 2")
    a(f"s_add_u32 s8, s8, {CH0+FLG}")
    a(f"v_mov_b32 v{v+1}, s8")
    a(f"v_mov_b32 v{v+2}, 1")


def d_wave(a):
    T, UR, AC = 8, 76, 108
    NR = 8
    a("v_and_b32 v5, 1, v3")
    a(f"v_mul_u32_u24 v5, {TO}, v5")
    a(f"v_sub_u32 v5, {TO+48}, v5")
    a("v_lshrrev_b32 v6, 1, v3")
    a("v_lshl_add_u32 v5, v6, 2, v5")
    a("v_lshlrev_b32 v6, 4, v4")
    a("v_sub_u32 v5, v5, v6")
    a("v_add_u32 v5, s13, v5")
    a("v_add_u32 v7, 576, v5")
    for kp in range(17):
        va, o = (5, 16 * kp) if kp < 9 else (7, 16 * (kp - 9))
        a(f"ds_read2_b32 {vr(T+4*kp,2)}, v{va} offset0:{o+3} offset1:{o+2}")
        a(f"ds_read2_b32 {vr(T+4*kp+2,2)}, v{va} offset0:{o+1} offset1:{o}")
    a("v_lshl_add_u32 v6, v3, 5, v6")
    a(f"v_add_u32 v6, {U0-480}, v6")
    a("v_add_u32 v6, s13, v6")
    y_addr(a, 124)
    a.stamp(3)
    a("s_waitcnt lgkmcnt(0)")
    a("s_barrier")
    a.stamp(4)
    AH = NR - 1
    betas = list(range(-7, 57))
    q = []

    def rd(i):
        a(f"ds_read_b128 {vr(UR+4*(i%NR),4)}, v6 offset:{64*i}")
        q.append(("r", i))
    for i in range(AH):
        rd(i)
    started = set()
    pend = []
    for i, beta in enumerate(betas):
        pos = q.index(("r", i))
        a(f"s_waitcnt lgkmcnt({min(15, len(q)-1-pos)})")
        del q[:pos + 1]
        tiles = [A for A in range(8) if 0 <= 8 * A - beta <= 16]
        for A in tiles:
            acc = vr(AC + 4 * (A % 4), 4)
            a(f"v_mfma_f32_16x16x32_f16 {acc}, {vr(T+4*(8*A-beta),4)}, {vr(UR+4*(i%NR),4)}, {acc if A in started else '0'}")
            started.add(A)
        if i + AH < len(betas):
            rd(i + AH)
        if beta % 8 == 0 and beta >= 0:
            pend.append((beta // 8, i + 3))
        if pend and pend[0][1] <= i:
            A = pend.pop(0)[0]
            a(f"ds_write_b128 v124, {vr(AC+4*(A%4),4)} offset:{1280*A}")
            a(f"ds_write_b32 v125, v126 offset:{32*A}")
            q += [("w", A), ("f", A)]
    a.nop(8)
    a(f"ds_write_b128 v124, {vr(AC+12,4)} offset:{1280*7}")
    a(f"ds_write_b32 v125, v126 offset:{32*7}")
    a.stamp(5)
    a("s_waitcnt lgkmcnt(0)")
    a.end()


def z_wave(a):
    S2F, S3F, WN, FO, V, AC = 8, 32, 48, 64, 88, 100
    TB = ZC + 16
    a("v_lshlrev_b32 v5, 2, v4")
    a("v_sub_u32 v5, v3, v5")
    a("v_lshl_add_u32 v7, v5, 2, s13")
    a("v_lshl_add_u32 v5, v5, 3, s13")
    a(f"v_add_u32 v7, {TS3}, v7")
    a("v_mov_b32 v6, s13")
    a(f"ds_read_b32 v128, v6 offset:{TS2+128+252}")
    for D in (2, 3, 4):
        for h in range(2):
            for jj in range(2):
                a(f"ds_read_b64 {vr(S2F+8*(D-2)+4*h+2*jj,2)}, v5 offset:{TS2+8*(16*D-16-2*h-jj)}")
    for D in range(4, 8):
        o = 16 * D - 48
        a(f"ds_read2_b32 {vr(S3F+4*(D-4),2)}, v7 offset0:{o} offset1:{o-1}")
        a(f"ds_read2_b32 {vr(S3F+4*(D-4)+2,2)}, v7 offset0:{o-2} offset1:{o-3}")
    a("v_lshlrev_b32 v6, 4, v4")
    a("v_lshl_add_u32 v6, v3, 5, v6")
    a(f"v_add_u32 v6, {U0-48}, v6")
    a("v_add_u32 v6, s13, v6")
    y_addr(a, 129)
    for A in range(2):
        a(f"ds_write_b128 v129, v[124:127] offset:{1280*(8+A)}")
        a(f"ds_write_b32 v130, v131 offset:{32*A}")
    a("s_mov_b32 s8, 0x07060706")
    a("s_waitcnt lgkmcnt(0)")
    a("v_perm_b32 v128, v128, v128, s8")
    for j in range(4):
        a(f"v_and_b32 v{TB+j}, v128, v{TB+j}")
    a.stamp(3)
    if ZPRIO:
        a(f"s_setprio {ZPRIO}")
    a("s_barrier")
    a.stamp(4)
    w1 = lambda B: vr(WN + 8 * (B & 1), 4)
    w2 = lambda B: vr(WN + 8 * (B & 1) + 4, 4)

    def rdw(B):
        a(f"ds_read_b128 {w1(B)}, v6 offset:{512*B+16}")
        a(f"ds_read_b128 {w2(B)}, v6 offset:{512*B}")

    def filters(B):
        for i in range(6 if B < 4 else 4):
            w = w2(B) if i in (2, 3, 5) else w1(B)
            a(f"v_mfma_f32_16x16x32_f16 {vr(FO+4*i,4)}, {w}, {vr(ZC+4*(0,1,0,1,2,3)[i],4)}, 0")

    def cvt(B):
        for j in range(4):
            a(f"v_cvt_pk_f16_f32 v{V+2*j}, v{FO+j}, v{FO+4+j}")
            a(f"v_cvt_pk_f16_f32 v{V+2*j+1}, v{FO+8+j}, v{FO+12+j}")
        if B < 4:
            for j in range(4):
                a(f"v_cvt_pk_f16_f32 v{V+8+j}, v{FO+16+j}, v{FO+20+j}")

    started = set()

    def mm(A, x, y):
        acc = vr(AC + 4 * (A - 2), 4)
        a(f"v_mfma_f32_16x16x32_f16 {acc}, {x}, {y}, {acc if A in started else '0'}")
        started.add(A)

    rdw(0); rdw(1)
    a("s_waitcnt lgkmcnt(2)")
    filters(0)
    a.nop(6)
    cvt(0)
    for B in range(6):
        n = 0
        if B < 5:
            a(f"s_waitcnt lgkmcnt({0 if B == 0 else 2})")
            filters(B + 1)
        else:
            a.nop(2)
        for D in (2, 3, 4):
            if B + D <= 7:
                for h in range(2):
                    mm(B + D, vr(V + 4 * h, 4), vr(S2F + 8 * (D - 2) + 4 * h, 4))
                    n += D > 2
        if B < 4:
            mm(B + 4, vr(TB, 4), w1(B))
            for D in range(4, 8 - B):
                mm(B + D, vr(V + 8, 4), vr(S3F + 4 * (D - 4), 4))
            n += 5 - B
            rdw(B + 2)
            n += 2
        a.nop(8 - n)
        a(f"ds_write_b128 v129, {vr(AC+4*B,4)} offset:{1280*(10+B)}")
        a(f"ds_write_b32 v130, v131 offset:{32*(B+2)}")
        if B < 5:
            cvt(B + 1)
    a.stamp(5)
    a("s_cmp_eq_u32 s3, 4")
    a("s_cbranch_scc1 FINAL")
    a("s_waitcnt lgkmcnt(0)")
    a.end()


UL, UX = 8, 24


def cu_pro(a):
    a.lab("CU_PRO")
    a("s_sub_u32 s7, s3, 8")
    a("s_lshl_b32 s8, s101, 2")
    a("s_add_u32 s8, s8, s7")
    a("s_min_u32 s8, s8, 63")
    a(f"s_mul_i32 s8, s8, {32*1152}")
    a("s_lshl_b32 s9, s4, 7")
    a("s_add_u32 s8, s8, s9")
    a("v_lshrrev_b32 v5, 1, v2")
    a("v_mul_u32_u24 v5, 1152, v5")
    a("v_and_b32 v6, 1, v2")
    a("v_lshl_add_u32 v5, v6, 7, v5")
    a("v_add_u32 v7, s8, v5")
    a(f"s_mul_i32 s8, s7, {256*1152}")
    a("s_lshl_b32 s9, s6, 3")
    a("s_add_u32 s8, s8, s9")
    a("v_mul_u32_u24 v5, 4608, v2")
    a("v_add_u32 v5, s8, v5")
    a(f"v_add_u32 v6, {1024*1152}, v5")
    a("v_mov_b32 v59, 0")
    a(f"v_mov_b32 v57, {SYN}")
    a("v_lshl_add_u32 v56, v2, 2, v57")
    a("ds_write_b32 v56, v59")
    a("s_waitcnt lgkmcnt(0)")
    a(f"global_load_dword v60, v7, {sr(P_U,2)} {PFL}")
    a("s_barrier")
    if NM:
        a("s_cmp_eq_u32 s7, 2")
        a("s_cbranch_scc1 CU_MID")
    a.lab("CU_LD")
    if env("NOU", 0):
        a("v_mov_b32 v5, 0")
        a("v_mov_b32 v6, 0")
    for t in range(2):
        for i in range(4):
            a(f"global_load_dwordx2 {vr(UL+8*t+2*i,2)}, v{5+t}, {sr(P_U,2)} offset:{1152*i} {UFL}")
    a("s_branch CU_MAIN")


def cu_main(a):
    if NM:
        a.lab("CU_MID")
        for k in range(NM):
            a(f"s_mov_b32 s15, {k}")
            pf_item(a, 15, f"M{k}")
        a("s_lshl_b32 s9, s6, 3")
        a("s_branch CU_LD")
    a.lab("CU_MAIN")
    a(f"s_load_dwordx2 s[52:53], {sr(P_DSK,2)}, s9")
    G = 128
    a("v_mov_b32 v58, 1")
    a("s_mov_b64 exec, 1")
    a("ds_add_u32 v57, v58 offset:64")
    a("s_mov_b64 exec, -1")
    gran_addr(a, 7, 138, 137)
    a("s_lshl_b32 s8, s7, 11")
    a(f"s_add_u32 s8, s8, {WS_G}")
    a("v_add_u32 v7, s8, v7")
    a("v_add_u32 v137, 8192, v7")
    a(f"v_add_u32 v138, {WS_G}, v138")
    a("s_cmp_eq_u32 s7, 3")
    a("s_cselect_b64 vcc, -1, 0")
    a("v_cndmask_b32 v137, v137, v138, vcc")
    a.stamp(7)

    def gload():
        a(f"global_load_dwordx2 v[144:145], v59, {sr(P_DBG,2)} sc1")
        a(f"global_load_dwordx4 {vr(G,4)}, v7, {sr(P_WS,2)} sc1")
        a(f"global_load_dwordx4 {vr(G+4,4)}, v137, {sr(P_WS,2)} sc1")
    a("v_and_b32 v56, 12, v3")
    a(f"v_add_u32 v56, {SYN}, v56")
    a("v_and_b32 v57, 3, v2")
    a("v_lshlrev_b32 v57, 2, v57")
    a(f"v_add_u32 v57, {SYN}, v57")
    a("s_lshl_b32 s8, s7, 9")
    a(f"s_add_u32 s8, s8, {CH0+U0}")
    a("v_lshl_add_u32 v58, v2, 3, s8")
    a("s_mov_b32 s10, 0x11111111")
    a("s_mov_b32 s11, 0x11111111")
    X = lambda t, ch, i: UX + 16 * t + 4 * ch + i
    M = 62
    for t in range(2):
        for i in range(4):
            a(f"s_waitcnt vmcnt({7-4*t-i})")
            r = UL + 8 * t + 2 * i
            a(f"v_lshlrev_b32 v{X(t,0,i)}, 16, v{r}")
            a(f"v_and_b32 v{X(t,1,i)}, 0xffff0000, v{r}")
            a(f"v_lshlrev_b32 v{X(t,2,i)}, 16, v{r+1}")
            a(f"v_and_b32 v{X(t,3,i)}, 0xffff0000, v{r+1}")
            if i & 1:
                for ch in range(4):
                    prev = "0" if t == 0 and i == 1 else f"v{M+ch}"
                    a(f"v_max3_f32 v{M+ch}, |v{X(t,ch,i-1)}|, |v{X(t,ch,i)}|, {prev}")
    a.stamp(1)
    for ch in range(4):
        a(f"v_max_u32_dpp v{M+ch}, v{M+ch}, v{M+ch} row_ror:4 {DPPF}")
    for ch in range(4):
        a(f"v_max_u32_dpp v61, v{M+ch}, v{M+ch} row_ror:8 row_mask:0xf bank_mask:{1<<ch:#x}")
        a.nop(2)
    a(f"v_max_u32_dpp v61, v61, v61 quad_perm:[1,0,3,2] {DPPF}")
    a.nop(2)
    a(f"v_max_u32_dpp v61, v61, v61 quad_perm:[2,3,0,1] {DPPF}")
    a("s_mov_b64 exec, s[10:11]")
    a("ds_max_u32 v56, v61")
    a("s_mov_b64 exec, -1")
    a("s_waitcnt lgkmcnt(0)")
    a("s_barrier")
    a("ds_read2_b32 v[62:63], v57 offset0:0 offset1:4")
    a("s_waitcnt lgkmcnt(0)")
    a("v_lshrrev_b32 v62, 23, v62")
    a("v_sub_u32 v62, 265, v62")
    a("v_min_i32 v62, 253, v62")
    a("v_lshlrev_b32 v64, 23, v62")
    a("v_add_u32 v62, v62, v63")
    for ch in range(4):
        a(f"v_readlane_b32 s{56+ch}, v64, {ch}")
    a("v_sub_u32 v62, 381, v62")
    C = 66
    for t in range(2):
        for ch in range(4):
            sel = "op_sel:[0,1] op_sel_hi:[1,1]" if ch & 1 else "op_sel_hi:[1,0]"
            sp = sr(56 + (ch & 2), 2)
            o = C + 6 * (ch & 1)
            a(f"v_pk_mul_f32 {vr(o,2)}, {vr(X(t,ch,0),2)}, {sp} {sel}")
            a(f"v_pk_mul_f32 {vr(o+2,2)}, {vr(X(t,ch,2),2)}, {sp} {sel}")
            a(f"v_cvt_pk_f16_f32 v{o+4}, v{o+1}, v{o}")
            a(f"v_cvt_pk_f16_f32 v{o+5}, v{o+3}, v{o+2}")
            a(f"ds_write_b64 v58, {vr(o+4,2)} offset:{CHP*ch+2048*t}")
    a.stamp(2)
    a("s_waitcnt lgkmcnt(0)")
    a("s_barrier")
    gload()
    for k in range(NPF):
        a(f"s_add_u32 s15, s7, {4*k+4+NM}")
        pf_item(a, 15, f"E{k}")
    a("v_max_i32 v62, 0, v62")
    a("v_min_i32 v62, 254, v62")
    a("v_lshlrev_b32 v62, 23, v62")
    a("s_nop 0")
    for ch in range(4):
        a(f"v_readlane_b32 s{56+ch}, v62, {ch}")
    a("s_lshl_b32 s60, s52, 16")
    a("s_and_b32 s61, s52, 0xffff0000")
    a("s_lshl_b32 s62, s53, 16")
    a("s_and_b32 s63, s53, 0xffff0000")
    a("s_mov_b32 s12, 0")
    a(f"s_waitcnt vmcnt({NPF})")
    a("s_branch E_GCHK")
    a.lab("E_GPOLL")
    gload()
    a("s_add_u32 s12, s12, 1")
    a("s_waitcnt vmcnt(0)")
    a.lab("E_GCHK")
    a("v_xor_b32 v61, 1, v145")
    for i in range(8):
        a(f"v_bitop3_b32 v61, v61, v{G+i}, v144 bitop3:0xf6")
    a("v_and_b32 v61, 0xffff, v61")
    a("v_cmp_ne_u32 vcc, 0, v61")
    a(f"s_cmp_ge_u32 s12, {SPIN}")
    a("s_cbranch_scc1 E_GOK")
    a("s_cbranch_vccnz E_GPOLL")
    a.lab("E_GOK")
    a.stamp(3)
    a("v_and_b32 v56, 3, v2")
    a("v_mul_u32_u24 v56, 320, v56")
    a("v_lshrrev_b32 v57, 2, v2")
    a("v_lshl_add_u32 v56, v57, 4, v56")
    a("s_mul_i32 s8, s7, 1280")
    a("v_add_u32 v56, s8, v56")
    a(f"v_add_u32 v57, {2*YCH}, v56")
    a("v_and_b32 v58, 7, v2")
    a("s_lshl_b32 s8, s7, 5")
    a(f"s_add_u32 s8, s8, {CH0+FLG}")
    a("v_lshl_add_u32 v58, v58, 2, s8")
    a("v_mov_b32 v59, 0x3f803f80")
    OM, XD, OX, Y, YF = 16, 64, 80, 96, 112
    for t in range(2):
        g = G + 4 * t
        for i in range(4):
            a(f"v_and_b32 v{g+i}, 0xffff0000, v{g+i}")
            a(f"v_sub_f32 v{OM+i}, 1.0, v{g+i}")
        a(f"v_cvt_pk_bf16_f32 v{OM+4}, v{OM}, v{OM+1}")
        a(f"v_cvt_pk_bf16_f32 v{OM+5}, v{OM+2}, v{OM+3}")
        a(f"v_lshrrev_b32 v{g}, 16, v{g}")
        a(f"v_lshrrev_b32 v{g+2}, 16, v{g+2}")
        a(f"v_lshlrev_b32 v{OM}, 16, v{OM+4}")
        a(f"v_and_b32 v{OM+1}, 0xffff0000, v{OM+4}")
        a(f"v_lshlrev_b32 v{OM+2}, 16, v{OM+5}")
        a(f"v_and_b32 v{OM+3}, 0xffff0000, v{OM+5}")
        for ch in range(4):
            sel = "op_sel:[0,1] op_sel_hi:[1,1]" if ch & 1 else "op_sel_hi:[1,0]"
            for p in range(2):
                a(f"v_pk_mul_f32 {vr(XD+4*ch+2*p,2)}, {vr(X(t,ch,2*p),2)}, {sr(60+(ch&2),2)} {sel}")
                a(f"v_pk_mul_f32 {vr(OX+4*ch+2*p,2)}, {vr(X(t,ch,2*p),2)}, {vr(OM+2*p,2)}")
        a("s_mov_b32 s12, 0")
        a.lab(f"E_WAIT{t}")
        a(f"ds_read_b32 v60, v58 offset:{128*t}")
        a("s_add_u32 s12, s12, 1")
        a("s_waitcnt lgkmcnt(0)")
        a("v_cmp_eq_u32 vcc, 0, v60")
        a("s_cmp_ge_u32 s12, 0x40000")
        a(f"s_cbranch_scc1 E_RDY{t}")
        a(f"s_cbranch_vccz E_RDY{t}")
        a("s_sleep 1")
        a(f"s_branch E_WAIT{t}")
        a.lab(f"E_RDY{t}")
        a.stamp(4 + t)
        for ch in range(4):
            va, o = 56 + (ch >> 1), YCH * (ch & 1) + 5120 * t
            a(f"ds_read_b128 {vr(Y+4*ch,4)}, v{va} offset:{o}")
            a(f"ds_read_b128 {vr(YF+4*ch,4)}, v{va} offset:{o+10240}")
        for ch in range(4):
            sel = "op_sel:[0,1] op_sel_hi:[1,1]" if ch & 1 else "op_sel_hi:[1,0]"
            a(f"s_waitcnt lgkmcnt({6-2*ch})")
            for p in range(2):
                y = Y + 4 * ch + 2 * p
                a(f"v_pk_add_f32 {vr(y,2)}, {vr(y,2)}, {vr(YF+4*ch+2*p,2)}")
            for p in range(2):
                y = Y + 4 * ch + 2 * p
                a(f"v_pk_mul_f32 {vr(y,2)}, {vr(y,2)}, {sr(56+(ch&2),2)} {sel}")
            for i in range(4):
                a(f"v_cvt_pk_bf16_f32 v{Y+4*ch+i}, v{Y+4*ch+i}, v{XD+4*ch+i}")
            for i in range(4):
                a(f"v_dot2_f32_bf16 v{Y+4*ch+i}, v{Y+4*ch+i}, v59, 0")
        a.nop(1)
        for k in range(8):
            a(f"v_cvt_pk_bf16_f32 v{YF+k}, v{Y+2*k}, v{Y+2*k+1}")
        for k in range(16):
            a(f"v_dot2_f32_bf16 v{Y+k}, v{YF+(k>>1)}, v{g+(k&3)}, 0")
        for k in range(16):
            a(f"v_cvt_pk_bf16_f32 v{Y+k}, v{Y+k}, v{OX+k}")
        for i in range(4):
            for ch in range(4):
                a(f"v_dot2_f32_bf16 v{Y+4*ch+i}, v{Y+4*ch+i}, v59, 0")
        for i in range(4):
            if i == 3:
                a.nop(1)
            a(f"v_cvt_pk_bf16_f32 v{YF+2*i}, v{Y+i}, v{Y+4+i}")
            a(f"v_cvt_pk_bf16_f32 v{YF+2*i+1}, v{Y+8+i}, v{Y+12+i}")
            a(f"global_store_dwordx2 v{5+t}, {vr(YF+2*i,2)}, {sr(P_OUT,2)} offset:{1152*i}")
    if not env("UST", 0):
        a.stamp(6)
    a("s_waitcnt vmcnt(0)")
    a.end()


def finalizer(a):
    a.lab("FINAL")
    a("v_and_b32 v5, 7, v2")
    a("v_lshlrev_b32 v5, 2, v5")
    a("v_mov_b32 v6, 0")
    a("s_mov_b32 s12, 0")
    a.lab("FN_TAG")
    a(f"global_load_dwordx2 v[42:43], v6, {sr(P_DBG,2)} sc1")
    a("s_add_u32 s12, s12, 1")
    a("s_waitcnt vmcnt(0)")
    a("v_cmp_eq_u32 vcc, 0, v43")
    a(f"s_cmp_ge_u32 s12, {SPIN}")
    a("s_cbranch_scc1 FN_TAGOK")
    a("s_cbranch_vccnz FN_TAG")
    a.lab("FN_TAGOK")
    sel_poll(a, 42, "F")
    a(f"v_mov_b32_dpp v10, v8 row_ror:8 {DPPF}")
    a("s_lshl_b32 s9, s6, 3")
    a(f"s_load_dwordx2 s[52:53], {sr(P_DSK,2)}, s9")
    a("v_cndmask_b32 v8, v10, v8, vcc")
    a("v_mov_b32 v9, v42")
    a("v_not_b32 v10, v8")
    a("v_and_b32 v10, 0x7ff, v10")
    a("v_mul_u32_u24 v11, 1152, v10")
    a("v_add_u32 v11, s9, v11")
    a(f"global_load_dwordx2 v[12:13], v11, {sr(P_U,2)}")
    a("v_and_b32 v14, 0x7f0, v10")
    a("v_add_lshl_u32 v14, v14, v10, 2")
    a("v_and_b32 v16, 0xf8, v10")
    a("v_mul_u32_u24 v16, 3, v16")
    a("v_and_b32 v17, 0xff, v10")
    a("v_add_lshl_u32 v16, v16, v17, 2")
    a("v_cmp_le_u32 vcc, 0x700, v10")
    a(f"v_add_u32 v16, {80*128+64}, v16")
    a("s_nop 0")
    a("v_cndmask_b32 v14, v14, v16, vcc")
    a(f"v_add_u32 v14, {WS_G}, v14")
    a("s_mov_b32 s12, 0")
    a.lab("FN_G")
    a(f"global_load_dword v15, v14, {sr(P_WS,2)} sc1")
    a("s_add_u32 s12, s12, 1")
    a("s_waitcnt vmcnt(0)")
    a("v_xor_b32 v16, v15, v9")
    a("v_and_b32 v16, 0xffff, v16")
    a("v_cmp_ne_u32 vcc, 0, v16")
    a(f"s_cmp_ge_u32 s12, {SPIN}")
    a("s_cbranch_scc1 FN_GOK")
    a("s_cbranch_vccnz FN_G")
    a.lab("FN_GOK")
    a("v_lshrrev_b32 v16, 8, v10")
    a("v_mul_u32_u24 v16, 1280, v16")
    a("v_and_b32 v17, 0xf0, v10")
    a("v_add_u32 v16, v16, v17")
    a("v_bfe_u32 v17, v10, 2, 2")
    a("v_mul_u32_u24 v17, 320, v17")
    a("v_add_u32 v16, v16, v17")
    a("v_and_b32 v17, 3, v10")
    a("v_lshl_add_u32 v16, v17, 2, v16")
    a(f"v_add_u32 v17, {2*YCH}, v16")
    a(f"v_add_u32 v18, {CH0+FLG+224}, v5")
    a(f"v_mov_b32 v19, {SYN}")
    a("ds_read_b128 v[36:39], v19")
    a("ds_read_b128 v[44:47], v19 offset:16")
    a("v_and_b32 v20, 0xffff0000, v8")
    a("v_not_b32 v21, v20")
    a("v_ashrrev_i32 v21, 31, v21")
    a("v_and_b32 v21, 0x7fff0000, v21")
    a("v_or_b32 v21, 0x80000000, v21")
    a("v_xor_b32 v20, v20, v21")
    sigmoid_bf16(a, 20, 21)
    a("v_and_b32 v20, 0xffff0000, v20")
    a("v_and_b32 v15, 0xffff0000, v15")
    a("v_sub_f32 v21, 1.0, v15")
    a("v_cvt_pk_bf16_f32 v21, v21, v21")
    a("v_and_b32 v21, 0xffff0000, v21")
    a("v_lshlrev_b32 v24, 16, v12")
    a("v_and_b32 v25, 0xffff0000, v12")
    a("v_lshlrev_b32 v26, 16, v13")
    a("v_and_b32 v27, 0xffff0000, v13")
    a("s_waitcnt lgkmcnt(0)")
    for c in range(36, 40):
        a(f"v_lshrrev_b32 v{c}, 23, v{c}")
        a(f"v_sub_u32 v{c}, 265, v{c}")
        a(f"v_min_i32 v{c}, 253, v{c}")
        a(f"v_add_u32 v{c}, v{c}, v{c+8}")
        a(f"v_sub_u32 v{c}, 381, v{c}")
        a(f"v_max_i32 v{c}, 0, v{c}")
        a(f"v_min_i32 v{c}, 254, v{c}")
        a(f"v_lshlrev_b32 v{c}, 23, v{c}")
    a("s_mov_b32 s12, 0")
    a.lab("FN_WAIT")
    a("ds_read_b32 v22, v18")
    a("s_add_u32 s12, s12, 1")
    a("s_waitcnt lgkmcnt(0)")
    a("v_cmp_eq_u32 vcc, 0, v22")
    a("s_cmp_ge_u32 s12, 0x40000")
    a("s_cbranch_scc1 FN_RDY")
    a("s_cbranch_vccz FN_RDY")
    a("s_sleep 1")
    a("s_branch FN_WAIT")
    a.lab("FN_RDY")
    for ch in range(4):
        va, o = 16 + (ch >> 1), YCH * (ch & 1)
        a(f"ds_read_b32 v{28+ch}, v{va} offset:{o}")
        a(f"ds_read_b32 v{32+ch}, v{va} offset:{o+10240}")
    a("s_lshl_b32 s60, s52, 16")
    a("s_and_b32 s61, s52, 0xffff0000")
    a("s_lshl_b32 s62, s53, 16")
    a("s_and_b32 s63, s53, 0xffff0000")
    a("s_mul_i32 s8, s6, 9216")
    a(f"s_add_u32 s8, s8, {WS_PART+4096}")
    a("v_lshl_add_u32 v22, v2, 4, s8")
    a("v_add_u32 v23, 4096, v22")
    a("s_waitcnt lgkmcnt(0)")

    def rb4(r):
        a(f"v_cvt_pk_bf16_f32 v40, v{r}, v{r+1}")
        a(f"v_cvt_pk_bf16_f32 v41, v{r+2}, v{r+3}")
        a(f"v_lshlrev_b32 v{r}, 16, v40")
        a(f"v_and_b32 v{r+1}, 0xffff0000, v40")
        a(f"v_lshlrev_b32 v{r+2}, 16, v41")
        a(f"v_and_b32 v{r+3}, 0xffff0000, v41")
    for ch in range(4):
        a(f"v_add_f32 v{28+ch}, v{28+ch}, v{32+ch}")
        a(f"v_mul_f32 v{28+ch}, v{28+ch}, v{36+ch}")
        a(f"v_mul_f32 v{32+ch}, s{60+ch}, v{24+ch}")
    rb4(28); rb4(32)
    for ch in range(4):
        a(f"v_add_f32 v{28+ch}, v{28+ch}, v{32+ch}")
    rb4(28)
    for ch in range(4):
        a(f"v_mul_f32 v{28+ch}, v{28+ch}, v15")
    rb4(28)
    a.stamp(6)
    P = 48
    if FREP:
        a("v_and_b32 v33, 7, v2")
        a("v_mul_u32_u24 v33, 1152, v33")
        a("s_mul_i32 s11, s101, 29")
        a("s_lshr_b32 s11, s11, 6")
        a("s_lshl_b32 s11, s11, 7")
        a("s_add_u32 s11, s11, s8")
        a("v_add_u32 v33, s11, v33")
        a("s_mov_b32 s12, 0")
        a.lab("FN_R")
        a(f"global_load_dword v34, v33, {sr(P_WS,2)} offset:-4096 sc1")
        a("s_add_u32 s12, s12, 1")
        a("s_waitcnt vmcnt(0)")
        a("v_xor_b32 v34, v34, v9")
        a("v_and_b32 v34, 0xff, v34")
        a("v_cmp_ne_u32 vcc, 0, v34")
        a(f"s_cmp_ge_u32 s12, {SPIN}")
        a("s_cbranch_scc1 FN_RX")
        a("s_cbranch_vccz FN_RX")
        a("s_mov_b64 exec, vcc")
        a(f"s_sleep {FSL}")
        a("s_branch FN_R")
        a.lab("FN_RX")
        a("s_mov_b64 exec, -1")
    a("s_mov_b32 s12, 0")
    a.lab("FN_P")
    for k in range(9):
        va, o = (22, 1024 * k - 4096) if k < 8 else (23, 0)
        a(f"global_load_dwordx4 {vr(P+4*k,4)}, v{va}, {sr(P_WS,2)} offset:{o} sc1")
    a("s_add_u32 s12, s12, 1")
    for k in range(9):
        a(f"s_waitcnt vmcnt({8-k})")
        if k == 0:
            a(f"v_xor_b32 v32, v{P}, v9")
        for i in range(4):
            if k or i:
                a(f"v_bitop3_b32 v32, v32, v{P+4*k+i}, v9 bitop3:0xf6")
        if k:
            a(f"v_pk_add_f32 {vr(P,2)}, {vr(P,2)}, {vr(P+4*k,2)}")
            a(f"v_pk_add_f32 {vr(P+2,2)}, {vr(P+2,2)}, {vr(P+4*k+2,2)}")
    a("v_and_b32 v32, 0xff, v32")
    a("v_cmp_ne_u32 vcc, 0, v32")
    a(f"s_cmp_ge_u32 s12, {SPIN}")
    a("s_cbranch_scc1 FN_POK")
    a("s_cbranch_vccz FN_POK")
    a("s_mov_b64 exec, vcc")
    a(f"s_sleep {FSL}")
    a("s_branch FN_P")
    a.lab("FN_POK")
    a("s_mov_b64 exec, -1")
    a.stamp(2)
    for i in range(4):
        a(f"v_add_f32_dpp v{P+i}, v{P+i}, v{P+i} row_ror:8 {DPPF}")
    for sw in ("v_permlane16_swap_b32", "v_permlane32_swap_b32"):
        for i in range(4):
            a(f"v_mov_b32 v{P+4+i}, v{P+i}")
        for i in range(4):
            a(f"{sw} v{P+i}, v{P+4+i}")
        for i in range(4):
            a(f"v_add_f32 v{P+i}, v{P+i}, v{P+4+i}")
    rb4(P)
    for ch in range(4):
        a(f"v_mul_f32 v{P+ch}, v{P+ch}, v20")
    rb4(P)
    for ch in range(4):
        a(f"v_add_f32 v{P+ch}, v{P+ch}, v{24+ch}")
    rb4(P)
    for ch in range(4):
        a(f"v_mul_f32 v{P+ch}, v{P+ch}, v21")
    rb4(P)
    for ch in range(4):
        a(f"v_add_f32 v{P+ch}, v{P+ch}, v{28+ch}")
    a(f"v_cvt_pk_bf16_f32 v40, v{P}, v{P+1}")
    a(f"v_cvt_pk_bf16_f32 v41, v{P+2}, v{P+3}")
    a("s_barrier")
    a("s_mov_b64 exec, 0xff")
    a(f"global_store_dwordx2 v11, v[40:41], {sr(P_OUT,2)}")
    a.stamp(7)
    a.end()


def const_table(a):
    a.L.append(".p2align 7")
    a.lab("CONST_TAB")
    perm = [1, 0, 3, 2, 5, 4, 7, 6]
    for w0, lo, hi, one in ((-16, 3, 5, 0x3c00), (-16, 6, 10, 0x3c00),
                            (-16, 5, 11, 0x3c00), (-24, 12, 20, 0x3c00), (-16, 3, 4, 0xffff)):
        for lane in range(64):
            c, g = lane & 15, lane >> 4
            e = [one if lo <= c - (w0 + 8 * g + perm[k]) <= hi else 0 for k in range(8)]
            a(".long " + ", ".join(f"{e[2*p] | e[2*p+1] << 16:#x}" for p in range(4)))


def kernel(a):
    a.L.append(".p2align 8")
    a.L.append(".globl k1_kernel")
    a.L.append(".type k1_kernel,@function")
    a.lab("k1_kernel")
    a.stamp(0)
    a("s_cmp_ge_u32 s2, 256")
    a("s_cbranch_scc1 K_END")
    a("s_load_dwordx16 s[16:31], s[0:1], 0")
    a("s_load_dwordx16 s[32:47], s[0:1], 64")
    a("s_load_dwordx4 s[48:51], s[0:1], 128")
    a("v_lshrrev_b32 v1, 6, v0")
    a("v_and_b32 v2, 63, v0")
    a("v_readfirstlane_b32 s3, v1")
    a("v_and_b32 v3, 15, v2")
    a("v_lshrrev_b32 v4, 4, v2")
    a("s_and_b32 s4, s2, 7")
    a("s_lshr_b32 s5, s2, 3")
    a("s_cmp_lg_u32 s3, 0")
    a("s_cbranch_scc1 K_NOCPF")
    a("s_getpc_b64 s[8:9]")
    a("s_and_b32 s8, s8, 0xffffff00")
    a("v_and_b32 v5, 7, v2")
    a("v_lshl_add_u32 v5, s5, 3, v5")
    a("v_lshlrev_b32 v5, 7, v5")
    a("v_min_u32 v5, CODE_END-k1_kernel-4, v5")
    a("global_load_dword v167, v5, s[8:9]")
    a.lab("K_NOCPF")
    a("s_cmp_lt_u32 s2, 112")
    a("s_cbranch_scc1 K_NC")
    a("s_sub_u32 s101, s5, 14")
    a("s_mul_i32 s6, s4, 18")
    a("s_add_u32 s6, s6, s101")
    a("s_cmp_lt_u32 s3, 8")
    a("s_cbranch_scc1 CK_PRO")
    cu_pro(a)
    ck_pro(a)
    a.lab("K_NC")
    a("s_lshl_b32 s6, s2, 4")
    a("s_lshl_b32 s7, s3, 2")
    a("s_sub_u32 s7, s7, 32")
    a("s_cmp_ge_u32 s3, 8")
    a("s_cbranch_scc1 RT_PRO")
    a("s_cmp_lt_u32 s2, 72")
    a("s_cbranch_scc1 F_PRO")
    a("s_cmp_lt_u32 s3, 6")
    a("s_cbranch_scc1 HELPER")
    a("s_cmp_lt_u32 s2, 80")
    a("s_cbranch_scc1 HELPER")
    a("s_add_u32 s7, s7, 24")
    a("s_lshr_b32 s6, s6, 1")
    a(f"s_add_u32 s6, s6, {1792-640-16}")
    router_pro(a)
    ffn_pro(a)
    helper(a)
    router_main(a)
    ffn_main(a)
    selector(a)
    ck_main(a)
    cu_main(a)
    finalizer(a)
    a.lab("W_END")
    a.end()
    stamp_out(a)
    a.lab("K_END")
    a("s_endpgm")
    a.lab("CODE_END")


def main():
    ref = open(os.path.join(HERE, NAME + ".s.ref")).read().splitlines()
    head = [l for l in ref if l.startswith(";") and "@launch" not in l and "Override" not in l and "grid=ceil" not in l]
    a = Asm()
    kernel(a)
    grp = []
    if STAMP and not AMP:
        F, H, C = "list(range(72))", "list(range(72,112))", "list(range(112,256))"
        grp = [f'; GROUPS ([("rt",list(range(112)),[10,11]),("sel",list(range(72,80)),list(range(8))),("selp",list(range(72,80)),[8]),("ctl",{F},[9]),("ffn",{F},list(range(8))),("D",{C},[0,1,2,3]),("Z",{C},[5,6,7]),("fin",{C},[4]),("E",{C},[8,9,10,11])],12)']
    out = head + grp + [
        f"; @launch kernel=k1_kernel grid=(256,1,1) block=(768,1,1) lds={LDS_BYTES}",
        '.amdgcn_target "amdgcn-amd-amdhsa--gfx950"',
        ".text",
    ] + a.L + [
        '.section .rodata,"a"',
        ".p2align 6",
        ".amdhsa_kernel k1_kernel",
        "  .amdhsa_next_free_vgpr 168",
        "  .amdhsa_next_free_sgpr 102",
        "  .amdhsa_accum_offset 168",
        "  .amdhsa_group_segment_fixed_size 0",
        "  .amdhsa_kernarg_size 144",
        "  .amdhsa_user_sgpr_count 2",
        "  .amdhsa_user_sgpr_kernarg_segment_ptr 1",
        "  .amdhsa_system_sgpr_workgroup_id_x 1",
        ".end_amdhsa_kernel",
    ]
    path = sys.argv[1] if len(sys.argv) > 1 else os.path.join(HERE, NAME + ".s")
    open(path, "w").write("\n".join(out) + "\n")


if __name__ == "__main__":
    main()
```

```python
import sys, os, struct

NAME = "gated_mix__ssm_conv_s4__moe_arch_mod__prompt"
HERE = os.path.dirname(os.path.abspath(__file__))
env = lambda k, d: int(os.environ.get(k, str(d)))

AMP = os.environ.get("AMP", "")
STAMP = env("STAMP", 1 if AMP else 0)
RA = env("RA", 2)
RB = env("RB", 5)
RC = env("RC", 8)
HA = env("HA", 4)
HR0 = env("HR0", 0)
HR1 = env("HR1", 2)
CR0 = env("CR0", 5)
CDN = env("CDN", 1)
PSL = env("PSL", 4)
PW = env("PW", 0)
WIN = env("WIN", 4)
DP = env("DP", 0)
LATE = env("LATE", 2)
DE = env("DE", 0)
WIN2 = env("WIN2", 4)
WSW = env("WSW", 27)
SPF = env("SPF", 0)
N1 = env("N1", 3)
N2 = env("N2", 0)
HB = env("HB", 0)
UWAIT = env("UWAIT", 0)
ZPRIO = env("ZPRIO", 0)
UFL = os.environ.get("UFL", "sc1")
PFL = os.environ.get("PFL", "")
FREP = env("FREP", 1)
FSL = env("FSL", 0)
N0 = env("N0", 0)
HD = env("HD", 0)
C3N = env("C3N", 6)
SCP = env("SCP", 1)
FUSE = env("FUSE", 1)
HPOS = env("HPOS", 2)
DFD = env("DFD", 1)
HW = env("HW", 6)
TLB = env("TLB", 0)
LINE = env("LINE", 0)
UROT = env("UROT", 0)
PFG = env("PFG", 0)
HG = env("HG", 0)
DNL = env("DNL", 2)
STAGE = env("STAGE", 1)
SPIN = 0x4000

WS_SEL = 256
WS_HINT = 2304
WS_KEY = env("KOFF", 4096)
KP = env("KP", 256)
WS_G = WS_KEY + env("GOFF", 128)
WS_REP = 40960
WS_SELB = WS_REP + 8192
WS_H = WS_SELB + 8192
WS_PART = WS_H + 72 * 4096
PS = 9 * 128
WS_SIZE = 0x10000000
WS_STAMP = 4 << 20

TSP = 1056
STG2 = 57 * TSP
CH0 = 120832
CHP = 8192
TE, TO, TS2, TS3 = 0, 1216, 2336, 2848
U0 = 4096
U1 = U0 + 2048
ZT = CH0 + 4 * CHP
SYN = ZT
MX1, ISA, PAIR, CISS, CSC, CK8, FLG = 0, 16, 32, 64, 68, 76, 256
CT = 80
ZM = SYN + 512
CCONV = 240
UEXP = 260
CDUMP, CG, TAGW = 244, 116, 120
XR, GL = 81920, 98304
YCH = 20480
L_UP = 73728
XS, XSP = 147456, 1344
EX = 157952
H2, HP2 = XS, 1344
CAND = 163200
M3 = 163456
LT = 163460
RKL = 163520
SELL = RKL + 96
LDS_BYTES = 163840

L2E = 0x3fb8aa3b
L2E_LO = 0x32a57060
LN2 = 0x3f317218
INV2PI = 0x3e22f983

P_U, P_ARE, P_AIM, P_BRE, P_BIM, P_CRE, P_CIM, P_LDT = 16, 18, 20, 22, 24, 26, 28, 30
P_DSK, P_BX, P_WR, P_WG, P_WU, P_WD, P_GW, P_OUT = 32, 34, 36, 38, 40, 42, 44, 46
P_DBG, P_WS = 48, 50


def fbits(x):
    return struct.unpack("<I", struct.pack("<f", float(x)))[0]


def vr(i, n):
    return f"v[{i}:{i+n-1}]"


def sr(i, n):
    return f"s[{i}:{i+n-1}]"


TOUCH = env("TOUCH", 0)
KEND = os.environ.get("KEND", "E_GOK")


def touch(a, name):
    a.L.append(f"@TOUCH {name}")


def place_pads(L, plan):
    import subprocess, re
    room = {n: 2 * len(w) for n, (w, _) in plan.items()}
    P = []
    for l in L:
        P += ["    s_nop 0"] * room[l[7:]] if l.startswith("@TOUCH") else [l]
    open("pad0.s", "w").write('.amdgcn_target "amdgcn-amd-amdhsa--gfx950"\n.text\n' + "\n".join(P) + "\n")
    subprocess.run(["clang", "-x", "assembler", "-target", "amdgcn-amd-amdhsa", "-mcpu=gfx950", "-c",
                    "pad0.s", "-o", "pad0.o"], check=True)
    dis = subprocess.run(["llvm-objdump", "-d", "--mcpu=gfx950", "pad0.o"], capture_output=True, text=True).stdout
    adr = [int(m.group(1), 16) for m in re.finditer(r"// ([0-9A-F]{12}):", dis)]
    at, k = [], 0
    for l in L:
        at.append(adr[k] if k < len(adr) else adr[-1] + 4)
        k += room[l[7:]] if l.startswith("@TOUCH") else l.startswith("    ") and not l.strip().startswith(".")
    idx = {l[:-1]: i for i, l in enumerate(L) if l.endswith(":")}
    spots = {}
    chains = {}
    for n, (waves, regions) in plan.items():
        pts = []
        for r0, r1, first in regions:
            last = at[idx[r0]] - (1000 if first else 0)
            for i in range(idx[r0], idx[r1]):
                if at[i] >= last + 1000 and at[idx[r1]] - at[i] > 64 and L[i].startswith("    "):
                    pts.append(i)
                    last = at[i]
        slots = [(h, w) for w, nh in waves for h in range(nh)]
        slots.sort()
        assert len(pts) <= len(slots), (n, len(pts), len(slots))
        ch = {}
        for p, (h, w) in zip(pts, slots):
            ch.setdefault(w, []).append(p)
        chains[n] = ch
        for w, ps in ch.items():
            for j, p in enumerate(ps):
                nxt = f"PAD_{n}_{ps[j+1]}" if j + 1 < len(ps) else f"BACK_{n}"
                spots.setdefault(p, []).append((f"PAD_{n}_{p}", nxt))
    out = []
    for i, l in enumerate(L):
        if i in spots:
            out.append(f"    s_branch OVER_{i}")
            for lab, nxt in spots[i]:
                out += [f"{lab}:", f"    s_branch {nxt}"]
            out.append(f"OVER_{i}:")
        if l.startswith("@TOUCH"):
            n = l[7:]
            for w, ps in chains[n].items():
                out += [f"    s_cmp_eq_u32 s3, {w}", f"    s_cbranch_scc1 PAD_{n}_{ps[0]}"]
            out.append(f"BACK_{n}:")
        else:
            out.append(l)
    return out


class Asm:
    def __init__(s):
        s.L = []
        s.nl = 0

    def __call__(s, x):
        s.L.append("    " + x)

    def lab(s, x):
        s.L.append(x + ":")

    def nop(s, n):
        while n > 0:
            k = min(n, 16)
            s(f"s_nop {k-1}")
            n -= k

    def stamp(s, i):
        if STAMP:
            s(f"s_memrealtime s[{84+2*i}:{85+2*i}]")

    def end(s):
        if STAMP:
            s("s_branch STAMP_OUT")
        else:
            s("s_endpgm")


def stamp_out(a):
    if not STAMP:
        return
    a.lab("STAMP_OUT")
    a("s_mov_b64 exec, -1")
    a("s_waitcnt lgkmcnt(0)")
    if AMP:
        wg, wv, i, mult = [int(x) for x in AMP.split(",")]
        a(f"s_cmp_lg_u32 s2, {wg}")
        a("s_cbranch_scc1 K_END")
        a(f"s_cmp_lg_u32 s3, {wv}")
        a("s_cbranch_scc1 K_END")
        a(f"s_sub_u32 s100, s{84+2*i}, s84")
        a("s_min_u32 s100, s100, 4000")
        a(f"s_mul_i32 s100, s100, {mult}")
        a("s_add_u32 s100, s100, s84")
        a("s_add_u32 s100, s100, 3000")
        a.lab("AMPL")
        a("s_memrealtime s[84:85]")
        a("s_waitcnt lgkmcnt(0)")
        a("s_sub_u32 s86, s84, s100")
        a("s_cmp_lt_i32 s86, 0")
        a("s_cbranch_scc1 AMPL")
        a("s_endpgm")
        return
    a("s_lshl_b32 s100, s2, 4")
    a("s_add_u32 s100, s100, s3")
    a("s_lshl_b32 s100, s100, 6")
    a(f"s_add_u32 s100, s100, {WS_STAMP}")
    a("v_mov_b32 v1, s100")
    for i in range(8):
        a(f"v_mov_b32 v2, s{84+2*i}")
        a(f"global_store_dword v1, v2, {sr(P_WS,2)} offset:{4*i}")
    a("s_endpgm")


def spin(a, va, off, cmp, val, vt, sc, sleep=1, mask=None):
    a.nl += 1
    n = a.nl
    a(f"s_mov_b32 s{sc}, 0")
    a.lab(f"SPN{n}")
    a(f"ds_read_b32 v{vt}, v{va} offset:{off}")
    a(f"s_add_u32 s{sc}, s{sc}, 1")
    a("s_waitcnt lgkmcnt(0)")
    if mask is not None:
        a(f"v_and_b32 v{vt}, {mask}, v{vt}")
    a(f"v_cmp_{cmp}_u32 vcc, {val}, v{vt}")
    a(f"s_cmp_ge_u32 s{sc}, 0x40000")
    a(f"s_cbranch_scc1 SPX{n}")
    if sleep:
        a(f"s_cbranch_vccz SPX{n}")
        a(f"s_sleep {sleep}")
        a(f"s_branch SPN{n}")
    else:
        a(f"s_cbranch_vccnz SPN{n}")
    a.lab(f"SPX{n}")


def post(a, va, off, vone):
    a("s_mov_b64 exec, 1")
    a(f"ds_add_u32 v{va}, v{vone} offset:{off}")
    a("s_mov_b64 exec, -1")


def srd(a, d, p, size):
    a(f"s_mov_b32 s{d}, s{p}")
    a(f"s_mov_b32 s{d+1}, s{p+1}")
    a(f"s_mov_b32 s{d+2}, {size}")
    a(f"s_mov_b32 s{d+3}, 0x20000")


DPPF = "row_mask:0xf bank_mask:0xf"


def gran_addr(a, d, d7, t):
    a(f"v_lshrrev_b32 v{d}, 2, v2")
    a(f"v_mul_u32_u24 v{d}, {KP}, v{d}")
    a(f"v_and_b32 v{t}, 3, v2")
    a(f"v_lshl_add_u32 v{d}, v{t}, 4, v{d}")
    a(f"v_lshrrev_b32 v{d7}, 1, v2")
    a(f"v_mul_u32_u24 v{d7}, {KP}, v{d7}")
    a(f"v_and_b32 v{t}, 1, v2")
    a(f"v_lshl_add_u32 v{d7}, v{t}, 4, v{d7}")
    a(f"v_add_u32 v{d7}, {80*KP+64}, v{d7}")


def sigmoid_bf16(a, x, t):
    a(f"v_mul_f32 v{t}, 0xbfb8aa3b, v{x}")
    a(f"v_exp_f32 v{t}, v{t}")
    a.nop(1)
    a(f"v_add_f32 v{t}, 1.0, v{t}")
    a(f"v_rcp_f32 v{t}, v{t}")
    a.nop(1)
    a(f"v_cvt_pk_bf16_f32 v{x}, v{t}, v{t}")


RX, RW, RG = 16, 34, 52


RL = 84


def router_pro(a):
    a.lab("RT_PRO")
    a("s_add_u32 s6, s6, s7")
    a("v_add_u32 v5, s6, v4")
    a("v_lshlrev_b32 v6, 4, v3")
    a("v_lshlrev_b32 v7, 3, v3")
    a("v_mul_u32_u24 v9, 1152, v5")
    a("v_add_u32 v8, v9, v6")
    a("v_add_u32 v9, v9, v7")
    a("v_mov_b32 v10, 0")
    a("v_lshlrev_b32 v11, 2, v2")
    a(f"v_add_u32 v12, {RKL}, v11")
    a("ds_write_b32 v12, v10")
    a("v_and_b32 v11, 0x7c, v11")
    a("v_lshlrev_b32 v12, 4, v2")
    a("s_mul_i32 s13, s7, 640")
    a(f"s_add_u32 s13, s13, {XS}")
    a("s_mov_b32 m0, s13")
    a("s_waitcnt lgkmcnt(0)")
    a(f"s_load_dword s12, {sr(P_WS,2)}, 0")
    a(f"global_load_lds_dwordx4 v12, {sr(P_WR,2)}")
    a(f"global_load_lds_dword v11, {sr(P_WR,2)} offset:1024")
    a("s_add_u32 m0, s13, 1280")
    a("v_add_u32 v6, s13, v6")
    a(f"global_load_lds_dwordx4 v12, {sr(P_GW,2)}")
    a(f"global_load_lds_dword v11, {sr(P_GW,2)} offset:1024")
    for i in range(4):
        a(f"global_load_dwordx4 {vr(RX+4*i,4)}, v8, {sr(P_U,2)} offset:{256*i}")
    a(f"global_load_dwordx2 {vr(RX+16,2)}, v9, {sr(P_U,2)} offset:1024")
    a("s_barrier")
    a("s_branch RT_MAIN")


def row_sum(a, v):
    for k in (8, 4, 2, 1):
        a.nop(2)
        a(f"v_add_f32_dpp v{v}, v{v}, v{v} row_ror:{k} {DPPF}")


def router_main(a):
    a.lab("RT_MAIN")
    assert KP == 256 and WS_G == WS_KEY + 128
    a(f"s_mul_i32 s6, s2, {KP}")
    a(f"s_add_u32 s6, s6, {WS_KEY}")
    a("v_lshl_add_u32 v5, v2, 2, s6")
    a("s_cmp_lt_u32 s2, 80")
    a("s_cselect_b32 s8, 15, 23")
    a("v_and_b32 v14, 31, v2")
    a("v_min_u32 v14, s8, v14")
    a("v_and_or_b32 v14, v2, 32, v14")
    a(f"s_mov_b32 s8, {RKL}")
    a("v_lshl_add_u32 v14, v14, 2, s8")
    a("v_add_u32 v13, s7, v4")
    a("v_lshl_add_u32 v13, v13, 2, s8")
    a("s_mov_b32 s8, 0xffff")
    a("s_mov_b32 s10, 0x00010001")
    a("s_mov_b32 s11, 0x00010001")
    a(f"v_mov_b32 v12, {M3}")
    a("s_waitcnt lgkmcnt(0)")
    a("s_add_u32 s12, s12, 1")
    a("v_mov_b32 v11, s12")
    a("ds_write_b64 v12, v[10:11]")
    a("v_add_u32 v7, s13, v7")
    a("s_waitcnt vmcnt(5)")
    for base, o in ((RG, 1280), (RW, 0)):
        for i in range(4):
            a(f"ds_read_b128 {vr(base+4*i,4)}, v6 offset:{o+256*i}")
        a(f"ds_read_b64 {vr(base+16,2)}, v7 offset:{o+1024}")
    if env("GRND", 1):
        T = 70
        a("v_mov_b32 v8, 0x3f803f80")
        a("s_waitcnt lgkmcnt(5)")
        for k in range(18):
            a(f"v_and_b32 v{RL+k}, 0xffff, v{RG+k}")
            a(f"v_and_b32 v{RG+k}, 0xffff0000, v{RG+k}")
        a("s_waitcnt lgkmcnt(0)")
        for b in range(5):
            ks = range(4 * b, min(4 * b + 4, 18))
            a(f"s_waitcnt vmcnt({4-b})")
            for k in ks:
                a(f"v_dot2_f32_bf16 v{T+2*(k&3)}, v{RX+k}, v{RL+k}, 0")
                a(f"v_dot2_f32_bf16 v{T+2*(k&3)+1}, v{RX+k}, v{RG+k}, 0")
            for k in ks:
                a(f"v_dot2_f32_bf16 v12, v{RX+k}, v{RW+k}, {'v12' if k else '0'}")
            for k in ks:
                a(f"v_cvt_pk_bf16_f32 v{T+2*(k&3)}, v{T+2*(k&3)}, v{T+2*(k&3)+1}")
            for k in ks:
                a(f"v_dot2_f32_bf16 v15, v{T+2*(k&3)}, v8, {'v15' if k else '0'}")
        a.nop(1)
    else:
        a("s_waitcnt lgkmcnt(0)")
        for i in range(18):
            if i % 4 == 0:
                a(f"s_waitcnt vmcnt({4-i//4})")
            a(f"v_dot2_f32_bf16 v15, v{RX+i}, v{RG+i}, {'v15' if i else '0'}")
            a(f"v_dot2_f32_bf16 v12, v{RX+i}, v{RW+i}, {'v12' if i else '0'}")
    a.stamp(1)
    a.nop(2)
    for k in (8, 4, 2, 1):
        a(f"v_add_f32_dpp v15, v15, v15 row_ror:{k} {DPPF}")
        a(f"v_add_f32_dpp v12, v12, v12 row_ror:{k} {DPPF}")
        a.nop(1)
    a("v_cvt_pk_bf16_f32 v15, 0, v15")
    a("v_mul_f32 v15, 0xbfb8aa3b, v15")
    a("v_exp_f32 v15, v15")
    a("v_cvt_pk_bf16_f32 v12, v12, v12")
    a("v_add_f32 v15, 1.0, v15")
    a("v_rcp_f32 v15, v15")
    a("v_ashrrev_i32 v9, 31, v12")
    a("v_cvt_pk_bf16_f32 v15, 1.0, v15")
    a("v_or_b32 v9, 0x80000000, v9")
    a("v_bitop3_b32 v12, v12, v9, 1 bitop3:0xbe")
    a("s_mov_b64 exec, s[10:11]")
    a("ds_write2_b32 v13, v12, v15 offset0:0 offset1:32")
    a("s_mov_b64 exec, -1")
    a("s_cmp_lg_u32 s7, 0")
    a("s_cbranch_scc1 RT_X")
    spin(a, 14, 0, "eq", 0, 12, 9, sleep=0)
    a("v_bfi_b32 v12, s8, v11, v12")
    if not env("NOK", 0) & 1:
        a(f"global_store_dword v5, v12, {sr(P_WS,2)} {os.environ.get('KFL', 'sc1')}")
    a.stamp(2)
    a("s_cmp_lg_u32 s2, 0")
    a("s_cbranch_scc1 RT_X")
    a("v_mov_b32 v8, v11")
    a("v_mov_b32 v9, 1")
    a(f"global_store_dwordx2 v10, v[8:9], {sr(P_DBG,2)} sc1")
    a.lab("RT_X")
    a("s_barrier")
    a.lab("RT_TAIL")
    a("s_cmp_ge_u32 s2, 80")
    a("s_cbranch_scc1 DN_JOIN")
    a("s_cmp_lt_u32 s2, 72")
    a("s_cbranch_scc1 RT_CTL")
    a("s_barrier")
    a("s_branch DN_JOIN")
    a.lab("RT_CTL")
    a("s_cmp_lg_u32 s3, 8")
    a("s_cbranch_scc1 W_END")
    a("v_mov_b32 v14, v11")
    a("s_mul_i32 s8, s4, 9")
    a("s_add_u32 s8, s8, s5")
    a("s_lshl_b32 s8, s8, 12")
    a(f"s_add_u32 s8, s8, {WS_H}")
    a("v_lshl_add_u32 v23, v3, 7, s8")
    a(f"global_load_dword v24, v23, {sr(P_WS,2)} sc1")
    a(f"v_mov_b32 v21, {M3}")
    a("v_mov_b32 v22, 16")
    srd(a, SX, P_U, 2359296)
    a("v_lshlrev_b32 v19, 4, v2")
    a("v_lshlrev_b32 v20, 2, v2")
    if SCP:
        a("s_lshl_b32 s13, s4, 10")
        a(f"s_add_u32 s13, s13, {WS_REP}")
        a("s_add_u32 s7, s13, 1024")
        a(f"s_sleep {env('SC0', 16)}")
        a.lab("RT_SC")
        a(f"s_load_dwordx16 s[16:31], {sr(P_WS,2)}, s13")
        a("s_add_u32 s13, s13, 64")
        a("s_waitcnt lgkmcnt(0)")
        a("s_xor_b32 s8, s17, s12")
        for i in range(1, 8):
            a(f"s_xor_b32 s9, s{17+2*i}, s12")
            a("s_or_b32 s8, s8, s9")
        a("s_cbranch_scc0 RT_SCOK")
        a(f"s_sleep {env('SCS', 2)}")
        a("s_cmp_lt_u32 s13, s7")
        a("s_cbranch_scc1 RT_SC")
    sel_poll(a, 14, "C")
    for i in range(8):
        a(f"v_readlane_b32 s{16+2*i}, v8, {i}")
    a.lab("RT_SCOK")
    a.stamp(4)
    a(f"s_mov_b32 m0, {XS}")
    for i in range(8):
        a(f"s_andn2_b32 s{76+i}, 0x7ff, s{16+2*i}")
        a(f"s_mul_i32 s{76+i}, s{76+i}, 1152")
    for i in range(8):
        a(f"buffer_load_dwordx4 v19, {sr(SX,4)}, s{76+i} offen lds")
        a(f"buffer_load_dword v20, {sr(SX,4)}, s{76+i} offen offset:1024 lds")
        a(f"s_add_u32 m0, m0, {XSP}")
        a("s_nop 0")
    a("s_waitcnt vmcnt(0)")
    post(a, 21, C2, 22)
    a.stamp(1)
    a("s_barrier")
    a.end()


def sel_slot(a, v, spread):
    if spread:
        a(f"v_and_b32 v{v}, 4, v2")
        a(f"v_add_u32 v{v}, v{v}, v4")
    else:
        a(f"v_and_b32 v{v}, 7, v2")


def sel_addr(a, v, spread):
    sel_slot(a, v, spread)
    a("s_lshl_b32 s9, s4, 8")
    a(f"v_lshl_add_u32 v{v}, v{v}, 3, s9")


def sel_poll(a, vtag, lab, early=None):
    sel_addr(a, 6, early)
    sel_slot(a, 7, early)
    a("s_lshl_b32 s9, s4, 10")
    a(f"s_add_u32 s9, s9, {WS_SELB-WS_SEL}")
    a("v_lshl_add_u32 v7, v7, 7, s9")
    a("s_mov_b32 s12, 0")
    if early:
        a("s_waitcnt vmcnt(0)")
        a(f"v_mov_b32 v8, v{early}")
        a(f"v_mov_b32 v9, v{early+1}")
        a("s_branch SPC_" + lab)
    a.lab("SP_" + lab)
    a("s_add_u32 s12, s12, 1")
    a("s_and_b32 s9, s12, 7")
    a("s_cselect_b64 s[14:15], 0, -1")
    a("v_cndmask_b32 v10, v6, v7, s[14:15]")
    a(f"global_load_dwordx2 v[8:9], v10, {sr(P_WS,2)} offset:{WS_SEL} sc1")
    a("s_waitcnt vmcnt(0)")
    a.lab("SPC_" + lab)
    a(f"v_cmp_ne_u32 vcc, v9, v{vtag}")
    a(f"s_cmp_ge_u32 s12, {SPIN}")
    a(f"s_cbranch_scc1 SPX_{lab}")
    a(f"s_cbranch_vccz SPX_{lab}")
    a("s_mov_b64 exec, vcc")
    a(f"s_sleep {env('CSL', 2)}")
    a("s_branch SP_" + lab)
    a.lab("SPX_" + lab)
    a("s_mov_b64 exec, -1")


def sparse_lane(a, vaddr, vidx, pitch, base):
    a(f"v_lshrrev_b32 v{vaddr}, 1, v3")
    a(f"v_mul_u32_u24 v{vaddr}, {pitch}, v{vaddr}")
    a(f"v_lshl_add_u32 v{vaddr}, v4, 5, v{vaddr}")
    a(f"v_and_b32 v{vidx}, 1, v2")
    a(f"v_lshl_add_u32 v{vaddr}, v{vidx}, 4, v{vaddr}")
    a(f"v_add_u32 v{vaddr}, {base}, v{vaddr}")
    a(f"v_mul_u32_u24 v{vidx}, 0xaaaa, v{vidx}")
    a(f"v_add_u32 v{vidx}, 0x4444, v{vidx}")


def dn_issue(a):
    a("s_lshr_b32 s8, s6, 3")
    a("s_lshl_b32 s8, s8, s67")
    a("s_and_b32 s9, s6, 7")
    a("s_lshl_b32 s12, s8, 3")
    a("s_add_u32 s12, s12, s9")
    a("s_lshl_b32 m0, s12, 10")
    a("s_mul_i32 s9, s9, 9216")
    a("s_bitcmp1_b32 s6, 0")
    a("s_cselect_b32 s12, 6912, 0")
    a("s_sub_u32 s9, s9, s12")
    a("s_bitcmp1_b32 s8, 0")
    a(f"s_cselect_b32 s12, {36864-128}, 0")
    a("s_mul_i32 s8, s8, 36864")
    a("s_sub_u32 s8, s8, s12")
    a("s_add_u32 s8, s8, s9")
    a("s_add_u32 s8, s8, s14")
    a(f"buffer_load_dwordx4 v5, {sr(SD,4)}, s8 offen {os.environ.get('WFL', '')} lds")
    a("s_add_u32 s6, s6, s70")


def helper(a):
    a.lab("HELPER")
    a("v_lshrrev_b32 v6, 3, v2")
    a("v_and_b32 v7, 2, v6")
    a("v_mad_u32_u24 v7, v7, 3, v6")
    a("v_mul_u32_u24 v5, 1152, v7")
    a("v_and_b32 v7, 6, v6")
    a("v_xor_b32 v7, v7, v2")
    a("v_and_b32 v7, 7, v7")
    a("v_lshl_add_u32 v5, v7, 4, v5")
    a("s_lshl_b32 s8, s5, 1")
    a("s_sub_u32 s8, s8, 20")
    a("s_cmp_lt_u32 s2, 80")
    a("s_cselect_b32 s8, 8, s8")
    a("s_cselect_b32 s70, 8, 6")
    a(f"s_cselect_b32 s69, {env('HS', 2)}, {HA}")
    a("s_cselect_b32 s67, 1, 0")
    a("s_cselect_b32 s71, 1, 2")
    a("s_mul_i32 s71, s71, 72")
    a("s_lshl_b32 s8, s8, 7")
    a(f"s_mul_i32 s14, s4, {9*73728}")
    a("s_add_u32 s14, s14, s8")
    a("s_mov_b32 s6, s3")
    a("s_waitcnt lgkmcnt(0)")
    srd(a, SD, P_WD, 5308416)
    a("s_barrier")
    a("s_branch DN_LOAD")


def down_main(a):
    a.lab("DN_LOAD")
    a(f"v_mov_b32 v55, {WS_SELB}")
    a("s_mov_b64 s[80:81], 0")
    if env("DTLB", 1):
        a("s_cmp_lg_u32 s3, 0")
        a("s_cbranch_scc1 DN_NOT")
        a("v_min_u32 v8, 8, v2")
        a("v_mul_u32_u24 v8, 73728, v8")
        a("v_add_u32 v8, 72576, v8")
        a(f"buffer_load_dword v9, v8, {sr(SD,4)}, s14 offen")
        a.lab("DN_NOT")
    if env("SA", 2) > 1:
        a("s_cmp_ge_u32 s2, 80")
        a("s_cbranch_scc1 DN_SA")
        a.lab("DN_SAL")
        dn_issue(a)
        a(f"s_cmp_lt_u32 s6, {8*(env('SA', 2)-1)}")
        a("s_cbranch_scc1 DN_SAL")
        a.lab("DN_SA")
    if env("DA", 1):
        dn_issue(a)
    else:
        a("v_mov_b32 v8, 0")
        a(f"global_load_dword v9, v8, {sr(P_WR,2)}")
    a("s_waitcnt vmcnt(0)")
    if HG:
        a("s_cmp_lt_u32 s2, 80")
        a("s_cbranch_scc1 DN_L0")
        a("s_lshl_b32 s68, s3, 2")
        a("s_add_u32 s68, s68, s5")
        a(f"s_sub_u32 s68, {162+9}, s68")
        a("v_mul_u32_u24 v10, 9216, v2")
        a("s_mul_i32 s8, s4, 1152")
        a("v_add_u32 v10, s8, v10")
        a(f"s_cmp_ge_u32 s3, {env('HGW', 3)}")
        a("s_cbranch_scc1 DN_G1")
        pf_gu(a, 68, 0, 10, 8)
        a.lab("DN_G1")
        a("s_barrier")
        a(f"s_cmp_lt_u32 s3, {env('HGW', 3)}")
        a("s_cbranch_scc1 DN_G2")
        a(f"s_cmp_ge_u32 s3, {HG}")
        a("s_cbranch_scc1 DN_G3")
        pf_gu(a, 68, 0, 10, 8)
        a.lab("DN_G2")
        a("s_waitcnt vmcnt(0)")
        a.lab("DN_G3")
        a("s_branch DN_L2")
        a.lab("DN_L0")
    a("s_mov_b32 s13, 0")
    a.lab("DN_L1")
    dn_issue(a)
    a("s_add_u32 s13, s13, 1")
    a("s_cmp_lt_u32 s13, s69")
    a("s_cbranch_scc1 DN_L1")
    a("s_cmp_lt_u32 s2, 80")
    a("s_cbranch_scc1 SEL_MAIN")
    a("s_barrier")
    a.lab("DN_L2")
    a("s_cmp_ge_u32 s6, s71")
    a("s_cbranch_scc1 DN_LX")
    a(f"s_waitcnt vmcnt({HW-1})")
    dn_issue(a)
    a("s_branch DN_L2")
    a.lab("DN_LX")
    a.lab("DN_JOIN")
    AF, BF, AC = 24, 96, 132
    a(f"v_mov_b32 v21, {M3}")
    a("ds_read_b32 v14, v21 offset:4")
    a("v_and_b32 v18, 1, v4")
    a("v_bfe_u32 v6, v2, 2, 2")
    a("v_lshl_add_u32 v18, v18, 2, v6")
    a("v_lshrrev_b32 v19, 1, v18")
    a("v_lshlrev_b32 v18, 7, v18")
    a("v_and_b32 v7, 3, v2")
    a("v_lshl_add_u32 v18, v7, 3, v18")
    a("v_lshrrev_b32 v6, 1, v4")
    a("v_lshl_add_u32 v18, v6, 11, v18")
    a("s_and_b32 s9, s3, 3")
    a("v_xor_b32 v19, s9, v19")
    a("v_lshl_add_u32 v18, v19, 5, v18")
    a("s_lshr_b32 s8, s3, 2")
    a("s_lshl_b32 s8, s8, 13")
    a("v_add_u32 v8, s8, v18")
    a("v_add_u32 v9, 49152, v8")
    a("v_add_u32 v10, 98304, v8")
    sparse_lane(a, 11, 22, HP2, H2)
    for j in range(4):
        a(f"v_mov_b32 v{AC+j}, 0")
    a("v_lshrrev_b32 v12, 2, v3")
    a(f"v_mul_u32_u24 v17, {2*HP2}, v12")
    a(f"v_mul_u32_u24 v12, {PS}, v12")
    a("v_lshl_add_u32 v12, v7, 4, v12")
    a("v_lshl_add_u32 v12, v6, 6, v12")
    a("s_lshl_b32 s8, s5, 3")
    a("s_sub_u32 s8, s8, 80")
    a("s_cmp_lt_u32 s2, 80")
    a("s_cselect_b32 s8, 32, s8")
    a("s_cselect_b32 s13, 4, 8")
    a("s_cselect_b32 s15, 8, 6")
    a("s_add_u32 s8, s8, s3")
    a(f"s_mul_i32 s8, s8, {4*PS}")
    a("s_lshl_b32 s9, s4, 7")
    a("s_add_u32 s8, s8, s9")
    a(f"s_add_u32 s8, s8, {WS_PART}")
    a("v_add_u32 v12, s8, v12")
    a("s_sub_u32 s9, s3, 3")
    a("s_mul_i32 s8, s4, 9")
    a("s_add_u32 s8, s8, s9")
    a("s_lshl_b32 s8, s8, 12")
    a(f"s_add_u32 s8, s8, {WS_H}")
    a("v_lshl_add_u32 v16, v2, 5, s8")
    a("v_lshl_add_u32 v17, v4, 5, v17")
    a("v_lshl_add_u32 v17, v7, 3, v17")
    a("s_lshl_b32 s9, s9, 7")
    a(f"s_add_u32 s9, s9, {H2}")
    a("v_add_u32 v17, s9, v17")
    a("s_mov_b32 s10, 0xffff")
    a("s_mov_b32 s11, 0xffff")
    a("s_movk_i32 s78, 0xff")
    a("s_mov_b32 s76, 0x07060302")

    def frag(b):
        for q in range(4):
            a(f"ds_read_b64_tr_b16 {vr(AF+8*b+2*q,2)}, v{8+b//3} offset:{16384*(b%3)+4096*(q>>1)+1024*(q&1)}")
    a("s_cmp_ge_u32 s3, s15")
    a("s_cbranch_scc1 DN_NL")
    a("v_mov_b32 v23, 1")
    a("s_cmp_lt_u32 s2, 80")
    a("s_cbranch_scc1 DN_LS")
    a(f"s_waitcnt vmcnt({DNL*16//6})")
    a("s_branch DN_LP")
    a.lab("DN_LS")
    a(f"s_waitcnt vmcnt({DNL})")
    if env("BLATE", 0):
        a("s_mov_b64 exec, s[80:81]")
        a("s_cbranch_execz DN_NOB")
        a(f"global_store_dwordx2 v55, v[48:49], {sr(P_WS,2)} sc1")
        a.lab("DN_NOB")
        a("s_mov_b64 exec, -1")
    a.lab("DN_LP")
    post(a, 21, C1, 23)
    a.lab("DN_NL")
    a("s_cmp_ge_u32 s3, s13")
    a("s_cbranch_scc1 DN_NOF")
    spin(a, 21, C1, "ne", "s15", 23, 9, sleep=2)
    for b in range(9 - DNL):
        frag(b)
    a.lab("DN_NOF")
    a("s_waitcnt vmcnt(0) lgkmcnt(0)")
    a("s_barrier")
    a.stamp(3)
    a("s_cmp_ge_u32 s3, s13")
    a("s_cbranch_scc1 DN_NOF2")
    for b in range(9 - DNL, 9):
        frag(b)
    a.lab("DN_NOF2")
    a("s_cmp_lt_u32 s3, 3")
    a("s_cbranch_scc1 DN_W")
    a("s_mov_b32 s12, 0")
    a.lab("DN_POLL")
    a("s_add_u32 s12, s12, 1")
    a(f"s_and_b32 s8, s12, {env('BEV', 63)}")
    a("s_cselect_b32 s8, 0, 2048")
    a("v_add_u32 v20, s8, v16")
    a(f"global_load_dwordx4 {vr(BF,4)}, v20, {sr(P_WS,2)} sc1")
    a(f"global_load_dwordx4 {vr(BF+4,4)}, v20, {sr(P_WS,2)} offset:16 sc1")
    a("s_waitcnt vmcnt(0)")
    a(f"v_xor_b32 v20, v{BF}, v14")
    for r in range(BF + 1, BF + 8):
        a(f"v_bitop3_b32 v20, v20, v{r}, v14 bitop3:0xf6")
    a("v_and_b32 v20, 0xffff, v20")
    a("v_cmp_ne_u32 vcc, 0, v20")
    a(f"s_cmp_ge_u32 s12, {4*SPIN}")
    a("s_cbranch_scc1 DN_GOT")
    a("s_cbranch_vccnz DN_POLL")
    a.lab("DN_GOT")
    for p in range(4):
        a(f"v_perm_b32 v{BF+8+p}, v{BF+4*(p&1)+2+(p>>1)}, v{BF+4*(p&1)+(p>>1)}, s76")
    a(f"ds_write_b64 v17, {vr(BF+8,2)}")
    a(f"ds_write_b64 v17, {vr(BF+10,2)} offset:{HP2}")
    a.lab("DN_W")
    a("s_waitcnt lgkmcnt(0)")
    a("s_barrier")
    a.stamp(5)
    a("s_cmp_ge_u32 s3, s13")
    a("s_cbranch_scc1 W_END")
    for b in range(9):
        a(f"ds_read_b128 {vr(BF+4*b,4)}, v11 offset:{128*b}")
    for b in range(9):
        a(f"s_waitcnt lgkmcnt({8-b})")
        a(f"v_smfmac_f32_16x16x64_bf16 {vr(AC,4)}, {vr(BF+4*b,4)}, {vr(AF+8*b,8)}, v22")
    S = 136
    a.nop(8)
    a(f"v_add_f32 v{S}, v{AC}, v{AC+1}")
    a(f"v_add_f32 v{S+1}, v{AC+2}, v{AC+3}")
    a(f"v_bfi_b32 v{S+2}, s78, v14, v{S}")
    a(f"v_bfi_b32 v{S+3}, s78, v14, v{S+1}")
    a(f"v_bfi_b32 v{S}, s78, v14, v{S}")
    a(f"v_bfi_b32 v{S+1}, s78, v14, v{S+1}")
    a.nop(1)
    a(f"v_permlane16_swap_b32 v{S}, v{S+2}")
    a(f"v_permlane16_swap_b32 v{S+1}, v{S+3}")
    a("s_mov_b64 exec, s[10:11]")
    a(f"global_store_dwordx4 v12, {vr(S,4)}, {sr(P_WS,2)} sc1")
    a(f"s_cmp_lg_u32 s3, {env('HWV', 3)}")
    a("s_cbranch_scc1 DN_NOHINT")
    a("s_lshl_b32 s8, s4, 7")
    a("s_lshl_b32 s9, s5, 2")
    a("s_add_u32 s8, s8, s9")
    a("v_mov_b32 v20, s8")
    a(f"global_store_dword v20, v14, {sr(P_WS,2)} offset:{WS_HINT-36}")
    if env("WBD", 0):
        a("s_cmp_ge_u32 s2, 80")
        a("s_cbranch_scc1 DN_NOHINT")
        if env("WBD", 0) > 1:
            a(f"s_sleep {env('WBD', 0)}")
        a("buffer_wbl2 sc1")
    a("s_cmp_lg_u32 s2, 72")
    a("s_cbranch_scc1 DN_NOHINT")
    a("v_mov_b32 v20, 0")
    a(f"global_store_dword v20, v14, {sr(P_WS,2)} sc1")
    a.lab("DN_NOHINT")
    a.stamp(6)
    a.end()


def pf_gu(a, sq, r0, vbase, vt):
    a(f"s_mul_i32 s8, s{sq}, 7282")
    a("s_lshr_b32 s8, s8, 16")
    a("s_mul_i32 s9, s8, 9")
    a(f"s_sub_u32 s9, s{sq}, s9")
    a("s_lshl_b32 s9, s9, 7")
    a("s_bitcmp1_b32 s8, 0")
    a(f"s_cselect_b32 s12, s{P_WU}, s{P_WG}")
    a(f"s_cselect_b32 s13, s{P_WU+1}, s{P_WG+1}")
    if UROT:
        a(f"s_cselect_b32 s14, {UROT}, 0")
    a("s_lshr_b32 s8, s8, 1")
    a(f"s_add_u32 s8, s8, {r0}")
    if UROT:
        a("s_add_u32 s8, s8, s14")
        a("s_cmp_ge_u32 s8, 9")
        a("s_cselect_b32 s14, 9, 0")
        a("s_sub_u32 s8, s8, s14")
    a(f"s_mul_i32 s8, s8, {64*9216}")
    a("s_add_u32 s8, s8, s9")
    a(f"v_add_u32 v{vt}, s8, v{vbase}")
    a(f"global_load_dword v{vt+1}, v{vt}, s[12:13] {PFL}")


SG, SU, SD, SX, SDB, SW = 52, 56, 60, 64, 68, 72


def ffn_round(a, h):
    i = h >> 1
    a(f"s_add_u32 m0, s15, {8192*i+L_UP*(h&1)}")
    a(f"s_add_u32 s8, s14, {64*9216*((i+UROT*(h&1))%9)}")
    a(f"buffer_load_dwordx4 v5, {sr(SU if h & 1 else SG,4)}, s8 offen {os.environ.get('WFL', '')} lds")


def ffn_pro(a):
    a.lab("F_PRO")
    a("s_mul_i32 s6, s4, 9")
    a("s_add_u32 s6, s6, s5")
    a("v_lshrrev_b32 v6, 3, v2")
    a("v_and_b32 v7, 2, v6")
    a("v_mad_u32_u24 v7, v7, 3, v6")
    a("v_mul_u32_u24 v5, 9216, v7")
    a("v_and_b32 v7, 6, v6")
    a("v_xor_b32 v7, v7, v2")
    a("v_and_b32 v7, 7, v7")
    a("v_lshl_add_u32 v5, v7, 4, v5")
    a("s_and_b32 s8, s3, 1")
    a("s_lshr_b32 s9, s3, 1")
    a("s_lshl_b32 s9, s9, 3")
    a("s_add_u32 s8, s8, s9")
    a(f"s_mul_i32 s14, s8, {2*9216}")
    a("s_lshl_b32 s8, s6, 7")
    a("s_add_u32 s14, s14, s8")
    a("s_lshl_b32 s15, s3, 10")
    a(f"s_mov_b32 s{SG+2}, 5308416")
    a(f"s_mov_b32 s{SG+3}, 0x20000")
    a(f"s_mov_b32 s{SU+2}, 5308416")
    a(f"s_mov_b32 s{SU+3}, 0x20000")
    a("s_waitcnt lgkmcnt(0)")
    a(f"s_mov_b64 {sr(SG,2)}, {sr(P_WG,2)}")
    a(f"s_mov_b64 {sr(SU,2)}, {sr(P_WU,2)}")
    a("s_barrier")
    a("s_branch F_MAIN")


C1, C2, C3 = SELL - M3, SELL - M3 + 4, SELL - M3 + 8


def ffn_main(a):
    a.lab("F_MAIN")
    issue = lambda n: ffn_round(a, n)
    NG = 18
    a("v_and_b32 v7, 7, v2")
    if TLB:
        a("s_cmp_ge_u32 s3, 2")
        a("s_cbranch_scc1 F_NOTLB")
        a(f"v_and_b32 v8, {TLB-1}, v2")
        a(f"v_mul_u32_u24 v8, {576//TLB*9216}, v8")
        a("s_lshl_b32 s8, s6, 7")
        a(f"s_add_u32 s8, s8, {(576//TLB-1)*9216}")
        a("v_add_u32 v8, s8, v8")
        a("s_cmp_eq_u32 s3, 0")
        a(f"s_cselect_b32 s12, s{P_WU}, s{P_WG}")
        a(f"s_cselect_b32 s13, s{P_WU+1}, s{P_WG+1}")
        a("global_load_dword v23, v8, s[12:13]")
        a.lab("F_NOTLB")
    for i in range(RA):
        issue(i)
    if RA == 0:
        a("v_mov_b32 v8, 0")
        a(f"global_load_dword v23, v8, {sr(P_WR,2)}")
    a("s_and_b32 s12, s3, 3")
    a("v_and_b32 v18, 1, v4")
    a("v_bfe_u32 v6, v2, 2, 2")
    a("v_lshl_add_u32 v18, v18, 2, v6")
    a("v_lshrrev_b32 v6, 1, v18")
    a("v_xor_b32 v6, s12, v6")
    a("v_lshlrev_b32 v18, 7, v18")
    a("v_lshl_add_u32 v18, v6, 5, v18")
    a("v_and_b32 v6, 3, v2")
    a("v_lshl_add_u32 v18, v6, 3, v18")
    a("v_lshrrev_b32 v6, 1, v4")
    a("v_lshl_add_u32 v18, v6, 11, v18")
    a(f"v_add_u32 v6, {L_UP}, v18")
    a("v_add_u32 v0, 40960, v18")
    a("v_add_u32 v1, 40960, v6")
    sparse_lane(a, 8, 9, XSP, XS)
    a("s_lshl_b32 s8, s6, 12")
    a("s_lshl_b32 s9, s3, 9")
    a("s_add_u32 s8, s8, s9")
    a(f"s_add_u32 s8, s8, {WS_H}")
    a("v_lshl_add_u32 v11, v2, 3, s8")
    a("s_mov_b32 s76, 0xffff")
    a(f"v_mov_b32 v21, {M3}")
    a("v_mov_b32 v22, 1")
    a("s_mov_b32 s10, 0xff00ff00")
    a("s_mov_b32 s11, 0xff00ff00")
    touch(a, "F")
    a("s_waitcnt vmcnt(0)")
    for i in range(RA, RB):
        issue(i)
    for j in range(8):
        a(f"v_mov_b32 v{160+j}, 0")
    a("s_barrier")
    a("ds_read_b32 v14, v21 offset:4")
    AG, XB, AC = 24, 136, 160
    for i in range(RB, NG):
        w = WIN if i < WSW else WIN2
        if i - RA >= w:
            a(f"s_waitcnt vmcnt({w-1})")
        issue(i)
        if env("FST", 0):
            if i in (5, 7, 9, 11, 13, 15, 17):
                a.stamp(1 + (5, 7, 9, 11, 13, 15, 17).index(i))
        elif i == 13:
            a.stamp(1)
    if env("FST", 0):
        a.stamp = lambda i: None
    a.stamp(2)

    NE, NX = 7, 6
    assert LATE == 2 and not UROT

    def rda(i):
        for m in range(2):
            va, o = ((18, 6)[m], 8192 * i) if i < 5 else (m, 8192 * (i - 5))
            for q in range(4):
                a(f"ds_read_b64_tr_b16 {vr(AG+16*(i%NE)+8*m+2*q,2)}, v{va} offset:{o+4096*(q>>1)+1024*(q&1)}")

    def rdx(i):
        a(f"ds_read_b128 {vr(XB+4*(i%NX),4)}, v8 offset:{128*i}")
    a(f"s_waitcnt vmcnt({2*LATE})")
    post(a, 21, C1, 22)
    a("s_cmp_ge_u32 s3, 4")
    a("s_cbranch_scc1 F_LD")
    spin(a, 21, C1, "ne", 8, 23, 9, sleep=0)
    for i in range(NE):
        rda(i)
    if STAGE:
        spin(a, 21, C2, "eq", 0, 23, 9, sleep=0)
        for i in range(NX):
            rdx(i)
        for i in range(NE):
            a(f"s_waitcnt lgkmcnt({NX-1-i+min(max(i-1,0),3) if i < NX else 2})")
            for m in range(2):
                a(f"v_smfmac_f32_16x16x64_bf16 {vr(AC+4*m,4)}, {vr(XB+4*(i%NX),4)}, {vr(AG+16*(i%NE)+8*m,8)}, v9")
            if 1 <= i <= 3:
                rdx(NX + i - 1)
    a.lab("F_LD")
    a("s_waitcnt vmcnt(0)")
    a.stamp(3)
    a("s_barrier")
    a.stamp(4)
    a("s_cmp_ge_u32 s3, 4")
    a("s_cbranch_scc1 W_END")
    q = []
    if STAGE:
        for i in range(NE, 9):
            rda(i)
        for i in range(NE, 9):
            for m in range(2):
                a(f"s_waitcnt lgkmcnt({8*(8-i)+4*(1-m)})")
                a(f"v_smfmac_f32_16x16x64_bf16 {vr(AC+4*m,4)}, {vr(XB+4*(i%NX),4)}, {vr(AG+16*(i%NE)+8*m,8)}, v9")
    for i in range(NX if not STAGE else 0):
        rdx(i)
        q.append(("x", i))
    for i in range(9 if not STAGE else 0):
        hit = [j for j, e in enumerate(q) if e in (("x", i), ("a", i))]
        if hit:
            a(f"s_waitcnt lgkmcnt({min(15, len(q)-1-hit[-1])})")
            del q[:hit[-1] + 1]
        for m in range(2):
            a(f"v_smfmac_f32_16x16x64_bf16 {vr(AC+4*m,4)}, {vr(XB+4*(i%NX),4)}, {vr(AG+16*(i%NE)+8*m,8)}, v9")
        if 1 <= i <= 3:
            rdx(NX + i - 1)
            q.append(("x", NX + i - 1))
        if 1 <= i <= 2:
            rda(NE + i - 1)
            q += [("a", NE + i - 1)] * 8
    a.nop(7)
    a(f"v_add_f32 v24, v{AC}, v{AC+1}")
    a(f"v_add_f32 v25, v{AC+2}, v{AC+3}")
    a(f"v_add_f32 v26, v{AC+4}, v{AC+5}")
    a(f"v_add_f32 v27, v{AC+6}, v{AC+7}")
    for r in range(24, 28):
        a(f"v_cvt_pk_bf16_f32 v{r}, 0, v{r}")
    for op in ("v_mul_f32 v{t}, 0xbfb8aa3b, v{g}", "v_exp_f32 v{t}, v{t}", "v_add_f32 v{t}, 1.0, v{t}", "v_rcp_f32 v{t}, v{t}",
               "v_mul_f32 v{g}, v{g}, v{t}", "v_cvt_pk_bf16_f32 v{g}, 0, v{g}", "v_mul_f32 v{g}, v{g}, v{u}",
               "v_cvt_pk_bf16_f32 v{g}, 0, v{g}", "v_bfi_b32 v{g}, s76, v14, v{g}"):
        for j in range(2):
            a(op.format(g=24 + j, u=26 + j, t=28 + j))
    a(f"global_store_dwordx2 v11, v[24:25], {sr(P_WS,2)}")
    a(f"global_store_dwordx2 v11, v[24:25], {sr(P_WS,2)} offset:2048 sc1")
    a.stamp(6)
    a.end()
    if env("FST", 0):
        del a.stamp


def selector(a):
    a.lab("SEL_MAIN")
    a("v_min_u32 v19, 8, v2")
    a("v_lshlrev_b32 v19, 7, v19")
    a("v_lshlrev_b32 v20, 2, v2")
    PA, K0, IX, CS, CR, T0, T1, L0, C0 = 24, 28, 32, 25, 26, 36, 37, 40, 44
    gran_addr(a, PA, T0, T1)
    a(f"s_mul_i32 s8, s3, {16*KP}")
    a(f"v_add_u32 v{PA}, s8, v{PA}")
    a("s_cmp_eq_u32 s3, 7")
    a("s_cselect_b64 vcc, -1, 0")
    a(f"v_cndmask_b32 v{PA}, v{PA}, v{T0}, vcc")
    a(f"v_add_u32 v{PA}, {WS_KEY}, v{PA}")
    a("s_lshl_b32 s8, s3, 8")
    a("s_sub_u32 s8, 0xfff, s8")
    a(f"v_sub_u32 v{IX}, s8, v20")
    for i in range(1, 4):
        a(f"v_subrev_u32 v{IX+i}, {i}, v{IX}")
    a(f"v_mov_b32 v21, {M3}")
    a("s_lshl_b32 s8, s3, 5")
    a(f"s_add_u32 s8, s8, {CAND}")
    a(f"v_lshl_add_u32 v{CS}, v4, 3, s8")
    a("s_mov_b32 s74, 0x01010101")
    a("s_mov_b32 s75, 0x01010101")
    a("s_lshl_b32 s9, s4, 10")
    a(f"s_add_u32 s9, s9, {WS_REP}")
    a("v_lshl_add_u32 v53, v2, 4, s9")
    a(f"global_load_dword v54, v53, {sr(P_WS,2)} sc1")
    a("v_lshrrev_b32 v52, 3, v2")
    a("v_lshl_add_u32 v52, v52, 6, s9")
    CO = 27
    a(f"v_and_b32 v{CO}, 28, v20")
    a(f"v_add_u32 v{CO}, s8, v{CO}")
    a(f"v_add_u32 v{CR}, {CAND}, v20")
    a("s_mov_b32 s76, 0xffff")
    a("s_mov_b32 s10, 0x00010001")
    a("s_mov_b32 s11, 0x00010001")
    touch(a, "S")
    a("s_barrier")
    a("ds_read_b32 v14, v21 offset:4")
    a.stamp(1)
    a("s_mov_b32 s7, 0")
    a("s_waitcnt lgkmcnt(0)")
    if PW >= 0:
        a(f"s_waitcnt vmcnt({PW})")
    if env("NOK", 0) & 2:
        a("s_branch F_GOT")
    a.lab("F_POLL")
    a(f"global_load_dwordx4 {vr(K0,4)}, v{PA}, {sr(P_WS,2)} sc1")
    a("s_add_u32 s7, s7, 1")
    a("s_waitcnt vmcnt(0)")
    a(f"v_xor_b32 v{T0}, v{K0}, v14")
    for i in range(1, 4):
        a(f"v_bitop3_b32 v{T0}, v{T0}, v{K0+i}, v14 bitop3:0xf6")
    a(f"v_and_b32 v{T0}, 0xffff, v{T0}")
    a(f"v_cmp_ne_u32 vcc, 0, v{T0}")
    a(f"s_cmp_ge_u32 s7, {SPIN}")
    a("s_cbranch_scc1 F_GOT")
    a("s_branch F_GOT" if env("NOK", 0) else "s_cbranch_vccz F_GOT")
    a("s_mov_b64 exec, vcc")
    if PSL:
        a(f"s_sleep {PSL}")
    a("s_branch F_POLL")
    a.lab("F_GOT")
    a("s_mov_b64 exec, -1")
    if env("GPF", 1):
        a(f"global_load_dword v56, v{PA}, {sr(P_WS,2)} offset:128 sc1")
    a.stamp(2)
    for i in range(4):
        a(f"v_bfi_b32 v{K0+i}, s76, v{IX+i}, v{K0+i}")
    a(f"v_max_u32 v{T0}, v{K0}, v{K0+1}")
    a(f"v_min_u32 v{T1}, v{K0}, v{K0+1}")
    a(f"v_max3_u32 v{L0}, v{T0}, v{K0+2}, v{K0+3}")
    a(f"v_med3_u32 v{L0+1}, v{T0}, v{K0+2}, v{K0+3}")
    a(f"v_med3_u32 v{L0+2}, v{T1}, v{K0+2}, v{K0+3}")
    a(f"v_max_u32 v{L0+1}, v{L0+1}, v{T1}")
    a(f"v_min_u32 v{L0+2}, v{L0+2}, v{T0}")
    for r in range(3):
        c = C0 + r
        a(f"v_max_u32_dpp v{c}, v{L0}, v{L0} row_ror:8 {DPPF}")
        for k in (4, 2, 1):
            a.nop(2)
            a(f"v_max_u32_dpp v{c}, v{c}, v{c} row_ror:{k} {DPPF}")
        if r < 2:
            a(f"v_cmp_eq_u32 vcc, v{L0}, v{c}")
            a.nop(2)
            a(f"v_cndmask_b32 v{L0}, v{L0}, v{L0+1}, vcc")
            if r == 0:
                a(f"v_cndmask_b32 v{L0+1}, v{L0+1}, v{L0+2}, vcc")
                a.nop(1)
            else:
                a.nop(2)
    a("s_mov_b64 exec, s[10:11]")
    a(f"ds_write_b64 v{CS}, {vr(C0,2)}")
    a(f"ds_max_u32 v21, v{C0+2}")
    a("s_mov_b64 exec, -1")
    cand = [77, 78, 79, 80, 81, 82, 83, 100]
    for i in range(8):
        a(f"v_readlane_b32 s{cand[i]}, v{C0+(i&1)}, {16*(i>>1)}")
    a(f"ds_read_b32 v48, v{CO}")
    a("v_mov_b32 v49, v14")
    a("s_lshl_b32 s72, s4, 8")
    a("s_lshl_b32 s73, s4, 10")
    a(f"s_add_u32 s73, s73, {WS_SELB}")
    a("s_waitcnt lgkmcnt(0)")
    a("s_barrier")
    a.stamp(7)
    a(f"ds_read_b32 v{T0}, v{CR}")
    a(f"ds_read_b32 v{T1}, v21")
    a("v_not_b32 v50, v48")
    a("v_and_b32 v50, 0x7ff, v50")
    a("v_mul_u32_u24 v50, 1152, v50")
    a("s_waitcnt lgkmcnt(0)")
    a(f"v_cmp_gt_u32 vcc, v{T0}, v{T1}")
    pairs = [18, 20, 22, 24, 26, 28, 30, 34]
    for i in range(8):
        a(f"v_cmp_lt_u32 {sr(pairs[i],2)}, s{cand[i]}, v{T0}")
    a("s_bcnt1_i32_b64 s8, vcc")
    a("s_mov_b64 s[80:81], 0")
    a("s_cmp_lt_u32 s8, 8")
    if not env("NOK", 0):
        a("s_cbranch_scc1 F_SLOW")
    for i in range(8):
        a(f"s_bcnt1_i32_b64 s{pairs[i]}, {sr(pairs[i],2)}")
        a(f"s_lshl_b64 exec, s[74:75], {i}")
        a(f"v_mov_b32 v{T1}, s{pairs[i]}")
    a("s_mov_b64 exec, -1")
    a(f"v_cmp_gt_u32 vcc, 8, v{T1}")
    a(f"v_lshl_add_u32 v52, v{T1}, 3, v52")
    a(f"v_lshl_add_u32 v55, v{T1}, 7, s73")
    a(f"v_lshl_add_u32 v{T1}, v{T1}, 3, s72")
    a("s_and_b64 exec, vcc, exec")
    a("s_cbranch_execz F_REST")
    a(f"global_store_dwordx2 v52, v[48:49], {sr(P_WS,2)}")
    a(f"global_store_dwordx2 v52, v[48:49], {sr(P_WS,2)} offset:512")
    a("s_and_b64 exec, vcc, 0xff")
    a(f"global_store_dwordx2 v{T1}, v[48:49], {sr(P_WS,2)} offset:{WS_SEL}")
    a.stamp(4)
    for k in range(9):
        a(f"global_load_dword v51, v50, {sr(P_U,2)} offset:{128*k}")
    if env("BLATE", 0):
        a("s_mov_b64 s[80:81], exec")
    else:
        a(f"global_store_dwordx2 v55, v[48:49], {sr(P_WS,2)} sc1")
    a.lab("F_REST")
    a("s_mov_b64 exec, -1")
    a("s_branch DN_L2")
    a.lab("F_SLOW")
    KY, TK = 28, 60
    gran_addr(a, 24, 26, 27)
    a(f"v_add_u32 v24, {WS_KEY}, v24")
    a(f"v_add_u32 v26, {WS_KEY}, v26")
    for k in range(8):
        a(f"global_load_dwordx4 {vr(KY+4*k,4)}, v{24 if k < 7 else 26}, {sr(P_WS,2)} sc1")
        a(f"v_add_u32 v24, {16*KP}, v24")
    a("v_sub_u32 v24, 0xfff, v20")
    a("s_waitcnt vmcnt(0)")
    for k in range(32):
        a(f"v_subrev_u32 v25, {256*(k>>2)+(k&3)}, v24")
        a(f"v_bfi_b32 v{KY+k}, s76, v25, v{KY+k}")
    a("s_mov_b32 s77, 0")
    a("s_mov_b32 s7, 0")
    a.lab("F_SLOOP")
    for j in range(32):
        a(f"v_subrev_u32 v{TK+j}, s77, v{KY+j}")
    a(f"v_max_u32 v{TK}, v{TK}, v{TK+1}")
    for j in range(15):
        a(f"v_max3_u32 v{TK}, v{TK}, v{TK+2+2*j}, v{TK+3+2*j}")
    for m in ("row_shr:1 " + DPPF, "row_shr:2 " + DPPF, "row_shr:4 " + DPPF, "row_shr:8 " + DPPF,
              "row_bcast:15 row_mask:0xa bank_mask:0xf", "row_bcast:31 row_mask:0xc bank_mask:0xf"):
        a.nop(2)
        a(f"v_max_u32_dpp v{TK}, v{TK}, v{TK} {m}")
    a.nop(1)
    a(f"v_readlane_b32 s8, v{TK}, 63")
    a("s_add_u32 s77, s77, s8")
    a("s_add_u32 s7, s7, 1")
    a("s_cmp_le_u32 s7, s3")
    a("s_cbranch_scc1 F_SLOOP")
    a("s_mov_b64 exec, 1")
    a("v_mov_b32 v48, s77")
    a("v_mov_b32 v49, v14")
    a("s_lshl_b32 s8, s3, 3")
    a("s_add_u32 s8, s8, s72")
    a("v_mov_b32 v50, s8")
    a(f"global_store_dwordx2 v50, v[48:49], {sr(P_WS,2)} offset:{WS_SEL}")
    a("s_lshl_b32 s8, s3, 7")
    a("s_add_u32 s8, s8, s73")
    a("v_mov_b32 v50, s8")
    a(f"global_store_dwordx2 v50, v[48:49], {sr(P_WS,2)} sc1")
    a("s_branch F_REST")


def ck_pro(a):
    a.lab("CK_PRO")
    a("s_and_b32 s7, s3, 3")
    a("s_lshr_b32 s12, s3, 2")
    a("s_lshl_b32 s8, s6, 2")
    a("s_add_u32 s8, s8, s7")
    a("s_lshl_b32 s9, s8, 8")
    a("v_lshl_add_u32 v6, v2, 2, s9")
    a("s_lshl_b32 s8, s8, 1")
    a("v_mov_b32 v7, s8")
    a("v_mov_b32 v18, 0")
    a("s_waitcnt lgkmcnt(0)")
    a(f"global_load_short_d16_hi v18, v7, {sr(P_LDT,2)}")
    for k in range(6):
        a(f"global_load_dword v{28+k}, v6, {sr(P_ARE+2*k,2)}")
    if env("PST", 0):
        a.stamp(3)
    a("s_barrier")
    if env("PST", 0):
        a.stamp(4)
    a("s_branch CK_MAIN")


def cmul(a, d, x, y, t):
    a(f"v_pk_mul_f32 {vr(t,2)}, {vr(x,2)}, {vr(y,2)} op_sel:[1,1] op_sel_hi:[1,0]")
    a(f"v_pk_fma_f32 {vr(d,2)}, {vr(x,2)}, {vr(y,2)}, {vr(t,2)} op_sel:[0,0,0] op_sel_hi:[0,1,1] neg_lo:[0,0,1]")


ZC = 140


def zconst(a):
    S, H = 76, 80
    a("v_lshlrev_b32 v74, 3, v4")
    a("v_sub_u32 v74, v74, v3")
    a("v_and_b32 v74, 0xffff, v74")
    a("v_lshl_or_b32 v74, v74, 16, v74")
    a("v_mov_b32 v75, 0x3f803f80")
    a("s_mul_i32 s8, s7, 0x20002")
    a("s_add_u32 s8, s8, 0xfff0fff1")
    a(f"v_pk_add_u16 v{S}, v74, s8")
    th = (3, 4, 5, 6, 11, 12, 13)
    for i, t in enumerate(th):
        a(f"v_pk_add_u16 v{H+i}, v{S}, {t-1} op_sel_hi:[1,0]")
        a(f"v_pk_ashrrev_i16 v{H+i}, 15, v{H+i} op_sel_hi:[0,1]")
    a("s_lshl_b32 s8, s7, 2")
    a(f"s_add_u32 s8, s8, {ZM}")
    a("v_lshl_add_u32 v74, v2, 4, s8")
    for m, (lo, hi) in enumerate(((3, 6), (6, 11), (5, 12), (4, 13), (3, 5))):
        x, y = H + th.index(lo), H + th.index(hi)
        if m < 4:
            a(f"v_bitop3_b32 v{H+8+m}, v{x}, v{y}, v75 bitop3:0x28")
        else:
            a(f"v_xor_b32 v{H+8+m}, v{x}, v{y}")
        a(f"ds_write_b32 v74, v{H+8+m} offset:{1024*m}")


def ck_main(a):
    a.lab("CK_MAIN")
    if env("PST", 0):
        a.stamp(5)
    a(f"s_mul_i32 s13, s7, {CHP}")
    a(f"s_add_u32 s13, s13, {CH0}")
    a("s_lshr_b32 s14, s7, 1")
    a(f"s_mul_i32 s14, s14, {STG2}")
    a("s_and_b32 s8, s7, 1")
    a("s_lshl_b32 s8, s8, 9")
    a("s_add_u32 s14, s14, s8")
    a("s_lshl_b32 s8, s12, 8")
    a("s_add_u32 m0, s14, s8")
    for j in range(4):
        a(f"v_mov_b32 v{124+j}, 0")
    a("s_lshl_b32 s8, s12, 11")
    a("s_add_u32 s8, s8, s13")
    a("v_lshl_add_u32 v20, v2, 4, s8")
    a("ds_write_b128 v20, v[124:127]")
    a("ds_write_b128 v20, v[124:127] offset:1024")
    a(f"v_mul_u32_u24 v128, {TSP}, v3")
    a("v_lshl_add_u32 v128, v4, 4, v128")
    a("v_add_u32 v128, s14, v128")
    a("s_lshl_b32 s8, s3, 2")
    a(f"s_add_u32 s9, s8, {SYN+32}")
    a("v_mov_b32 v129, s9")
    a("s_xor_b32 s8, s8, 16")
    a(f"s_add_u32 s9, s8, {SYN+32}")
    a("v_mov_b32 v130, s9")
    a("v_mov_b32 v21, 0x3c00")
    a(f"ds_write_addtid_b32 v21 offset:{41*TSP}")
    a(f"v_mov_b32 v22, {L2E:#x}")
    a(f"v_mov_b32 v23, {L2E_LO:#x}")
    a(f"v_mov_b32 v24, {L2E:#x}")
    a(f"v_mov_b32 v25, {INV2PI:#x}")
    a("s_mov_b32 s15, 0x7fff7fff")
    a("s_cmp_eq_u32 s12, 0")
    a("s_mov_b32 s73, 0x01000c0c")
    a("s_cselect_b32 s73, s73, 0x03020c0c")
    a("s_waitcnt vmcnt(6)")
    a("v_mul_f32 v19, v18, v22")
    a("v_fma_f32 v22, v18, v22, -v19")
    a("v_exp_f32 v19, v19")
    a("v_fma_f32 v22, v18, v23, v22")
    a(f"v_mul_f32 v22, {LN2:#x}, v22")
    a("v_fma_f32 v19, v19, v22, v19")
    a("v_cvt_pk_bf16_f32 v19, v19, v19")
    a("v_and_b32 v18, 0xffff0000, v19")
    a("v_pk_mul_f32 v[24:25], v[24:25], v[18:19] op_sel_hi:[1,0]")
    a("s_waitcnt vmcnt(0)")
    a.stamp(1)
    X, W, E1, Q, R, QC, T1, T2 = 40, 56, 58, 60, 62, 64, 66, 68
    Z = 8
    for k in range(4):
        a(f"v_and_b32 v{14+k}, s15, v{30+k}")
    for k in range(6):
        a(f"v_perm_b32 v{8+k}, v{28+k}, v{28+k}, s73")
    a("v_pk_max_u16 v14, v14, v15")
    a("v_pk_max_u16 v16, v16, v17")
    a("v_lshlrev_b32 v15, 16, v14")
    a("v_lshlrev_b32 v17, 16, v16")
    a("v_pk_mul_f32 v[14:15], v[14:15], v[16:17]")
    a(f"v_pk_mul_f32 {vr(Z,2)}, {vr(Z,2)}, v[24:25]")
    a("v_max_f32 v14, v14, v15")
    a("v_pk_mul_f32 v[10:11], v[10:11], v[18:19] op_sel_hi:[1,0]")
    a("v_mul_f32 v14, v14, v18")
    dpp = ["row_shr:1 " + DPPF, "row_shr:2 " + DPPF, "row_shr:4 " + DPPF, "row_shr:8 " + DPPF,
           "row_bcast:15 row_mask:0xa bank_mask:0xf", "row_bcast:31 row_mask:0xc bank_mask:0xf"]
    fill = []
    b = Asm()
    cmul(b, W, 12, 10, T1)
    b(f"v_mul_f32 v{Q}, {fbits(8):#x}, v{Z}")
    b(f"v_mul_f32 v{Q+1}, {fbits(-8):#x}, v{Z+1}")
    b(f"v_mul_f32 v{R}, {fbits(128):#x}, v{Z}")
    b(f"v_mul_f32 v{R+1}, {fbits(128):#x}, v{Z+1}")
    b(f"v_fract_f32 v{E1+1}, v{Z+1}")
    b(f"v_fract_f32 v{Q+1}, v{Q+1}")
    b(f"v_fract_f32 v{R+1}, v{R+1}")
    b(f"v_exp_f32 v20, v{Z}")
    b(f"v_exp_f32 v22, v{Q}")
    b(f"v_exp_f32 v26, v{R}")
    for r_ in (Q, E1, R):
        b(f"v_cos_f32 v{r_}, v{r_+1}")
        b(f"v_sin_f32 v{r_+1}, v{r_+1}")
    fill = b.L
    fi = 0
    for m in dpp:
        a.L += fill[fi:fi + 2]
        fi += 2
        a(f"v_max_u32_dpp v14, v14, v14 {m}")
    a.L += fill[fi:fi + 1]
    fi += 1
    a("v_readlane_b32 s8, v14, 63")
    a.L += fill[fi:]
    a("s_lshr_b32 s8, s8, 23")
    a("s_sub_i32 s8, 258, s8")
    a("s_max_i32 s8, s8, 1")
    a("s_min_i32 s8, s8, 253")
    a("s_lshl_b32 s10, s8, 23")
    a(f"v_pk_mul_f32 {vr(Q,2)}, {vr(Q,2)}, v[22:23] op_sel_hi:[1,0]")
    a(f"v_pk_mul_f32 {vr(E1,2)}, {vr(E1,2)}, v[20:21] op_sel_hi:[1,0]")
    a(f"v_pk_mul_f32 {vr(R,2)}, {vr(R,2)}, v[26:27] op_sel_hi:[1,0]")
    a(f"v_pk_mul_f32 {vr(W,2)}, {vr(W,2)}, s[10:11] op_sel_hi:[1,0]")
    cnt = [0]

    def emit(row, x):
        o = 70 + cnt[0] % 4
        cnt[0] += 1
        a(f"v_cvt_pk_f16_f32 v{o}, v{x}, v{x+1}")
        if env("KSKIP", 0) != 2:
            a(f"ds_write_addtid_b32 v{o} offset:{row*TSP}")

    xc = lambda c: X + 2 * (c - 1)
    if env("KSKIP", 0) == 1:
        a("s_branch CK_SKIP")
    emit(42, Q)
    emit(40, W)
    for c in range(1, 9):
        cmul(a, xc(c), W if c == 1 else xc(c - 1), E1, T1)
        emit(c - 1, xc(c))
    for c in range(1, 9):
        cmul(a, xc(c), xc(c), R, T1)
        emit(8 + c - 1, xc(c))
    for aa in (2, 3):
        for c in (2, 4, 6, 8):
            cmul(a, xc(c), xc(c), R, T1)
            emit(16 + 4 * (aa - 2) + c // 2 - 1, xc(c))
    for aa in range(4, 8):
        for c in (4, 8):
            cmul(a, xc(c), xc(c), R, T1)
            emit(24 + 2 * (aa - 4) + c // 4 - 1, xc(c))
    for aa in range(8, 16):
        cmul(a, xc(8), xc(8), R, T1)
        emit(32 + aa - 8, xc(8))
    for bb in range(2, 16):
        cmul(a, QC, Q if bb == 2 else QC, Q, T1)
        emit(41 + bb, QC)
    a.lab("CK_SKIP")
    a.stamp(2)
    a("ds_write_b32 v129, v129")
    a("s_mov_b32 s9, 0")
    a.lab("CK_PAIR")
    a("ds_read_b32 v8, v130")
    a("s_add_u32 s9, s9, 1")
    a("s_waitcnt lgkmcnt(0)")
    a("v_cmp_eq_u32 vcc, 0, v8")
    a("s_cmp_ge_u32 s9, 0x40000")
    a("s_cbranch_scc1 CK_PAIRED")
    a("s_cbranch_vccnz CK_PAIR")
    a.lab("CK_PAIRED")
    a.stamp(7)
    CF, RF, RF2, AC = 8, 40, 72, 104
    a("s_sub_u32 s8, 254, s8")
    a("s_lshl_b32 s15, s8, 23")
    a("s_cmp_eq_u32 s12, 0")
    a("s_cbranch_scc0 CK_T1")
    for q in range(8):
        a(f"ds_read_b128 {vr(CF+4*q,4)}, v128 offset:{41*TSP+64*q}")
        a(f"ds_read_b128 {vr(RF+4*q,4)}, v128 offset:{64*q}")
    a("v_lshrrev_b32 v114, 1, v4")
    a("v_lshlrev_b32 v114, 8, v114")
    a("v_lshl_add_u32 v114, v3, 4, v114")
    a("v_and_b32 v115, 1, v4")
    a("v_lshl_add_u32 v114, v115, 3, v114")
    a("v_add_u32 v114, s13, v114")
    a("v_lshlrev_b32 v115, 5, v3")
    a("v_lshl_add_u32 v115, v4, 3, v115")
    a("v_add_u32 v115, s13, v115")
    a("v_mov_b32 v116, s13")
    for q in range(8):
        a(f"s_waitcnt lgkmcnt({min(15, 14-2*q+q)})")
        a(f"v_mfma_f32_16x16x32_f16 {vr(AC,4)}, {vr(RF+4*q,4)}, {vr(CF+4*q,4)}, {'0' if q == 0 else vr(AC,4)}")
        a(f"ds_read_b128 {vr(RF2+4*q,4)}, v128 offset:{32*TSP+64*q}")
    for q in range(8):
        a(f"s_waitcnt lgkmcnt({7-q})")
        a(f"v_mfma_f32_16x16x32_f16 {vr(AC+4,4)}, {vr(CF+4*q,4)}, {vr(RF2+4*q,4)}, {'0' if q == 0 else vr(AC+4,4)}")
    for j in range(4):
        a(f"v_mul_f32 v{AC+j}, s15, v{AC+j}")
    a(f"v_cvt_pk_bf16_f32 v118, v{AC}, v{AC+1}")
    a(f"v_cvt_pk_bf16_f32 v119, v{AC+2}, v{AC+3}")
    a(f"v_cvt_pk_bf16_f32 v120, v{AC+1}, v{AC+2}")
    a(f"v_cvt_pk_bf16_f32 v121, v{AC+3}, v{AC+3}")
    a(f"ds_write_b16 v114, v121 offset:{TO+4*(7+3)}")
    a(f"ds_write_b64 v114, v[120:121] offset:{TE+4*(7+1)}")
    a(f"ds_write_b64 v114, v[118:119] offset:{TO+4*(7+1)}")
    a(f"ds_write_b16 v114, v118 offset:{TE+4*7+2}")
    for j in range(4, 8):
        a(f"v_mul_f32 v{AC+j}, s15, v{AC+j}")
    a(f"v_cvt_pk_bf16_f32 v118, v{AC+4}, v{AC+5}")
    a(f"v_cvt_pk_bf16_f32 v119, v{AC+6}, v{AC+7}")
    a("s_mov_b32 s10, 0x00ff00ff")
    a("s_mov_b32 s11, 0x00ff00ff")
    a("s_mov_b64 exec, s[10:11]")
    a(f"ds_write_b64 v115, v[118:119] offset:{TS3+64}")
    a("s_mov_b64 exec, 0x100")
    a(f"ds_write_b16 v116, v118 offset:{TE+4*7}")
    a(f"ds_write_b16 v116, v118 offset:{TO+4*7+2}")
    a("s_mov_b64 exec, -1")
    a.stamp(6)
    d_wave(a)
    a.lab("CK_T1")
    for q in range(8):
        a(f"ds_read_b128 {vr(CF+4*q,4)}, v128 offset:{41*TSP+64*q}")
        a(f"ds_read_b128 {vr(RF+4*q,4)}, v128 offset:{16*TSP+64*q}")
    a("v_lshlrev_b32 v114, 8, v4")
    a("v_lshl_add_u32 v114, v3, 4, v114")
    a("v_add_u32 v114, s13, v114")
    a("v_lshlrev_b32 v115, 7, v4")
    a("v_lshl_add_u32 v115, v3, 2, v115")
    a("v_add_u32 v115, s13, v115")
    for q in range(8):
        a(f"s_waitcnt lgkmcnt({14-2*q})")
        a(f"v_mfma_f32_16x16x32_f16 {vr(AC,4)}, {vr(RF+4*q,4)}, {vr(CF+4*q,4)}, {'0' if q == 0 else vr(AC,4)}")
    a.nop(8)
    for j in range(4):
        a(f"v_mul_f32 v{AC+j}, s15, v{AC+j}")
    a(f"v_cvt_pk_bf16_f32 v116, v{AC}, v{AC+1}")
    a(f"v_cvt_pk_bf16_f32 v117, v{AC+1}, v{AC+1}")
    a(f"v_cvt_pk_bf16_f32 v118, v{AC+2}, v{AC+3}")
    a(f"v_cvt_pk_bf16_f32 v119, v{AC+3}, v{AC+3}")
    a(f"v_cvt_pk_bf16_f32 v120, v{AC+1}, v{AC+2}")
    a("s_mov_b32 exec_hi, 0")
    a(f"ds_write_b16 v114, v119 offset:{TE+512+4*(7+5)}")
    a(f"v_add_u32 v121, {TO+512}, v114")
    a(f"ds_write_b128 v114, v[116:119] offset:{TE+512+4*(7+1)}")
    a(f"ds_write2_b32 v121, v119, v119 offset0:{7+4} offset1:{7+5}")
    a(f"ds_write2_b32 v121, v117, v120 offset0:{7+2} offset1:{7+3}")
    a(f"ds_write_b16 v121, v116 offset:{4*(7+1)+2}")
    a("s_not_b64 exec, exec")
    a(f"ds_write_b32 v115, v116 offset:{TS2+128-256}")
    a(f"ds_write_b32 v115, v118 offset:{TS2+128-256+64}")
    a("s_mov_b64 exec, -1")
    z_wave(a)


def pf_item(a, sm, tag):
    ng = 9 - CR0
    a(f"s_cmp_ge_u32 s{sm}, {ng}")
    a(f"s_cbranch_scc1 CPF_D{tag}")
    a(f"s_mul_i32 s14, s{sm}, 18")
    a("s_add_u32 s14, s14, s101")
    a("v_mul_u32_u24 v140, 9216, v2")
    a("s_mul_i32 s8, s4, 1152")
    a("v_add_u32 v140, s8, v140")
    pf_gu(a, 14, CR0, 140, 148)
    a(f"s_branch CPF_X{tag}")
    a.lab(f"CPF_D{tag}")
    a(f"s_sub_u32 s14, s{sm}, {ng}")
    a("s_mul_i32 s14, s14, 18")
    a("s_add_u32 s14, s14, s101")
    a("s_min_u32 s14, s14, 80")
    a("s_mul_i32 s8, s4, 81")
    a("s_add_u32 s8, s8, 80")
    a("s_sub_u32 s8, s8, s14")
    a("s_lshl_b32 s8, s8, 13")
    a("v_lshl_add_u32 v148, v2, 7, s8")
    a(f"global_load_dword v149, v148, {sr(P_WD,2)} {PFL}")
    a.lab(f"CPF_X{tag}")


def c3_item(a, sq):
    a("s_sub_u32 s14, 3, s4")
    a("s_and_b32 s14, s14, 7")
    a(f"s_and_b32 s8, s{sq}, 1")
    a("s_lshl_b32 s8, s8, 3")
    a(f"s_lshr_b32 s9, s{sq}, 1")
    a("s_cmp_eq_u32 s4, 3")
    a("s_cselect_b32 s14, s8, s14")
    a(f"s_cselect_b32 s9, s9, s{sq}")
    a(f"s_add_u32 s9, s9, {env('C3H', 4)}")
    a("s_min_u32 s9, s9, 17")
    a("s_mul_i32 s9, s9, 9")
    a("s_add_u32 s14, s14, s9")
    a("v_mul_u32_u24 v140, 9216, v2")
    a("s_mul_i32 s8, s4, 1152")
    a("v_add_u32 v140, s8, v140")
    pf_gu(a, 14, 0, 140, 148)


def y_addr(a, v):
    a(f"v_mov_b32 v{v+3}, {SYN}")
    a(f"v_mov_b32 v{v+2}, 1")
    a("s_lshl_b32 s8, s7, 2")
    a(f"v_add_u32 v131, s8, v{v+3}")
    a("s_mov_b64 exec, 1")
    a(f"ds_add_u32 v131, v{v+2} offset:{CT}")
    a(f"ds_add_u32 v{v+3}, v{v+2} offset:{CK8}")
    a("s_mov_b64 exec, -1")
    a(f"v_mul_u32_u24 v{v}, 320, v4")
    a(f"v_lshl_add_u32 v{v}, v3, 4, v{v}")
    a(f"s_mul_i32 s8, s7, {YCH}")
    a(f"v_add_u32 v{v}, s8, v{v}")
    a("s_lshl_b32 s8, s3, 2")
    a(f"s_add_u32 s8, s8, {SYN+FLG}")
    a(f"v_mov_b32 v{v+1}, s8")


def d_wave(a):
    T, UR, AC = 8, 76, 108
    NR = 8
    y_addr(a, 124)
    a("v_and_b32 v5, 1, v3")
    a(f"v_mul_u32_u24 v5, {TO}, v5")
    a(f"v_sub_u32 v5, {TO+48}, v5")
    a("v_lshrrev_b32 v6, 1, v3")
    a("v_lshl_add_u32 v5, v6, 2, v5")
    a("v_lshlrev_b32 v6, 4, v4")
    a("v_sub_u32 v5, v5, v6")
    a("v_add_u32 v5, s13, v5")
    a("v_add_u32 v7, 576, v5")
    a("v_lshl_add_u32 v6, v3, 5, v6")
    a(f"v_add_u32 v6, {U0-480}, v6")
    a("v_add_u32 v6, s13, v6")
    spin(a, 131, CT, "ne", 2, 128, 9, sleep=0)
    for kp in (7, 6, 5, 4, 3, 2, 1, 0, 15, 14, 13, 12, 11, 10, 9, 8, 16):
        va, o = (5, 16 * kp) if kp < 9 else (7, 16 * (kp - 9))
        a(f"ds_read2_b32 {vr(T+4*kp,2)}, v{va} offset0:{o+3} offset1:{o+2}")
        a(f"ds_read2_b32 {vr(T+4*kp+2,2)}, v{va} offset0:{o+1} offset1:{o}")
    a.stamp(3)
    spin(a, 127, CK8, "ne", 12, 128, 9)
    a.lab("D_PASS")
    spin(a, 127, CCONV, "ne", 2, 128, 9, mask=15)
    a.stamp(4)
    a.lab("D_LOOP")
    if env("CLK", 0):
        a("s_memtime s[78:79]")
    AH = NR - 1
    started = set()
    for lo, hi in ((-7, 25), (25, 57)):
        q = []
        side = []
        nm = [0]

        def rd(b):
            a(f"ds_read_b128 {vr(UR+4*(b%NR),4)}, v6 offset:{64*(b+7)}")
            q.append(("r", b))
        if lo == 25:
            if env("CLK", 0):
                a("s_memtime s[80:81]")
                a("s_waitcnt lgkmcnt(0)")
                a("s_sub_u32 s80, s80, s78")
                a("s_add_u32 s98, s84, s80")
            if not env("KST", 0):
                a.stamp(1)
            spin(a, 127, CCONV, "ne", 34, 128, 9)
            if not env("KST", 0):
                a.stamp(2)
        for b in range(lo, lo + AH):
            rd(b)
        for beta in range(lo, hi):
            pos = q.index(("r", beta))
            a(f"s_waitcnt lgkmcnt({min(15, len(q)-1-pos)})")
            del q[:pos + 1]
            tiles = [A for A in range(8) if 0 <= 8 * A - beta <= 16]
            for k, A in enumerate(tiles):
                acc = vr(AC + 4 * (A % 4), 4)
                a(f"v_mfma_f32_16x16x32_bf16 {acc}, {vr(T+4*(8*A-beta),4)}, {vr(UR+4*(beta%NR),4)}, {acc if A in started else '0'}")
                started.add(A)
                nm[0] += 1
                if beta == 8 * A:
                    r = AC + 4 * (A % 4)
                    side += [(nm[0] + 6, f"ds_write_b64 v124, {vr(r,2)} offset:{1280*A}"),
                             (nm[0] + 6, f"ds_write_b64 v124, {vr(r+2,2)} offset:{1280*A+8}"),
                             (nm[0] + 6, f"ds_write_b32 v125, v126 offset:{32*A}")]
                if k == 0 and side and side[0][0] <= nm[0] and not env("NOSIDE", 0):
                    a(side.pop(0)[1])
                    q.append(("w", 0))
            if beta + AH < hi:
                rd(beta + AH)
        a.nop(8)
        for x in side:
            a(x[1])
    a.stamp(5)
    a("s_waitcnt lgkmcnt(0)")
    a.end()


def z_wave(a):
    S2F, S3F, WN, FO, AC = 8, 32, 48, 64, 100
    VS = ((88, 92, 96), (132, 136, 160))
    TB = ZC + 16
    y_addr(a, 164)
    a("v_lshlrev_b32 v5, 2, v4")
    a("v_sub_u32 v5, v3, v5")
    a("v_lshl_add_u32 v7, v5, 2, s13")
    a("v_lshl_add_u32 v5, v5, 3, s13")
    a(f"v_add_u32 v7, {TS3}, v7")
    a("v_mov_b32 v6, s13")
    spin(a, 131, CT, "ne", 2, 128, 9, sleep=1)
    a(f"ds_read_b32 v130, v6 offset:{TS2+128+252}")
    for D in (2, 3, 4):
        for h in range(2):
            for jj in range(2):
                a(f"ds_read_b64 {vr(S2F+8*(D-2)+4*h+2*jj,2)}, v5 offset:{TS2+8*(16*D-16-2*h-jj)}")
    for D in range(4, 8):
        o = 16 * D - 48
        a(f"ds_read2_b32 {vr(S3F+4*(D-4),2)}, v7 offset0:{o} offset1:{o-1}")
        a(f"ds_read2_b32 {vr(S3F+4*(D-4)+2,2)}, v7 offset0:{o-2} offset1:{o-3}")
    a("v_lshlrev_b32 v6, 4, v4")
    a("v_lshl_add_u32 v6, v3, 5, v6")
    a(f"v_add_u32 v6, {U0-48}, v6")
    a("v_add_u32 v6, s13, v6")
    a("v_lshlrev_b32 v5, 4, v2")
    a(f"v_add_u32 v5, {ZM}, v5")
    spin(a, 167, CK8, "ne", 12, 128, 9)
    for k in range(5):
        a(f"ds_read_b128 {vr(ZC+4*k,4)}, v5 offset:{1024*k}")
    a.lab("Z_PASS")
    for A in range(2):
        a(f"ds_write_b128 v164, v[124:127] offset:{1280*(8+A)}")
        a(f"ds_write_b32 v165, v166 offset:{32*A}")
    a("s_mov_b32 s8, 0x07060706")
    a.stamp(3)
    spin(a, 167, CCONV, "ne", 2, 128, 9, mask=15)
    a("v_perm_b32 v130, v130, v130, s8")
    if ZPRIO:
        a(f"s_setprio {ZPRIO}")
    a.stamp(4)
    w1 = lambda B: vr(WN + 8 * (B & 1), 4)
    w2 = lambda B: vr(WN + 8 * (B & 1) + 4, 4)

    def rdw(B):
        o = 512 * B
        a(f"ds_read_b128 {w1(B)}, v6 offset:{o+16}")
        a(f"ds_read_b128 {w2(B)}, v6 offset:{o}")

    def filters(B):
        L = []
        for i in range(6 if B < 4 else 4):
            w = w2(B) if i in (2, 3, 5) else w1(B)
            L.append(f"v_mfma_f32_16x16x32_bf16 {vr(FO+4*i,4)}, {w}, {vr(ZC+4*(0,1,0,1,2,3)[i],4)}, 0")
        return L

    def cvt(B):
        V = VS[B & 1]
        L = [f"v_cvt_pk_bf16_f32 v{V[j>>1]+2*(j&1)}, v{FO+j}, v{FO+4+j}" for j in range(4)]
        L += [f"v_cvt_pk_bf16_f32 v{V[j>>1]+2*(j&1)+1}, v{FO+8+j}, v{FO+12+j}" for j in range(4)]
        if B < 4:
            L += [f"v_cvt_pk_bf16_f32 v{V[2]+j}, v{FO+16+j}, v{FO+20+j}" for j in range(4)]
        return L

    started = set()

    def mm(A, x, y):
        acc = vr(AC + 4 * (A - 2), 4)
        r = f"v_mfma_f32_16x16x32_bf16 {acc}, {x}, {y}, {acc if A in started else '0'}"
        started.add(A)
        return r

    def mains(B):
        V = VS[B & 1]
        L = []
        if B < 4:
            L.append(mm(B + 4, vr(TB, 4), w1(B)))
        for D in (2, 3, 4):
            if B + D <= 7:
                for h in range(2):
                    L.append(mm(B + D, vr(V[h], 4), vr(S2F + 8 * (D - 2) + 4 * h, 4)))
        if B < 4:
            for D in range(4, 8 - B):
                L.append(mm(B + D, vr(V[2], 4), vr(S3F + 4 * (D - 4), 4)))
        return L

    def wr(A):
        r = AC + 4 * (A - 2)
        return [f"ds_write_b64 v164, {vr(r,2)} offset:{1280*(8+A)}", f"ds_write_b64 v164, {vr(r+2,2)} offset:{1280*(8+A)+8}",
                f"ds_write_b32 v165, v166 offset:{32*A}"]

    def weave(M, S, first, per):
        S = list(S)
        for i, m in enumerate(M):
            a(m)
            if i >= first:
                for x in S[:per]:
                    a(x)
                S = S[per:]
        return S

    a.lab("Z_LOOP")
    if env("ZDEL", 0):
        a("s_sleep 40")
    rdw(0); rdw(1)
    for j in range(4):
        a(f"v_and_b32 v{TB+j}, v130, v{TB+j}")
    a("s_waitcnt lgkmcnt(2)")
    for m in filters(0):
        a(m)
    a.nop(4)
    for c in cvt(0):
        a(c)
    pend = []
    for B in range(4):
        if B < 3:
            a("s_waitcnt lgkmcnt(0)")
            assert not weave(filters(B + 1), pend, 1, 1)
            M = mains(B)
            a(M[0])
            if B < 2:
                rdw(B + 2)
            for x in weave(M[1:], cvt(B + 1), 1 if B < 2 else 2, 2):
                a(x)
            pend = wr(B + 2)
        else:
            a.nop(2)
            assert not weave(mains(B), pend, 0, 1)
    if not env("KST", 0):
        a.stamp(1)
    spin(a, 167, CCONV, "ne", 34, 128, 9)
    if not env("KST", 0):
        a.stamp(2)
    a("s_cmp_lg_u32 s3, 4")
    a("s_cbranch_scc1 Z_NOSEL")
    sel_addr(a, 126, 1)
    a(f"global_load_dwordx2 v[124:125], v126, {sr(P_WS,2)} offset:{WS_SEL} sc1")
    a("s_lshl_b32 s9, s4, 7")
    a("v_mov_b32 v126, s9")
    a(f"global_load_dword v127, v126, {sr(P_WS,2)} offset:{WS_HINT} sc1")
    if env("PWARM", 0):
        a(f"s_mul_i32 s9, s6, {PS}")
        a(f"s_add_u32 s9, s9, {WS_PART}")
        a("v_lshl_add_u32 v126, v2, 4, s9")
        a(f"global_load_dword v127, v126, {sr(P_WS,2)} sc1")
    a.lab("Z_NOSEL")
    rdw(4); rdw(5)
    for x in wr(5):
        a(x)
    a("s_waitcnt lgkmcnt(5)")
    for m in filters(4):
        a(m)
    a.nop(6)
    for c in cvt(4):
        a(c)
    a("s_waitcnt lgkmcnt(3)")
    for m in filters(5) + mains(4):
        a(m)
    a.nop(2)
    for c in cvt(5):
        a(c)
    for x in wr(6)[:2]:
        a(x)
    for m in mains(5):
        a(m)
    a(wr(6)[2])
    a.nop(7)
    for x in wr(7):
        a(x)
    a.stamp(5)
    a("s_setprio 0")
    a("s_cmp_eq_u32 s3, 4")
    a("s_cbranch_scc1 FINAL")
    a("s_waitcnt lgkmcnt(0)")
    a.end()


UL, UX = 8, 24


def cu_pro(a):
    a.lab("CU_PRO")
    a("s_sub_u32 s7, s3, 8")
    a("s_lshl_b32 s8, s101, 2")
    a("s_add_u32 s8, s8, s7")
    a("s_mul_i32 s10, s8, 57")
    a("s_lshr_b32 s10, s10, 9")
    a("s_mul_i32 s11, s10, 9")
    a("s_sub_u32 s11, s8, s11")
    a("s_sub_u32 s8, s8, s10")
    a(f"s_mul_i32 s8, s8, {32*1152}")
    a("s_lshl_b32 s9, s4, 7")
    a("s_add_u32 s8, s8, s9")
    a("v_lshrrev_b32 v5, 1, v2")
    a("v_mul_u32_u24 v5, 1152, v5")
    a("v_and_b32 v6, 1, v2")
    if LINE:
        a("s_sub_u32 s9, 1024, s9")
        a("v_mad_u32_u24 v5, v6, s9, v5")
    else:
        a("v_lshl_add_u32 v5, v6, 7, v5")
    a("v_add_u32 v7, s8, v5")
    a("s_and_b32 s15, s7, 2")
    a("s_add_u32 s15, s15, s7")
    a(f"s_mul_i32 s8, s15, {256*1152}")
    a("s_lshl_b32 s9, s6, 3")
    a("s_add_u32 s8, s8, s9")
    a("v_mul_u32_u24 v5, 4608, v2")
    a("v_add_u32 v5, s8, v5")
    a(f"v_add_u32 v6, {512*1152}, v5")
    a("v_mov_b32 v58, 0")
    a("v_mov_b32 v59, 0")
    a(f"v_mov_b32 v57, {SYN}")
    a("v_lshl_add_u32 v56, v2, 3, v57")
    a("ds_write_b64 v56, v[58:59]")
    a("s_waitcnt lgkmcnt(0)")
    a("s_barrier")
    if env("XDEL", 0):
        a(f"s_sleep {env('XDEL', 0)}")
    if C3N:
        a("s_cmp_eq_u32 s7, 3")
        a("s_cbranch_scc1 CU_C3A")
        a.lab("CU_C3B")
    a(f"global_load_dword v60, v59, {sr(P_LDT,2)}")
    a(f"s_load_dwordx2 s[52:53], {sr(P_DSK,2)}, s9")
    a("s_branch CU_PRE")
    a.lab("CU_PREX")
    a("s_cmp_eq_u32 s11, 8")
    a("s_cbranch_scc1 CU_C3")
    a(f"global_load_dword v60, v7, {sr(P_U,2)} {PFL}")
    a.lab("CU_C3X")
    a(f"s_cmp_ge_u32 s7, {env('CHN', 2)}")
    a("s_cbranch_scc1 CU_MID")
    a.lab("CU_LD")
    if env("NOU", 0):
        a("v_mov_b32 v5, 0")
        a("v_mov_b32 v6, 0")
    for t in range(2):
        for i in range(4):
            a(f"global_load_dwordx2 {vr(UL+8*t+2*i,2)}, v{5+t}, {sr(P_U,2)} offset:{1152*i} {UFL}")
    a("s_branch CU_MAIN")


def cu_main(a):
    if C3N:
        a.lab("CU_C3A")
        a("s_cmp_eq_u32 s4, 3")
        a(f"s_cselect_b32 s8, 18, {C3N}")
        a("s_cmp_ge_u32 s101, s8")
        a("s_cbranch_scc1 CU_C3B")
        c3_item(a, 101)
        a("s_lshl_b32 s9, s6, 3")
        a("s_branch CU_C3B")
    a.lab("CU_C3")
    if env("C3", 1):
        a("s_cmp_eq_u32 s4, 3")
        a(f"s_cselect_b32 s8, 18, {C3N}")
        a("s_add_u32 s10, s10, s8")
        c3_item(a, 10)
        a("s_lshl_b32 s9, s6, 3")
    a("s_branch CU_C3X")
    a.lab("CU_MID")
    touch(a, "U")
    a("s_min_u32 s13, s7, 2")
    spin(a, 57, CISS, "gt", "s13", 56, 12, sleep=2)
    a("s_branch CU_LD")
    a.lab("CU_PRE")
    G, DS = 128, 154
    a("v_mov_b32 v139, 1")
    zconst(a)
    post(a, 57, CK8, 139)
    a("s_mov_b32 s72, s15")
    gran_addr(a, 158, 138, 137)
    a(f"s_mul_i32 s8, s15, {16*KP}")
    a(f"s_add_u32 s8, s8, {WS_G}")
    a("v_add_u32 v158, s8, v158")
    a(f"v_add_u32 v137, {96*KP}, v158")
    a(f"v_add_u32 v138, {WS_G}, v138")
    a("s_cmp_eq_u32 s7, 1")
    a("s_cselect_b64 vcc, -1, 0")
    a("v_cndmask_b32 v138, v137, v138, vcc")
    a("v_and_b32 v146, 3, v2")
    a("v_mul_u32_u24 v159, 320, v146")
    a("v_lshl_add_u32 v146, v146, 2, v57")
    a("v_lshrrev_b32 v136, 2, v2")
    a("v_lshl_add_u32 v159, v136, 4, v159")
    a("s_mul_i32 s8, s72, 1280")
    a("v_add_u32 v159, s8, v159")
    a(f"v_add_u32 v136, {2*YCH}, v159")
    a("v_and_b32 v141, 7, v2")
    a("s_lshl_b32 s8, s72, 5")
    a(f"s_add_u32 s8, s8, {SYN+FLG}")
    a("v_lshl_add_u32 v141, v141, 2, s8")
    a("s_lshl_b32 s8, s72, 10")
    a("v_lshl_add_u32 v147, v2, 4, s8")
    a("v_lshlrev_b32 v142, 1, v147")
    a(f"v_add_u32 v147, {GL}, v147")
    a(f"v_add_u32 v142, {XR}, v142")
    a("s_lshl_b32 s8, s72, 9")
    a(f"s_add_u32 s8, s8, {CH0+U0}")
    a("v_lshl_add_u32 v58, v2, 3, s8")
    a("s_mov_b32 s74, 0x05040100")
    a("s_mov_b32 s75, 0x07060302")
    a("s_cmp_lt_u32 s7, 2")
    a("s_cselect_b32 s8, 1, 16")
    a("v_mov_b32 v143, s8")
    a("s_waitcnt lgkmcnt(0)")
    a(f"v_lshlrev_b32 v{DS}, 16, s52")
    a(f"v_mov_b32 v{DS+1}, s52")
    a(f"v_lshlrev_b32 v{DS+2}, 16, s53")
    a(f"v_mov_b32 v{DS+3}, s53")
    a(f"v_and_b32 v{DS+1}, 0xffff0000, v{DS+1}")
    a(f"v_and_b32 v{DS+3}, 0xffff0000, v{DS+3}")
    for ch in range(4):
        a(f"v_add_f32 v{DS+ch}, -1.0, v{DS+ch}")
    if env("XW", 1):
        a("s_waitcnt vmcnt(0)")
    a("s_branch CU_PREX")
    a.lab("CU_MAIN")
    assert FUSE
    G2 = 160

    def gload():
        if env("NOG", 0) & 2:
            a(f"global_load_dwordx2 v[144:145], v59, {sr(P_DBG,2)} sc1")
            return
        a(f"global_load_dwordx2 v[144:145], v59, {sr(P_DBG,2)} sc1")
        a(f"global_load_dwordx4 {vr(G,4)}, v158, {sr(P_WS,2)} sc1")
        a(f"v_add_u32 v137, {32*KP}, v158")
        a(f"global_load_dwordx4 {vr(G+4,4)}, v137, {sr(P_WS,2)} sc1")
        a(f"v_add_u32 v137, {64*KP}, v158")
        a(f"global_load_dwordx4 {vr(G2,4)}, v137, {sr(P_WS,2)} sc1")
        a(f"global_load_dwordx4 {vr(G2+4,4)}, v138, {sr(P_WS,2)} sc1")
    X = lambda t, ch, i: UX + 16 * t + 4 * ch + i
    C = 64

    def unpack(t):
        for i in range(4):
            r = UL + 8 * t + 2 * i
            a(f"v_lshlrev_b32 v{X(t,0,i)}, 16, v{r}")
            a(f"v_and_b32 v{X(t,1,i)}, 0xffff0000, v{r}")
            a(f"v_lshlrev_b32 v{X(t,2,i)}, 16, v{r+1}")
            a(f"v_and_b32 v{X(t,3,i)}, 0xffff0000, v{r+1}")
    post(a, 57, CISS, 139)
    a(f"s_setprio {env('UPRIO', 3)}")
    a.stamp(7)
    for t in range(2):
        for h in range(2):
            a(f"s_waitcnt vmcnt({6-4*t-2*h})")
            for ch in range(4):
                r = UL + 8 * t + 4 * h + (ch >> 1)
                a(f"v_perm_b32 v{C+8*t+2*ch+h}, v{r}, v{r+2}, s{74+(ch&1)}")
        if t:
            a.stamp(1)
        for ch in range(4):
            a(f"ds_write_b64 v58, {vr(C+8*t+2*ch,2)} offset:{CHP*ch+1024*t}")
    post(a, 57, CCONV, 143)
    a(f"s_setprio {env('EPRIO', 3)}")
    a.stamp(2)
    if env("UST", 0):
        a.stamp = lambda i: None
    a("s_cmp_ge_u32 s7, 2")
    a("s_cbranch_scc1 E_NOG")
    spin(a, 57, CISS, "gt", env("PFT", 4), 60, 12, sleep=1)
    for k in range(N1):
        if k == PFG:
            gload()
        a(f"s_add_u32 s15, s7, {N0+2*N2+2*k}")
        pf_item(a, 15, f"E{k}")
    if PFG >= N1:
        gload()
    a.lab("E_NOG")
    if env("ENOP", 0):
        a("s_sleep 90")
    OM, XD, Y, YF = 140, 64, 96, 112
    rnd = lambda r: a(f"v_cvt_pk_bf16_f32 v{r}, 0, v{r}")
    unpack(0)
    unpack(1)

    def gates():
        a("s_cmp_lt_u32 s7, 2")
        a("s_cbranch_scc1 E_G1")
        spin(a, 57, CG, "ne", 2, 60, 12)
        a(f"ds_read_b128 {vr(G,4)}, v147")
        a(f"ds_read_b128 {vr(G+4,4)}, v147 offset:2048")
        a("s_waitcnt lgkmcnt(0)")
        a("s_branch E_GX")
        a.lab("E_G1")
        a("s_mov_b32 s12, 0")
        a(f"s_waitcnt vmcnt({max(0, N1-PFG)})")
        a("s_branch E_GCHK")
        a.lab("E_GPOLL")
        gload()
        a("s_add_u32 s12, s12, 1")
        a("s_waitcnt vmcnt(0)")
        a.lab("E_GCHK")
        a("v_xor_b32 v61, 1, v145")
        for r in list(range(G, G + 8)) + list(range(G2, G2 + 8)):
            a(f"v_bitop3_b32 v61, v61, v{r}, v144 bitop3:0xf6")
        a("v_and_b32 v61, 0xffff, v61")
        a("v_cmp_ne_u32 vcc, 0, v61")
        a(f"s_cmp_ge_u32 s12, {SPIN}")
        a("s_cbranch_scc1 E_GOK")
        if not env("NOG", 0):
            a("s_cbranch_vccnz E_GPOLL")
        a.lab("E_GOK")
        for k, r in enumerate((G2, G2 + 4, G, G + 4)):
            a(f"ds_write_b128 v147, {vr(r,4)} offset:{2048*((k+2)&3)}")
        a(f"ds_write_b32 v57, v144 offset:{TAGW}")
        post(a, 57, CG, 139)
        a.lab("E_GX")
        a.stamp(3)
        for t in range(2):
            a(f"ds_write_b128 v142, {vr(UL+8*t,4)} offset:{4096*t}")
            a(f"ds_write_b128 v142, {vr(UL+8*t+4,4)} offset:{4096*t+16}")
        post(a, 57, CDUMP, 139)

    def gx(t):
        g = G + 4 * t
        for i in range(4):
            a(f"v_and_b32 v{g+i}, 0xffff0000, v{g+i}")
        if FUSE:
            return
        for i in range(4):
            a(f"v_sub_f32 v{OM+i}, 1.0, v{g+i}")
            rnd(OM + i)
        for ch in range(4):
            for i in range(4):
                a(f"v_mul_f32 v{X(t,ch,i)}, v{X(t,ch,i)}, v{OM+i}")
                rnd(X(t, ch, i))
    a("s_cmp_ge_u32 s7, 2")
    a("s_cbranch_scc1 E_GATES")
    for t in range(2):
        g = G + 4 * t
        if t == 0:
            a.lab("E_T0")
        else:
            gx(1)
        spin(a, 141, 64 * t, "eq", 0, 60, 12)
        a.stamp(4 + t)
        for ch in range(4):
            va, o = (159, 136)[ch >> 1], YCH * (ch & 1) + 2560 * t
            a(f"ds_read_b128 {vr(Y+4*ch,4)}, v{va} offset:{o}")
            a(f"ds_read_b128 {vr(YF+4*ch,4)}, v{va} offset:{o+10240}")
        for ch in range(4):
            a(f"s_waitcnt lgkmcnt({6-2*ch})")
            for i in range(4):
                y = Y + 4 * ch + i
                a(f"v_add_f32 v{y}, v{y}, v{YF+4*ch+i}")
                a(f"v_fmac_f32 v{y}, v{X(t,ch,i)}, v{DS+ch}")
        if t == 0:
            a("s_cmp_ge_u32 s7, 2")
            a("s_cbranch_scc1 E_OUT0")
            a.lab("E_GATES")
            gates()
            gx(0)
            a("s_cmp_ge_u32 s7, 2")
            a("s_cbranch_scc1 E_T0")
            a.lab("E_OUT0")
        for i in range(4):
            for ch in range(4):
                y = Y + 4 * ch + i
                if FUSE:
                    a(f"v_fma_f32 v{y}, v{y}, v{g+i}, v{X(t,ch,i)}")
                    continue
                a(f"v_mul_f32 v{y}, v{y}, v{g+i}")
                rnd(y)
                a(f"v_add_f32 v{y}, v{y}, v{X(t,ch,i)}")
            a(f"v_cvt_pk_bf16_f32 v{YF+2*i}, v{Y+i}, v{Y+4+i}")
            a(f"v_cvt_pk_bf16_f32 v{YF+2*i+1}, v{Y+8+i}, v{Y+12+i}")
            if not env("NOST", 0) and not LINE:
                a(f"global_store_dwordx2 v{5+t}, {vr(YF+2*i,2)}, {sr(P_OUT,2)} offset:{1152*i} {os.environ.get('OFL', '')}")
        if LINE and not env("NOST", 0):
            a("s_cmp_ge_u32 s101, 16")
            a(f"s_cbranch_scc1 E_WT{t}")
            if env("WT", 0):
                a(f"s_cmp_lt_u32 s72, {env('WT', 0) - 2*t}") if env("WT", 0) > 2 * t else None
                a(f"s_cbranch_scc1 E_WT{t}") if env("WT", 0) > 2 * t else None
            for i in range(4):
                a(f"global_store_dwordx2 v{5+t}, {vr(YF+2*i,2)}, {sr(P_OUT,2)} offset:{1152*i}")
            a(f"s_branch E_WX{t}")
            a.lab(f"E_WT{t}")
            for i in range(4):
                a(f"global_store_dwordx2 v{5+t}, {vr(YF+2*i,2)}, {sr(P_OUT,2)} offset:{1152*i} sc1")
            a.lab(f"E_WX{t}")
    a.stamp(6)
    if env("UST", 0):
        del a.stamp
    a("s_waitcnt vmcnt(0)")
    if env("WB", 0):
        a(f"s_cmp_lg_u32 s7, {env('WBW', 3)}")
        a("s_cbranch_scc1 W_END")
        if env("WB", 0) == 2:
            a("s_cmp_lg_u32 s101, 0")
            a("s_cbranch_scc1 W_END")
        a("buffer_wbl2 sc1")
    a.end()


def finalizer(a):
    a.lab("FINAL")
    a("v_and_b32 v5, 7, v2")
    a("v_lshlrev_b32 v5, 2, v5")
    a("s_lshl_b32 s10, s6, 3")
    a(f"s_load_dwordx2 s[52:53], {sr(P_DSK,2)}, s10")
    spin(a, 167, CDUMP, "ne", 4, 42, 12)
    a(f"ds_read_b32 v42, v167 offset:{TAGW}")
    a("s_waitcnt lgkmcnt(0)")
    sel_poll(a, 42, "F", early=124)
    a("v_and_b32 v9, 0xff, v42")
    a("v_not_b32 v10, v8")
    a("v_and_b32 v10, 0x7ff, v10")
    a("v_and_b32 v23, 3, v2")
    a("v_mul_u32_u24 v11, 1152, v10")
    a("v_lshl_add_u32 v11, v23, 1, v11")
    a("v_add_u32 v11, s10, v11")
    a("v_lshlrev_b32 v14, 3, v10")
    a("v_lshl_add_u32 v14, v23, 1, v14")
    a(f"v_add_u32 v14, {XR}, v14")
    a("ds_read_u16 v24, v14")
    a("v_lshlrev_b32 v14, 2, v10")
    a(f"v_add_u32 v14, {GL}, v14")
    a("ds_read_b32 v15, v14")
    a("v_lshrrev_b32 v16, 8, v10")
    a("v_mul_u32_u24 v16, 1280, v16")
    a("v_and_b32 v17, 0xf0, v10")
    a("v_add_u32 v16, v16, v17")
    a("v_bfe_u32 v17, v10, 2, 2")
    a("v_mul_u32_u24 v17, 320, v17")
    a("v_add_u32 v16, v16, v17")
    a("v_and_b32 v17, 3, v10")
    a("v_lshl_add_u32 v16, v17, 2, v16")
    a(f"v_mul_u32_u24 v17, {YCH}, v23")
    a("v_add_u32 v16, v16, v17")
    a(f"v_add_u32 v18, {SYN+FLG+224}, v5")
    a("v_and_b32 v20, 0xffff0000, v8")
    a("v_not_b32 v21, v20")
    a("v_ashrrev_i32 v21, 31, v21")
    a("v_and_b32 v21, 0x7fff0000, v21")
    a("v_or_b32 v21, 0x80000000, v21")
    a("v_xor_b32 v20, v20, v21")
    sigmoid_bf16(a, 20, 21)
    a("v_and_b32 v20, 0xffff0000, v20")
    a("s_waitcnt lgkmcnt(0)")
    a("v_and_b32 v15, 0xffff0000, v15")
    a("v_sub_f32 v21, 1.0, v15")
    a("v_cvt_pk_bf16_f32 v21, v21, v21")
    a("v_and_b32 v21, 0xffff0000, v21")
    a("v_lshlrev_b32 v24, 16, v24")
    a("v_lshlrev_b32 v25, 4, v23")
    a("v_lshrrev_b64 v[26:27], v25, s[52:53]")
    a("v_lshlrev_b32 v26, 16, v26")
    rnd = lambda r: a(f"v_cvt_pk_bf16_f32 v{r}, 0, v{r}")
    a("v_mul_f32 v26, v26, v24")
    rnd(26)
    a(f"s_mul_i32 s8, s6, {PS}")
    a(f"s_add_u32 s8, s8, {WS_PART}")
    spin(a, 18, 0, "eq", 0, 22, 12)
    a("ds_read_b32 v28, v16")
    a("ds_read_b32 v29, v16 offset:10240")
    a("v_lshl_add_u32 v22, v2, 4, s8")
    a("s_mov_b32 s72, 0x00ff00ff")
    a("s_mov_b32 s73, 0x00ff00ff")
    a("s_waitcnt lgkmcnt(0)")
    a("v_add_f32 v28, v28, v29")
    rnd(28)
    a("v_add_f32 v28, v28, v26")
    rnd(28)
    a("v_mul_f32 v28, v28, v15")
    rnd(28)
    a.stamp(6)
    P = 48
    if env("NOFIN", 0):
        a.end()
    if FREP:
        a("v_min_u32 v33, 4, v2")
        a("s_lshl_b32 s11, s4, 7")
        a("v_lshl_add_u32 v33, v33, 2, s11")
        a("s_mov_b32 s12, 0")
        a.lab("FN_R")
        a(f"global_load_dword v34, v33, {sr(P_WS,2)} offset:{WS_HINT} sc1")
        a("s_add_u32 s12, s12, 1")
        a("s_waitcnt vmcnt(0)")
        a("v_cmp_ne_u32 vcc, v34, v42")
        a("s_cmp_ge_u32 s12, 64")
        a("s_cbranch_scc1 FN_RX")
        a("s_cbranch_vccz FN_RX")
        a(f"s_sleep {env('FHS', 2)}")
        a("s_branch FN_R")
        a.lab("FN_RX")
        a.stamp(1)
    a("s_mov_b32 s12, 0")
    a.lab("FN_P")
    a(f"global_load_dwordx4 {vr(P,4)}, v22, {sr(P_WS,2)} sc1")
    a("s_add_u32 s12, s12, 1")
    a("s_waitcnt vmcnt(0)")
    for i in range(4):
        a(f"v_xor_b32 v{P+i}, v{P+i}, v9")
    a(f"v_or3_b32 v32, v{P}, v{P+1}, v{P+2}")
    a(f"v_or_b32 v32, v32, v{P+3}")
    a("v_and_b32 v32, 0xff, v32")
    a("v_cmp_ne_u32 vcc, 0, v32")
    a(f"s_cmp_ge_u32 s12, {4*SPIN}")
    a("s_cbranch_scc1 FN_POK")
    a("s_cbranch_vccz FN_POK")
    a("s_mov_b64 exec, vcc")
    if FSL:
        a(f"s_sleep {FSL}")
    a("s_branch FN_P")
    a.lab("FN_POK")
    a("s_mov_b64 exec, -1")
    if STAMP:
        a("s_mul_i32 s12, s12, 100")
        a("s_add_u32 s90, s84, s12")
    a.stamp(2)
    a(f"v_permlane32_swap_b32 v{P}, v{P+2}")
    a(f"v_permlane32_swap_b32 v{P+1}, v{P+3}")
    a(f"v_add_f32 v{P}, v{P}, v{P+2}")
    a(f"v_add_f32 v{P+1}, v{P+1}, v{P+3}")
    a.nop(2)
    a(f"v_permlane16_swap_b32 v{P}, v{P+1}")
    a(f"v_add_f32 v{P}, v{P}, v{P+1}")
    a.nop(2)
    a(f"v_add_f32_dpp v{P}, v{P}, v{P} row_ror:8 {DPPF}")
    rnd(P)
    a(f"v_mul_f32 v{P}, v{P}, v20")
    rnd(P)
    a(f"v_add_f32 v{P}, v{P}, v24")
    rnd(P)
    a(f"v_mul_f32 v{P}, v{P}, v21")
    rnd(P)
    a(f"v_add_f32 v{P}, v{P}, v28")
    rnd(P)
    if os.environ.get("PERT"):
        a(f"v_add_f32 v{P}, {fbits(float(os.environ['PERT'])):#x}, v{P}")
    a("s_barrier")
    a("s_mov_b64 exec, s[72:73]")
    a(f"global_store_short_d16_hi v11, v{P}, {sr(P_OUT,2)}")
    a.stamp(7)
    a.end()


def const_table(a):
    a.L.append(".p2align 7")
    a.lab("CONST_TAB")
    perm = [1, 0, 3, 2, 5, 4, 7, 6]
    for w0, lo, hi, one in ((-16, 3, 5, 0x3c00), (-16, 6, 10, 0x3c00),
                            (-16, 5, 11, 0x3c00), (-24, 12, 20, 0x3c00), (-16, 3, 4, 0xffff)):
        for lane in range(64):
            c, g = lane & 15, lane >> 4
            e = [one if lo <= c - (w0 + 8 * g + perm[k]) <= hi else 0 for k in range(8)]
            a(".long " + ", ".join(f"{e[2*p] | e[2*p+1] << 16:#x}" for p in range(4)))


def kernel(a):
    a.L.append(".p2align 8")
    a.L.append(".globl k1_kernel")
    a.L.append(".type k1_kernel,@function")
    a.lab("k1_kernel")
    a.stamp(0)
    a("s_cmp_ge_u32 s2, 256")
    a("s_cbranch_scc1 K_END")
    a("s_load_dwordx16 s[16:31], s[0:1], 0")
    a("s_load_dwordx16 s[32:47], s[0:1], 64")
    a("s_load_dwordx4 s[48:51], s[0:1], 128")
    a("v_lshrrev_b32 v1, 6, v0")
    a("v_and_b32 v2, 63, v0")
    a("v_readfirstlane_b32 s3, v1")
    a("v_and_b32 v3, 15, v2")
    a("v_lshrrev_b32 v4, 4, v2")
    a("s_and_b32 s4, s2, 7")
    a("s_lshr_b32 s5, s2, 3")
    a("s_cmp_lg_u32 s3, 0")
    a("s_cbranch_scc1 K_NOCPF")
    a("s_getpc_b64 s[8:9]")
    a("s_and_b32 s8, s8, 0xffffff00")
    a("v_and_b32 v5, 7, v2")
    a("v_lshl_add_u32 v5, s5, 3, v5")
    a("v_lshlrev_b32 v5, 7, v5")
    a("v_min_u32 v5, CODE_END-k1_kernel-4, v5")
    a("global_load_dword v167, v5, s[8:9]")
    a.lab("K_NOCPF")
    a("s_cmp_lt_u32 s2, 112")
    a("s_cbranch_scc1 K_NC")
    touch(a, "K")
    a("s_sub_u32 s101, s5, 14")
    if LINE:
        a("s_cmp_lt_u32 s101, 16")
        a("s_cselect_b32 s6, 4, 1")
        a("s_cselect_b32 s8, 0, 112")
        a("s_lshl_b32 s6, s4, s6")
        a("s_add_u32 s6, s6, s8")
    else:
        a("s_mul_i32 s6, s4, 18")
    a("s_add_u32 s6, s6, s101")
    a("s_cmp_lt_u32 s3, 8")
    a("s_cbranch_scc1 CK_PRO")
    cu_pro(a)
    ck_pro(a)
    a.lab("K_NC")
    touch(a, "N")
    a("s_lshl_b32 s6, s2, 4")
    a("s_lshl_b32 s7, s3, 2")
    a("s_sub_u32 s7, s7, 32")
    a("s_cmp_ge_u32 s3, 8")
    a("s_cbranch_scc1 RT_PRO")
    a("s_cmp_lt_u32 s2, 72")
    a("s_cbranch_scc1 F_PRO")
    a("s_cmp_lt_u32 s3, 6")
    a("s_cbranch_scc1 HELPER")
    a("s_cmp_lt_u32 s2, 80")
    a("s_cbranch_scc1 HELPER")
    a("s_add_u32 s7, s7, 24")
    a("s_lshr_b32 s6, s6, 1")
    a(f"s_add_u32 s6, s6, {1792-640-16}")
    router_pro(a)
    ffn_pro(a)
    helper(a)
    router_main(a)
    down_main(a)
    ffn_main(a)
    selector(a)
    ck_main(a)
    cu_main(a)
    finalizer(a)
    a.lab("W_END")
    a.end()
    stamp_out(a)
    a.lab("K_END")
    a("s_endpgm")
    a.lab("CODE_END")


def main():
    ref = open(os.path.join(HERE, NAME + ".s.ref")).read().splitlines()
    head = [l for l in ref if l.startswith(";") and "@launch" not in l and "Override" not in l and "grid=ceil" not in l]
    a = Asm()
    kernel(a)
    if TOUCH:
        plan = {}
        if TOUCH & 1:
            plan["N"] = ([(w, 2) for w in range(8)], [("HELPER", "F_SLOW", 1)])
        if TOUCH & 2:
            plan["U"] = ([(10, 9), (11, 9)], [("CK_SKIP", "W_END", 1)])
        if TOUCH & 4:
            plan["F"] = ([(w, 1) for w in range(8)], [("RT_TAIL", "F_MAIN", 1), ("F_MAIN", "SEL_MAIN", 0)])
            plan["S"] = ([(w, 1) for w in range(8)], [("SEL_MAIN", "F_SLOW", 0)])
        a.L = place_pads([l for l in a.L if not l.startswith("@TOUCH") or l[7:] in plan], plan)
    else:
        a.L = [l for l in a.L if not l.startswith("@TOUCH")]
    grp = []
    if STAMP and not AMP:
        F, H, C = "list(range(72))", "list(range(72,112))", "list(range(112,256))"
        grp = [f'; GROUPS ([("ctl",{F},[8]),("sel",list(range(72,80)),list(range(8))),("dn",list(range(80,112)),list(range(12))),("ffn",{F},list(range(8))),("D",{C},[0,1,2,3]),("Z",{C},[5,6,7]),("fin",{C},[4]),("E1",{C},[8,9]),("E2",{C},[10,11])],12)']
    out = head + grp + [
        f"; @launch kernel=k1_kernel grid=(256,1,1) block=(768,1,1) lds={LDS_BYTES}",
        '.amdgcn_target "amdgcn-amd-amdhsa--gfx950"',
        ".text",
    ] + a.L + [
        '.section .rodata,"a"',
        ".p2align 6",
        ".amdhsa_kernel k1_kernel",
        "  .amdhsa_next_free_vgpr 168",
        "  .amdhsa_next_free_sgpr 102",
        "  .amdhsa_accum_offset 168",
        "  .amdhsa_group_segment_fixed_size 0",
        "  .amdhsa_kernarg_size 144",
        "  .amdhsa_user_sgpr_count 2",
        "  .amdhsa_user_sgpr_kernarg_segment_ptr 1",
        "  .amdhsa_system_sgpr_workgroup_id_x 1",
        ".end_amdhsa_kernel",
    ]
    path = sys.argv[1] if len(sys.argv) > 1 else os.path.join(HERE, NAME + ".s")
    open(path, "w").write("\n".join(out) + "\n")


if __name__ == "__main__":
    main()
```

```python
import sys, os, struct

NAME = "gated_mix__ssm_conv_s4__moe_arch_mod__prompt"
HERE = os.path.dirname(os.path.abspath(__file__))
env = lambda k, d: int(os.environ.get(k, str(d)))

AMP = os.environ.get("AMP", "")
STAMP = env("STAMP", 1 if AMP else 0)
RA = env("RA", 2)
RB = env("RB", 5)
RC = env("RC", 8)
HA = env("HA", 4)
HR0 = env("HR0", 0)
HR1 = env("HR1", 2)
CR0 = env("CR0", 5)
CDN = env("CDN", 1)
PSL = env("PSL", 4)
PW = env("PW", 0)
WIN = env("WIN", 4)
DP = env("DP", 0)
LATE = env("LATE", 2)
DE = env("DE", 0)
WIN2 = env("WIN2", 4)
WSW = env("WSW", 27)
SPF = env("SPF", 0)
N1 = env("N1", 3)
N2 = env("N2", 0)
HB = env("HB", 0)
UWAIT = env("UWAIT", 0)
ZPRIO = env("ZPRIO", 0)
UFL = os.environ.get("UFL", "sc1")
PFL = os.environ.get("PFL", "")
FREP = env("FREP", 1)
FSL = env("FSL", 0)
N0 = env("N0", 0)
HD = env("HD", 0)
C3N = env("C3N", 6)
SCP = env("SCP", 1)
FUSE = env("FUSE", 1)
HPOS = env("HPOS", 2)
DFD = env("DFD", 1)
HW = env("HW", 6)
TLB = env("TLB", 0)
LINE = env("LINE", 1)
UROT = env("UROT", 0)
PFG = env("PFG", 0)
HG = env("HG", 0)
DNL = env("DNL", 2)
STAGE = env("STAGE", 1)
SPIN = 0x4000

WS_SEL = 256
WS_HINT = 2304
WS_KEY = env("KOFF", 4096)
KP = env("KP", 256)
WS_G = WS_KEY + env("GOFF", 128)
WS_REP = 40960
WS_SELB = WS_REP + 8192
WS_H = WS_SELB + 8192
WS_PART = WS_H + 72 * 4096
WS_R = 1 << 20
RP = 32768 + 128
PS = 9 * 128
WS_SIZE = 0x10000000
WS_STAMP = 4 << 20

TSP = 1056
STG2 = 57 * TSP
CH0 = 120832
CHP = 8192
TE, TO, TS2, TS3 = 0, 1216, 2336, 2848
U0 = 4096
U1 = U0 + 2048
ZT = CH0 + 4 * CHP
SYN = ZT
MX1, ISA, PAIR, CISS, CSC, CK8, FLG = 0, 16, 32, 64, 68, 76, 256
CT = 80
ZM = SYN + 512
CCONV = 240
UEXP = 260
CDUMP, CG, TAGW = 244, 116, 120
XR, GL = 81920, 98304
YCH = 20480
L_UP = 73728
XS, XSP = 147456, 1344
EX = 157952
H2, HP2 = XS, 1344
CAND = 163200
M3 = 163456
LT = 163460
RKL = 163520
SELL = RKL + 96
LDS_BYTES = 163840

L2E = 0x3fb8aa3b
L2E_LO = 0x32a57060
LN2 = 0x3f317218
INV2PI = 0x3e22f983

P_U, P_ARE, P_AIM, P_BRE, P_BIM, P_CRE, P_CIM, P_LDT = 16, 18, 20, 22, 24, 26, 28, 30
P_DSK, P_BX, P_WR, P_WG, P_WU, P_WD, P_GW, P_OUT = 32, 34, 36, 38, 40, 42, 44, 46
P_DBG, P_WS = 48, 50


def fbits(x):
    return struct.unpack("<I", struct.pack("<f", float(x)))[0]


def vr(i, n):
    return f"v[{i}:{i+n-1}]"


def sr(i, n):
    return f"s[{i}:{i+n-1}]"


TOUCH = env("TOUCH", 0)
KEND = os.environ.get("KEND", "E_GOK")


def touch(a, name):
    a.L.append(f"@TOUCH {name}")


def place_pads(L, plan):
    import subprocess, re
    room = {n: 2 * len(w) for n, (w, _) in plan.items()}
    P = []
    for l in L:
        P += ["    s_nop 0"] * room[l[7:]] if l.startswith("@TOUCH") else [l]
    open("pad0.s", "w").write('.amdgcn_target "amdgcn-amd-amdhsa--gfx950"\n.text\n' + "\n".join(P) + "\n")
    subprocess.run(["clang", "-x", "assembler", "-target", "amdgcn-amd-amdhsa", "-mcpu=gfx950", "-c",
                    "pad0.s", "-o", "pad0.o"], check=True)
    dis = subprocess.run(["llvm-objdump", "-d", "--mcpu=gfx950", "pad0.o"], capture_output=True, text=True).stdout
    adr = [int(m.group(1), 16) for m in re.finditer(r"// ([0-9A-F]{12}):", dis)]
    at, k = [], 0
    for l in L:
        at.append(adr[k] if k < len(adr) else adr[-1] + 4)
        k += room[l[7:]] if l.startswith("@TOUCH") else l.startswith("    ") and not l.strip().startswith(".")
    idx = {l[:-1]: i for i, l in enumerate(L) if l.endswith(":")}
    spots = {}
    chains = {}
    for n, (waves, regions) in plan.items():
        pts = []
        for r0, r1, first in regions:
            last = at[idx[r0]] - (1000 if first else 0)
            for i in range(idx[r0], idx[r1]):
                if at[i] >= last + 1000 and at[idx[r1]] - at[i] > 64 and L[i].startswith("    "):
                    pts.append(i)
                    last = at[i]
        slots = [(h, w) for w, nh in waves for h in range(nh)]
        slots.sort()
        assert len(pts) <= len(slots), (n, len(pts), len(slots))
        ch = {}
        for p, (h, w) in zip(pts, slots):
            ch.setdefault(w, []).append(p)
        chains[n] = ch
        for w, ps in ch.items():
            for j, p in enumerate(ps):
                nxt = f"PAD_{n}_{ps[j+1]}" if j + 1 < len(ps) else f"BACK_{n}"
                spots.setdefault(p, []).append((f"PAD_{n}_{p}", nxt))
    out = []
    for i, l in enumerate(L):
        if i in spots:
            out.append(f"    s_branch OVER_{i}")
            for lab, nxt in spots[i]:
                out += [f"{lab}:", f"    s_branch {nxt}"]
            out.append(f"OVER_{i}:")
        if l.startswith("@TOUCH"):
            n = l[7:]
            for w, ps in chains[n].items():
                out += [f"    s_cmp_eq_u32 s3, {w}", f"    s_cbranch_scc1 PAD_{n}_{ps[0]}"]
            out.append(f"BACK_{n}:")
        else:
            out.append(l)
    return out


class Asm:
    def __init__(s):
        s.L = []
        s.nl = 0

    def __call__(s, x):
        s.L.append("    " + x)

    def lab(s, x):
        s.L.append(x + ":")

    def nop(s, n):
        while n > 0:
            k = min(n, 16)
            s(f"s_nop {k-1}")
            n -= k

    def stamp(s, i):
        if STAMP:
            s(f"s_memrealtime s[{84+2*i}:{85+2*i}]")

    def end(s):
        if STAMP:
            s("s_branch STAMP_OUT")
        else:
            s("s_endpgm")


def stamp_out(a):
    if not STAMP:
        return
    a.lab("STAMP_OUT")
    a("s_mov_b64 exec, -1")
    a("s_waitcnt lgkmcnt(0)")
    if AMP:
        wg, wv, i, mult = [int(x) for x in AMP.split(",")]
        a(f"s_cmp_lg_u32 s2, {wg}")
        a("s_cbranch_scc1 K_END")
        a(f"s_cmp_lg_u32 s3, {wv}")
        a("s_cbranch_scc1 K_END")
        a(f"s_sub_u32 s100, s{84+2*i}, s84")
        a("s_min_u32 s100, s100, 4000")
        a(f"s_mul_i32 s100, s100, {mult}")
        a("s_add_u32 s100, s100, s84")
        a("s_add_u32 s100, s100, 3000")
        a.lab("AMPL")
        a("s_memrealtime s[84:85]")
        a("s_waitcnt lgkmcnt(0)")
        a("s_sub_u32 s86, s84, s100")
        a("s_cmp_lt_i32 s86, 0")
        a("s_cbranch_scc1 AMPL")
        a("s_endpgm")
        return
    a("s_lshl_b32 s100, s2, 4")
    a("s_add_u32 s100, s100, s3")
    a("s_lshl_b32 s100, s100, 6")
    a(f"s_add_u32 s100, s100, {WS_STAMP}")
    a("v_mov_b32 v1, s100")
    for i in range(8):
        a(f"v_mov_b32 v2, s{84+2*i}")
        a(f"global_store_dword v1, v2, {sr(P_WS,2)} offset:{4*i}")
    a("s_endpgm")


def spin(a, va, off, cmp, val, vt, sc, sleep=1, mask=None):
    a.nl += 1
    n = a.nl
    a(f"s_mov_b32 s{sc}, 0")
    a.lab(f"SPN{n}")
    a(f"ds_read_b32 v{vt}, v{va} offset:{off}")
    a(f"s_add_u32 s{sc}, s{sc}, 1")
    a("s_waitcnt lgkmcnt(0)")
    if mask is not None:
        a(f"v_and_b32 v{vt}, {mask}, v{vt}")
    a(f"v_cmp_{cmp}_u32 vcc, {val}, v{vt}")
    a(f"s_cmp_ge_u32 s{sc}, 0x40000")
    a(f"s_cbranch_scc1 SPX{n}")
    if sleep:
        a(f"s_cbranch_vccz SPX{n}")
        a(f"s_sleep {sleep}")
        a(f"s_branch SPN{n}")
    else:
        a(f"s_cbranch_vccnz SPN{n}")
    a.lab(f"SPX{n}")


def post(a, va, off, vone):
    a("s_mov_b64 exec, 1")
    a(f"ds_add_u32 v{va}, v{vone} offset:{off}")
    a("s_mov_b64 exec, -1")


def srd(a, d, p, size):
    a(f"s_mov_b32 s{d}, s{p}")
    a(f"s_mov_b32 s{d+1}, s{p+1}")
    a(f"s_mov_b32 s{d+2}, {size}")
    a(f"s_mov_b32 s{d+3}, 0x20000")


DPPF = "row_mask:0xf bank_mask:0xf"


def gran_addr(a, d, d7, t):
    a(f"v_lshrrev_b32 v{d}, 2, v2")
    a(f"v_mul_u32_u24 v{d}, {KP}, v{d}")
    a(f"v_and_b32 v{t}, 3, v2")
    a(f"v_lshl_add_u32 v{d}, v{t}, 4, v{d}")
    a(f"v_lshrrev_b32 v{d7}, 1, v2")
    a(f"v_mul_u32_u24 v{d7}, {KP}, v{d7}")
    a(f"v_and_b32 v{t}, 1, v2")
    a(f"v_lshl_add_u32 v{d7}, v{t}, 4, v{d7}")
    a(f"v_add_u32 v{d7}, {80*KP+64}, v{d7}")


def sigmoid_bf16(a, x, t):
    a(f"v_mul_f32 v{t}, 0xbfb8aa3b, v{x}")
    a(f"v_exp_f32 v{t}, v{t}")
    a.nop(1)
    a(f"v_add_f32 v{t}, 1.0, v{t}")
    a(f"v_rcp_f32 v{t}, v{t}")
    a.nop(1)
    a(f"v_cvt_pk_bf16_f32 v{x}, v{t}, v{t}")


RX, RW, RG = 16, 34, 52


RL = 84


def router_pro(a):
    a.lab("RT_PRO")
    a("s_add_u32 s6, s6, s7")
    a("v_add_u32 v5, s6, v4")
    a("v_lshlrev_b32 v6, 4, v3")
    a("v_lshlrev_b32 v7, 3, v3")
    a("v_mul_u32_u24 v9, 1152, v5")
    a("v_add_u32 v8, v9, v6")
    a("v_add_u32 v9, v9, v7")
    a("v_mov_b32 v10, 0")
    a("v_lshlrev_b32 v11, 2, v2")
    a(f"v_add_u32 v12, {RKL}, v11")
    a("ds_write_b32 v12, v10")
    a("v_and_b32 v11, 0x7c, v11")
    a("v_lshlrev_b32 v12, 4, v2")
    a("s_mul_i32 s13, s7, 640")
    a(f"s_add_u32 s13, s13, {XS}")
    a("s_mov_b32 m0, s13")
    a("s_waitcnt lgkmcnt(0)")
    a(f"s_load_dword s12, {sr(P_WS,2)}, 0")
    a(f"global_load_lds_dwordx4 v12, {sr(P_WR,2)}")
    a(f"global_load_lds_dword v11, {sr(P_WR,2)} offset:1024")
    a("s_add_u32 m0, s13, 1280")
    a("v_add_u32 v6, s13, v6")
    a(f"global_load_lds_dwordx4 v12, {sr(P_GW,2)}")
    a(f"global_load_lds_dword v11, {sr(P_GW,2)} offset:1024")
    for i in range(4):
        a(f"global_load_dwordx4 {vr(RX+4*i,4)}, v8, {sr(P_U,2)} offset:{256*i}")
    a(f"global_load_dwordx2 {vr(RX+16,2)}, v9, {sr(P_U,2)} offset:1024")
    a("s_barrier")
    a("s_branch RT_MAIN")


def row_sum(a, v):
    for k in (8, 4, 2, 1):
        a.nop(2)
        a(f"v_add_f32_dpp v{v}, v{v}, v{v} row_ror:{k} {DPPF}")


def router_main(a):
    a.lab("RT_MAIN")
    assert KP == 256 and WS_G == WS_KEY + 128
    a(f"s_mul_i32 s6, s2, {KP}")
    a(f"s_add_u32 s6, s6, {WS_KEY}")
    a("v_lshl_add_u32 v5, v2, 2, s6")
    a("s_cmp_lt_u32 s2, 80")
    a("s_cselect_b32 s8, 15, 23")
    a("v_and_b32 v14, 31, v2")
    a("v_min_u32 v14, s8, v14")
    a("v_and_or_b32 v14, v2, 32, v14")
    a(f"s_mov_b32 s8, {RKL}")
    a("v_lshl_add_u32 v14, v14, 2, s8")
    a("v_add_u32 v13, s7, v4")
    a("v_lshl_add_u32 v13, v13, 2, s8")
    a("s_mov_b32 s8, 0xffff")
    a("s_mov_b32 s10, 0x00010001")
    a("s_mov_b32 s11, 0x00010001")
    a(f"v_mov_b32 v12, {M3}")
    a("s_waitcnt lgkmcnt(0)")
    a("s_add_u32 s12, s12, 1")
    a("v_mov_b32 v11, s12")
    a("ds_write_b64 v12, v[10:11]")
    a("v_add_u32 v7, s13, v7")
    a("s_waitcnt vmcnt(5)")
    for base, o in ((RG, 1280), (RW, 0)):
        for i in range(4):
            a(f"ds_read_b128 {vr(base+4*i,4)}, v6 offset:{o+256*i}")
        a(f"ds_read_b64 {vr(base+16,2)}, v7 offset:{o+1024}")
    if env("GRND", 1):
        T = 70
        a("v_mov_b32 v8, 0x3f803f80")
        a("s_waitcnt lgkmcnt(5)")
        for k in range(18):
            a(f"v_and_b32 v{RL+k}, 0xffff, v{RG+k}")
            a(f"v_and_b32 v{RG+k}, 0xffff0000, v{RG+k}")
        a("s_waitcnt lgkmcnt(0)")
        for b in range(5):
            ks = range(4 * b, min(4 * b + 4, 18))
            a(f"s_waitcnt vmcnt({4-b})")
            for k in ks:
                a(f"v_dot2_f32_bf16 v{T+2*(k&3)}, v{RX+k}, v{RL+k}, 0")
                a(f"v_dot2_f32_bf16 v{T+2*(k&3)+1}, v{RX+k}, v{RG+k}, 0")
            for k in ks:
                a(f"v_dot2_f32_bf16 v12, v{RX+k}, v{RW+k}, {'v12' if k else '0'}")
            for k in ks:
                a(f"v_cvt_pk_bf16_f32 v{T+2*(k&3)}, v{T+2*(k&3)}, v{T+2*(k&3)+1}")
            for k in ks:
                a(f"v_dot2_f32_bf16 v15, v{T+2*(k&3)}, v8, {'v15' if k else '0'}")
        a.nop(1)
    else:
        a("s_waitcnt lgkmcnt(0)")
        for i in range(18):
            if i % 4 == 0:
                a(f"s_waitcnt vmcnt({4-i//4})")
            a(f"v_dot2_f32_bf16 v15, v{RX+i}, v{RG+i}, {'v15' if i else '0'}")
            a(f"v_dot2_f32_bf16 v12, v{RX+i}, v{RW+i}, {'v12' if i else '0'}")
    a.stamp(1)
    a.nop(2)
    for k in (8, 4, 2, 1):
        a(f"v_add_f32_dpp v15, v15, v15 row_ror:{k} {DPPF}")
        a(f"v_add_f32_dpp v12, v12, v12 row_ror:{k} {DPPF}")
        a.nop(1)
    a("v_cvt_pk_bf16_f32 v15, 0, v15")
    a("v_mul_f32 v15, 0xbfb8aa3b, v15")
    a("v_exp_f32 v15, v15")
    a("v_cvt_pk_bf16_f32 v12, v12, v12")
    a("v_add_f32 v15, 1.0, v15")
    a("v_rcp_f32 v15, v15")
    a("v_ashrrev_i32 v9, 31, v12")
    a("v_cvt_pk_bf16_f32 v15, 1.0, v15")
    a("v_or_b32 v9, 0x80000000, v9")
    a("v_bitop3_b32 v12, v12, v9, 1 bitop3:0xbe")
    a("s_mov_b64 exec, s[10:11]")
    a("ds_write2_b32 v13, v12, v15 offset0:0 offset1:32")
    a("s_mov_b64 exec, -1")
    a("s_cmp_lg_u32 s7, 0")
    a("s_cbranch_scc1 RT_X")
    spin(a, 14, 0, "eq", 0, 12, 9, sleep=0)
    a("v_bfi_b32 v12, s8, v11, v12")
    if not env("NOK", 0) & 1:
        a(f"global_store_dword v5, v12, {sr(P_WS,2)} {os.environ.get('KFL', 'sc1')}")
    a.stamp(2)
    a("s_cmp_lg_u32 s2, 0")
    a("s_cbranch_scc1 RT_X")
    a("v_mov_b32 v8, v11")
    a("v_mov_b32 v9, 1")
    a(f"global_store_dwordx2 v10, v[8:9], {sr(P_DBG,2)} sc1")
    a.lab("RT_X")
    a("s_barrier")
    a.lab("RT_TAIL")
    a("s_cmp_ge_u32 s2, 80")
    a("s_cbranch_scc1 DN_JOIN")
    a("s_cmp_lt_u32 s2, 72")
    a("s_cbranch_scc1 RT_CTL")
    a("s_barrier")
    a("s_branch DN_JOIN")
    a.lab("RT_CTL")
    a("s_cmp_lg_u32 s3, 8")
    a("s_cbranch_scc1 W_END")
    a("v_mov_b32 v14, v11")
    a("s_mul_i32 s8, s4, 9")
    a("s_add_u32 s8, s8, s5")
    a("s_lshl_b32 s8, s8, 12")
    a(f"s_add_u32 s8, s8, {WS_H}")
    a("v_lshl_add_u32 v23, v3, 7, s8")
    a(f"global_load_dword v24, v23, {sr(P_WS,2)} sc1")
    a(f"v_mov_b32 v21, {M3}")
    a("v_mov_b32 v22, 16")
    srd(a, SX, P_U, 2359296)
    a("v_lshlrev_b32 v19, 4, v2")
    a("v_lshlrev_b32 v20, 2, v2")
    if SCP:
        a("s_lshl_b32 s13, s4, 10")
        a(f"s_add_u32 s13, s13, {WS_REP}")
        a("s_add_u32 s7, s13, 1024")
        a(f"s_sleep {env('SC0', 16)}")
        a.lab("RT_SC")
        a(f"s_load_dwordx16 s[16:31], {sr(P_WS,2)}, s13")
        a("s_add_u32 s13, s13, 64")
        a("s_waitcnt lgkmcnt(0)")
        a("s_xor_b32 s8, s17, s12")
        for i in range(1, 8):
            a(f"s_xor_b32 s9, s{17+2*i}, s12")
            a("s_or_b32 s8, s8, s9")
        a("s_cbranch_scc0 RT_SCOK")
        a(f"s_sleep {env('SCS', 2)}")
        a("s_cmp_lt_u32 s13, s7")
        a("s_cbranch_scc1 RT_SC")
    sel_poll(a, 14, "C")
    for i in range(8):
        a(f"v_readlane_b32 s{16+2*i}, v8, {i}")
    a.lab("RT_SCOK")
    a.stamp(4)
    a(f"s_mov_b32 m0, {XS}")
    for i in range(8):
        a(f"s_andn2_b32 s{76+i}, 0x7ff, s{16+2*i}")
        a(f"s_mul_i32 s{76+i}, s{76+i}, 1152")
    for i in range(8):
        a(f"buffer_load_dwordx4 v19, {sr(SX,4)}, s{76+i} offen lds")
        a(f"buffer_load_dword v20, {sr(SX,4)}, s{76+i} offen offset:1024 lds")
        a(f"s_add_u32 m0, m0, {XSP}")
        a("s_nop 0")
    for i in range(8):
        a(f"v_mov_b32 v{28+i}, s{76+i}")
    a(f"v_mov_b32 v23, {CAND}")
    a("ds_write_b128 v23, v[28:31]")
    a("ds_write_b128 v23, v[32:35] offset:16")
    a("s_waitcnt vmcnt(0)")
    post(a, 21, C2, 22)
    a("s_waitcnt lgkmcnt(0)")
    a.stamp(1)
    a("s_barrier")
    a.end()


def sel_slot(a, v, spread):
    if spread:
        a(f"v_and_b32 v{v}, 4, v2")
        a(f"v_add_u32 v{v}, v{v}, v4")
    else:
        a(f"v_and_b32 v{v}, 7, v2")


def sel_addr(a, v, spread):
    sel_slot(a, v, spread)
    a("s_lshl_b32 s9, s4, 8")
    a(f"v_lshl_add_u32 v{v}, v{v}, 3, s9")


def sel_poll(a, vtag, lab, early=None):
    sel_addr(a, 6, early)
    sel_slot(a, 7, early)
    a("s_lshl_b32 s9, s4, 10")
    a(f"s_add_u32 s9, s9, {WS_SELB-WS_SEL}")
    a("v_lshl_add_u32 v7, v7, 7, s9")
    a("s_mov_b32 s12, 0")
    if early:
        a("s_waitcnt vmcnt(0)")
        a(f"v_mov_b32 v8, v{early}")
        a(f"v_mov_b32 v9, v{early+1}")
        a("s_branch SPC_" + lab)
    a.lab("SP_" + lab)
    a("s_add_u32 s12, s12, 1")
    a("s_and_b32 s9, s12, 7")
    a("s_cselect_b64 s[14:15], 0, -1")
    a("v_cndmask_b32 v10, v6, v7, s[14:15]")
    a(f"global_load_dwordx2 v[8:9], v10, {sr(P_WS,2)} offset:{WS_SEL} sc1")
    a("s_waitcnt vmcnt(0)")
    a.lab("SPC_" + lab)
    a(f"v_cmp_ne_u32 vcc, v9, v{vtag}")
    a(f"s_cmp_ge_u32 s12, {SPIN}")
    a(f"s_cbranch_scc1 SPX_{lab}")
    a(f"s_cbranch_vccz SPX_{lab}")
    a("s_mov_b64 exec, vcc")
    a(f"s_sleep {env('CSL', 2)}")
    a("s_branch SP_" + lab)
    a.lab("SPX_" + lab)
    a("s_mov_b64 exec, -1")


def sparse_lane(a, vaddr, vidx, pitch, base):
    a(f"v_lshrrev_b32 v{vaddr}, 1, v3")
    a(f"v_mul_u32_u24 v{vaddr}, {pitch}, v{vaddr}")
    a(f"v_lshl_add_u32 v{vaddr}, v4, 5, v{vaddr}")
    a(f"v_and_b32 v{vidx}, 1, v2")
    a(f"v_lshl_add_u32 v{vaddr}, v{vidx}, 4, v{vaddr}")
    a(f"v_add_u32 v{vaddr}, {base}, v{vaddr}")
    a(f"v_mul_u32_u24 v{vidx}, 0xaaaa, v{vidx}")
    a(f"v_add_u32 v{vidx}, 0x4444, v{vidx}")


def dn_issue(a):
    a("s_lshr_b32 s8, s6, 3")
    a("s_lshl_b32 s8, s8, s67")
    a("s_and_b32 s9, s6, 7")
    a("s_lshl_b32 s12, s8, 3")
    a("s_add_u32 s12, s12, s9")
    a("s_lshl_b32 m0, s12, 10")
    a("s_mul_i32 s9, s9, 9216")
    a("s_bitcmp1_b32 s6, 0")
    a("s_cselect_b32 s12, 6912, 0")
    a("s_sub_u32 s9, s9, s12")
    a("s_bitcmp1_b32 s8, 0")
    a(f"s_cselect_b32 s12, {36864-128}, 0")
    a("s_mul_i32 s8, s8, 36864")
    a("s_sub_u32 s8, s8, s12")
    a("s_add_u32 s8, s8, s9")
    a("s_add_u32 s8, s8, s14")
    a(f"buffer_load_dwordx4 v5, {sr(SD,4)}, s8 offen {os.environ.get('WFL', '')} lds")
    a("s_add_u32 s6, s6, s70")


def helper(a):
    a.lab("HELPER")
    a("v_lshrrev_b32 v6, 3, v2")
    a("v_and_b32 v7, 2, v6")
    a("v_mad_u32_u24 v7, v7, 3, v6")
    a("v_mul_u32_u24 v5, 1152, v7")
    a("v_and_b32 v7, 6, v6")
    a("v_xor_b32 v7, v7, v2")
    a("v_and_b32 v7, 7, v7")
    a("v_lshl_add_u32 v5, v7, 4, v5")
    a("s_lshl_b32 s8, s5, 1")
    a("s_sub_u32 s8, s8, 20")
    a("s_cmp_lt_u32 s2, 80")
    a("s_cselect_b32 s8, 8, s8")
    a("s_cselect_b32 s70, 8, 6")
    a(f"s_cselect_b32 s69, {env('HS', 2)}, {HA}")
    a("s_cselect_b32 s67, 1, 0")
    a("s_cselect_b32 s71, 1, 2")
    a("s_mul_i32 s71, s71, 72")
    a("s_lshl_b32 s8, s8, 7")
    a(f"s_mul_i32 s14, s4, {9*73728}")
    a("s_add_u32 s14, s14, s8")
    a("s_mov_b32 s6, s3")
    a("s_waitcnt lgkmcnt(0)")
    srd(a, SD, P_WD, 5308416)
    a("s_barrier")
    a("s_branch DN_LOAD")


def down_main(a):
    a.lab("DN_LOAD")
    a(f"v_mov_b32 v55, {WS_SELB}")
    a("s_mov_b64 s[80:81], 0")
    if env("DTLB", 1):
        a("s_cmp_lg_u32 s3, 0")
        a("s_cbranch_scc1 DN_NOT")
        a("v_min_u32 v8, 8, v2")
        a("v_mul_u32_u24 v8, 73728, v8")
        a("v_add_u32 v8, 72576, v8")
        a(f"buffer_load_dword v9, v8, {sr(SD,4)}, s14 offen")
        a.lab("DN_NOT")
    if env("SA", 2) > 1:
        a("s_cmp_ge_u32 s2, 80")
        a("s_cbranch_scc1 DN_SA")
        a.lab("DN_SAL")
        dn_issue(a)
        a(f"s_cmp_lt_u32 s6, {8*(env('SA', 2)-1)}")
        a("s_cbranch_scc1 DN_SAL")
        a.lab("DN_SA")
    if env("DA", 1):
        dn_issue(a)
    else:
        a("v_mov_b32 v8, 0")
        a(f"global_load_dword v9, v8, {sr(P_WR,2)}")
    a("s_waitcnt vmcnt(0)")
    if HG:
        a("s_cmp_lt_u32 s2, 80")
        a("s_cbranch_scc1 DN_L0")
        a("s_lshl_b32 s68, s3, 2")
        a("s_add_u32 s68, s68, s5")
        a(f"s_sub_u32 s68, {162+9}, s68")
        a("v_mul_u32_u24 v10, 9216, v2")
        a("s_mul_i32 s8, s4, 1152")
        a("v_add_u32 v10, s8, v10")
        a(f"s_cmp_ge_u32 s3, {env('HGW', 3)}")
        a("s_cbranch_scc1 DN_G1")
        pf_gu(a, 68, 0, 10, 8)
        a.lab("DN_G1")
        a("s_barrier")
        a(f"s_cmp_lt_u32 s3, {env('HGW', 3)}")
        a("s_cbranch_scc1 DN_G2")
        a(f"s_cmp_ge_u32 s3, {HG}")
        a("s_cbranch_scc1 DN_G3")
        pf_gu(a, 68, 0, 10, 8)
        a.lab("DN_G2")
        a("s_waitcnt vmcnt(0)")
        a.lab("DN_G3")
        a("s_branch DN_L2")
        a.lab("DN_L0")
    a("s_mov_b32 s13, 0")
    a.lab("DN_L1")
    dn_issue(a)
    a("s_add_u32 s13, s13, 1")
    a("s_cmp_lt_u32 s13, s69")
    a("s_cbranch_scc1 DN_L1")
    a("s_cmp_lt_u32 s2, 80")
    a("s_cbranch_scc1 SEL_MAIN")
    a("s_barrier")
    a.lab("DN_L2")
    a("s_cmp_ge_u32 s6, s71")
    a("s_cbranch_scc1 DN_LX")
    a(f"s_waitcnt vmcnt({HW-1})")
    dn_issue(a)
    a("s_branch DN_L2")
    a.lab("DN_LX")
    a.lab("DN_JOIN")
    AF, BF, AC = 24, 96, 132
    a(f"v_mov_b32 v21, {M3}")
    a("ds_read_b32 v14, v21 offset:4")
    a("v_and_b32 v18, 1, v4")
    a("v_bfe_u32 v6, v2, 2, 2")
    a("v_lshl_add_u32 v18, v18, 2, v6")
    a("v_lshrrev_b32 v19, 1, v18")
    a("v_lshlrev_b32 v18, 7, v18")
    a("v_and_b32 v7, 3, v2")
    a("v_lshl_add_u32 v18, v7, 3, v18")
    a("v_lshrrev_b32 v6, 1, v4")
    a("v_lshl_add_u32 v18, v6, 11, v18")
    a("s_and_b32 s9, s3, 3")
    a("v_xor_b32 v19, s9, v19")
    a("v_lshl_add_u32 v18, v19, 5, v18")
    a("s_lshr_b32 s8, s3, 2")
    a("s_lshl_b32 s8, s8, 13")
    a("v_add_u32 v8, s8, v18")
    a("v_add_u32 v9, 49152, v8")
    a("v_add_u32 v10, 98304, v8")
    sparse_lane(a, 11, 22, HP2, H2)
    for j in range(4):
        a(f"v_mov_b32 v{AC+j}, 0")
    a("v_lshrrev_b32 v12, 2, v3")
    a(f"v_mul_u32_u24 v17, {2*HP2}, v12")
    a(f"v_mul_u32_u24 v12, {PS}, v12")
    a("v_lshl_add_u32 v12, v7, 4, v12")
    a("v_lshl_add_u32 v12, v6, 6, v12")
    a("s_lshl_b32 s8, s5, 3")
    a("s_sub_u32 s8, s8, 80")
    a("s_cmp_lt_u32 s2, 80")
    a("s_cselect_b32 s8, 32, s8")
    a("s_cselect_b32 s13, 4, 8")
    a("s_cselect_b32 s15, 8, 6")
    a("s_add_u32 s8, s8, s3")
    a(f"s_mul_i32 s8, s8, {4*PS}")
    a("s_lshl_b32 s9, s4, 7")
    a("s_add_u32 s8, s8, s9")
    a(f"s_add_u32 s8, s8, {WS_PART}")
    a("v_add_u32 v12, s8, v12")
    a("s_sub_u32 s9, s3, 3")
    a("s_mul_i32 s8, s4, 9")
    a("s_add_u32 s8, s8, s9")
    a("s_lshl_b32 s8, s8, 12")
    a(f"s_add_u32 s8, s8, {WS_H}")
    a("v_lshl_add_u32 v16, v2, 5, s8")
    a("v_lshl_add_u32 v17, v4, 5, v17")
    a("v_lshl_add_u32 v17, v7, 3, v17")
    a("s_lshl_b32 s9, s9, 7")
    a(f"s_add_u32 s9, s9, {H2}")
    a("v_add_u32 v17, s9, v17")
    a("s_mov_b32 s10, 0xffff")
    a("s_mov_b32 s11, 0xffff")
    a("s_movk_i32 s78, 0xff")
    a("s_mov_b32 s76, 0x07060302")

    def frag(b):
        for q in range(4):
            a(f"ds_read_b64_tr_b16 {vr(AF+8*b+2*q,2)}, v{8+b//3} offset:{16384*(b%3)+4096*(q>>1)+1024*(q&1)}")
    a("s_cmp_ge_u32 s3, s15")
    a("s_cbranch_scc1 DN_NL")
    a("v_mov_b32 v23, 1")
    a("s_cmp_lt_u32 s2, 80")
    a("s_cbranch_scc1 DN_LS")
    a(f"s_waitcnt vmcnt({DNL*16//6})")
    a("s_branch DN_LP")
    a.lab("DN_LS")
    a(f"s_waitcnt vmcnt({DNL})")
    if env("BLATE", 0):
        a("s_mov_b64 exec, s[80:81]")
        a("s_cbranch_execz DN_NOB")
        a(f"global_store_dwordx2 v55, v[48:49], {sr(P_WS,2)} sc1")
        a.lab("DN_NOB")
        a("s_mov_b64 exec, -1")
    a.lab("DN_LP")
    post(a, 21, C1, 23)
    a.lab("DN_NL")
    a("s_cmp_ge_u32 s3, s13")
    a("s_cbranch_scc1 DN_NOF")
    spin(a, 21, C1, "ne", "s15", 23, 9, sleep=2)
    for b in range(9 - DNL):
        frag(b)
    a.lab("DN_NOF")
    a("s_waitcnt vmcnt(0) lgkmcnt(0)")
    a("s_barrier")
    a.stamp(3)
    a("s_cmp_ge_u32 s3, s13")
    a("s_cbranch_scc1 DN_NOF2")
    for b in range(9 - DNL, 9):
        frag(b)
    a.lab("DN_NOF2")
    a("s_cmp_lt_u32 s3, 3")
    a("s_cbranch_scc1 DN_W")
    a("s_mov_b32 s12, 0")
    a.lab("DN_POLL")
    a("s_add_u32 s12, s12, 1")
    a(f"s_and_b32 s8, s12, {env('BEV', 63)}")
    a("s_cselect_b32 s8, 0, 2048")
    a("v_add_u32 v20, s8, v16")
    a(f"global_load_dwordx4 {vr(BF,4)}, v20, {sr(P_WS,2)} sc1")
    a(f"global_load_dwordx4 {vr(BF+4,4)}, v20, {sr(P_WS,2)} offset:16 sc1")
    a("s_waitcnt vmcnt(0)")
    a(f"v_xor_b32 v20, v{BF}, v14")
    for r in range(BF + 1, BF + 8):
        a(f"v_bitop3_b32 v20, v20, v{r}, v14 bitop3:0xf6")
    a("v_and_b32 v20, 0xffff, v20")
    a("v_cmp_ne_u32 vcc, 0, v20")
    a(f"s_cmp_ge_u32 s12, {4*SPIN}")
    a("s_cbranch_scc1 DN_GOT")
    a("s_cbranch_vccnz DN_POLL")
    a.lab("DN_GOT")
    for p in range(4):
        a(f"v_perm_b32 v{BF+8+p}, v{BF+4*(p&1)+2+(p>>1)}, v{BF+4*(p&1)+(p>>1)}, s76")
    a(f"ds_write_b64 v17, {vr(BF+8,2)}")
    a(f"ds_write_b64 v17, {vr(BF+10,2)} offset:{HP2}")
    a.lab("DN_W")
    a("s_waitcnt lgkmcnt(0)")
    a("s_barrier")
    a.stamp(5)
    a("s_cmp_ge_u32 s3, s13")
    a("s_cbranch_scc1 W_END")
    for b in range(9):
        a(f"ds_read_b128 {vr(BF+4*b,4)}, v11 offset:{128*b}")
    for b in range(9):
        a(f"s_waitcnt lgkmcnt({8-b})")
        a(f"v_smfmac_f32_16x16x64_bf16 {vr(AC,4)}, {vr(BF+4*b,4)}, {vr(AF+8*b,8)}, v22")
    S = 136
    a.nop(8)
    a(f"v_add_f32 v{S}, v{AC}, v{AC+1}")
    a(f"v_add_f32 v{S+1}, v{AC+2}, v{AC+3}")
    a(f"v_bfi_b32 v{S+2}, s78, v14, v{S}")
    a(f"v_bfi_b32 v{S+3}, s78, v14, v{S+1}")
    a(f"v_bfi_b32 v{S}, s78, v14, v{S}")
    a(f"v_bfi_b32 v{S+1}, s78, v14, v{S+1}")
    a.nop(1)
    a(f"v_permlane16_swap_b32 v{S}, v{S+2}")
    a(f"v_permlane16_swap_b32 v{S+1}, v{S+3}")
    a("s_mov_b64 exec, s[10:11]")
    a(f"global_store_dwordx4 v12, {vr(S,4)}, {sr(P_WS,2)} sc1")
    a(f"s_cmp_lg_u32 s3, {env('HWV', 3)}")
    a("s_cbranch_scc1 DN_NOHINT")
    a("s_lshl_b32 s8, s4, 7")
    a("s_lshl_b32 s9, s5, 2")
    a("s_add_u32 s8, s8, s9")
    a("v_mov_b32 v20, s8")
    a(f"global_store_dword v20, v14, {sr(P_WS,2)} offset:{WS_HINT-36}")
    if env("WBD", 0):
        a("s_cmp_ge_u32 s2, 80")
        a("s_cbranch_scc1 DN_NOHINT")
        if env("WBD", 0) > 1:
            a(f"s_sleep {env('WBD', 0)}")
        a("buffer_wbl2 sc1")
    a("s_cmp_lg_u32 s2, 72")
    a("s_cbranch_scc1 DN_NOHINT")
    a("v_mov_b32 v20, 0")
    a(f"global_store_dword v20, v14, {sr(P_WS,2)} sc1")
    a.lab("DN_NOHINT")
    a.stamp(6)
    a.end()


def pf_gu(a, sq, r0, vbase, vt):
    a(f"s_mul_i32 s8, s{sq}, 7282")
    a("s_lshr_b32 s8, s8, 16")
    a("s_mul_i32 s9, s8, 9")
    a(f"s_sub_u32 s9, s{sq}, s9")
    a("s_lshl_b32 s9, s9, 7")
    a("s_bitcmp1_b32 s8, 0")
    a(f"s_cselect_b32 s12, s{P_WU}, s{P_WG}")
    a(f"s_cselect_b32 s13, s{P_WU+1}, s{P_WG+1}")
    if UROT:
        a(f"s_cselect_b32 s14, {UROT}, 0")
    a("s_lshr_b32 s8, s8, 1")
    a(f"s_add_u32 s8, s8, {r0}")
    if UROT:
        a("s_add_u32 s8, s8, s14")
        a("s_cmp_ge_u32 s8, 9")
        a("s_cselect_b32 s14, 9, 0")
        a("s_sub_u32 s8, s8, s14")
    a(f"s_mul_i32 s8, s8, {64*9216}")
    a("s_add_u32 s8, s8, s9")
    a(f"v_add_u32 v{vt}, s8, v{vbase}")
    a(f"global_load_dword v{vt+1}, v{vt}, s[12:13] {PFL}")


SG, SU, SD, SX, SDB, SW = 52, 56, 60, 64, 68, 72


def ffn_round(a, h):
    i = h >> 1
    a(f"s_add_u32 m0, s15, {8192*i+L_UP*(h&1)}")
    a(f"s_add_u32 s8, s14, {64*9216*((i+UROT*(h&1))%9)}")
    a(f"buffer_load_dwordx4 v5, {sr(SU if h & 1 else SG,4)}, s8 offen {os.environ.get('WFL', '')} lds")


def ffn_pro(a):
    a.lab("F_PRO")
    a("s_mul_i32 s6, s4, 9")
    a("s_add_u32 s6, s6, s5")
    a("v_lshrrev_b32 v6, 3, v2")
    a("v_and_b32 v7, 2, v6")
    a("v_mad_u32_u24 v7, v7, 3, v6")
    a("v_mul_u32_u24 v5, 9216, v7")
    a("v_and_b32 v7, 6, v6")
    a("v_xor_b32 v7, v7, v2")
    a("v_and_b32 v7, 7, v7")
    a("v_lshl_add_u32 v5, v7, 4, v5")
    a("s_and_b32 s8, s3, 1")
    a("s_lshr_b32 s9, s3, 1")
    a("s_lshl_b32 s9, s9, 3")
    a("s_add_u32 s8, s8, s9")
    a(f"s_mul_i32 s14, s8, {2*9216}")
    a("s_lshl_b32 s8, s6, 7")
    a("s_add_u32 s14, s14, s8")
    a("s_lshl_b32 s15, s3, 10")
    a(f"s_mov_b32 s{SG+2}, 5308416")
    a(f"s_mov_b32 s{SG+3}, 0x20000")
    a(f"s_mov_b32 s{SU+2}, 5308416")
    a(f"s_mov_b32 s{SU+3}, 0x20000")
    a("s_waitcnt lgkmcnt(0)")
    a(f"s_mov_b64 {sr(SG,2)}, {sr(P_WG,2)}")
    a(f"s_mov_b64 {sr(SU,2)}, {sr(P_WU,2)}")
    a("s_barrier")
    a("s_branch F_MAIN")


C1, C2, C3 = SELL - M3, SELL - M3 + 4, SELL - M3 + 8


def ffn_main(a):
    a.lab("F_MAIN")
    issue = lambda n: ffn_round(a, n)
    NG = 18
    a("v_and_b32 v7, 7, v2")
    if TLB:
        a("s_cmp_ge_u32 s3, 2")
        a("s_cbranch_scc1 F_NOTLB")
        a(f"v_and_b32 v8, {TLB-1}, v2")
        a(f"v_mul_u32_u24 v8, {576//TLB*9216}, v8")
        a("s_lshl_b32 s8, s6, 7")
        a(f"s_add_u32 s8, s8, {(576//TLB-1)*9216}")
        a("v_add_u32 v8, s8, v8")
        a("s_cmp_eq_u32 s3, 0")
        a(f"s_cselect_b32 s12, s{P_WU}, s{P_WG}")
        a(f"s_cselect_b32 s13, s{P_WU+1}, s{P_WG+1}")
        a("global_load_dword v23, v8, s[12:13]")
        a.lab("F_NOTLB")
    for i in range(RA):
        issue(i)
    if RA == 0:
        a("v_mov_b32 v8, 0")
        a(f"global_load_dword v23, v8, {sr(P_WR,2)}")
    a("s_and_b32 s12, s3, 3")
    a("v_and_b32 v18, 1, v4")
    a("v_bfe_u32 v6, v2, 2, 2")
    a("v_lshl_add_u32 v18, v18, 2, v6")
    a("v_lshrrev_b32 v6, 1, v18")
    a("v_xor_b32 v6, s12, v6")
    a("v_lshlrev_b32 v18, 7, v18")
    a("v_lshl_add_u32 v18, v6, 5, v18")
    a("v_and_b32 v6, 3, v2")
    a("v_lshl_add_u32 v18, v6, 3, v18")
    a("v_lshrrev_b32 v6, 1, v4")
    a("v_lshl_add_u32 v18, v6, 11, v18")
    a(f"v_add_u32 v6, {L_UP}, v18")
    a("v_add_u32 v0, 40960, v18")
    a("v_add_u32 v1, 40960, v6")
    sparse_lane(a, 8, 9, XSP, XS)
    a("s_lshl_b32 s8, s6, 12")
    a("s_lshl_b32 s9, s3, 9")
    a("s_add_u32 s8, s8, s9")
    a(f"s_add_u32 s8, s8, {WS_H}")
    a("v_lshl_add_u32 v11, v2, 3, s8")
    a("s_mov_b32 s76, 0xffff")
    a(f"v_mov_b32 v21, {M3}")
    a("v_mov_b32 v22, 1")
    a("s_mov_b32 s10, 0xff00ff00")
    a("s_mov_b32 s11, 0xff00ff00")
    touch(a, "F")
    a("s_waitcnt vmcnt(0)")
    for i in range(RA, RB):
        issue(i)
    for j in range(8):
        a(f"v_mov_b32 v{160+j}, 0")
    a("s_barrier")
    a("ds_read_b32 v14, v21 offset:4")
    AG, XB, AC = 24, 136, 160
    for i in range(RB, NG):
        w = WIN if i < WSW else WIN2
        if i - RA >= w:
            a(f"s_waitcnt vmcnt({w-1})")
        issue(i)
        if env("FST", 0):
            if i in (5, 7, 9, 11, 13, 15, 17):
                a.stamp(1 + (5, 7, 9, 11, 13, 15, 17).index(i))
        elif i == 13:
            a.stamp(1)
    if env("FST", 0):
        a.stamp = lambda i: None
    a.stamp(2)

    NE, NX = 7, 6
    assert LATE == 2 and not UROT

    def rda(i):
        for m in range(2):
            va, o = ((18, 6)[m], 8192 * i) if i < 5 else (m, 8192 * (i - 5))
            for q in range(4):
                a(f"ds_read_b64_tr_b16 {vr(AG+16*(i%NE)+8*m+2*q,2)}, v{va} offset:{o+4096*(q>>1)+1024*(q&1)}")

    def rdx(i):
        a(f"ds_read_b128 {vr(XB+4*(i%NX),4)}, v8 offset:{128*i}")
    a(f"s_waitcnt vmcnt({2*LATE})")
    post(a, 21, C1, 22)
    a("s_cmp_ge_u32 s3, 4")
    a("s_cbranch_scc1 F_LD")
    spin(a, 21, C1, "ne", 8, 23, 9, sleep=0)
    for i in range(NE):
        rda(i)
    if STAGE:
        spin(a, 21, C2, "eq", 0, 23, 9, sleep=0)
        for i in range(NX):
            rdx(i)
        for i in range(NE):
            a(f"s_waitcnt lgkmcnt({NX-1-i+min(max(i-1,0),3) if i < NX else 2})")
            for m in range(2):
                a(f"v_smfmac_f32_16x16x64_bf16 {vr(AC+4*m,4)}, {vr(XB+4*(i%NX),4)}, {vr(AG+16*(i%NE)+8*m,8)}, v9")
            if 1 <= i <= 3:
                rdx(NX + i - 1)
    a.lab("F_LD")
    a("s_waitcnt vmcnt(0)")
    a.stamp(3)
    a("s_barrier")
    a.stamp(4)
    a("s_cmp_ge_u32 s3, 4")
    a("s_cbranch_scc1 RELAY")
    q = []
    if STAGE:
        for i in range(NE, 9):
            rda(i)
        for i in range(NE, 9):
            for m in range(2):
                a(f"s_waitcnt lgkmcnt({8*(8-i)+4*(1-m)})")
                a(f"v_smfmac_f32_16x16x64_bf16 {vr(AC+4*m,4)}, {vr(XB+4*(i%NX),4)}, {vr(AG+16*(i%NE)+8*m,8)}, v9")
    for i in range(NX if not STAGE else 0):
        rdx(i)
        q.append(("x", i))
    for i in range(9 if not STAGE else 0):
        hit = [j for j, e in enumerate(q) if e in (("x", i), ("a", i))]
        if hit:
            a(f"s_waitcnt lgkmcnt({min(15, len(q)-1-hit[-1])})")
            del q[:hit[-1] + 1]
        for m in range(2):
            a(f"v_smfmac_f32_16x16x64_bf16 {vr(AC+4*m,4)}, {vr(XB+4*(i%NX),4)}, {vr(AG+16*(i%NE)+8*m,8)}, v9")
        if 1 <= i <= 3:
            rdx(NX + i - 1)
            q.append(("x", NX + i - 1))
        if 1 <= i <= 2:
            rda(NE + i - 1)
            q += [("a", NE + i - 1)] * 8
    a.nop(7)
    a(f"v_add_f32 v24, v{AC}, v{AC+1}")
    a(f"v_add_f32 v25, v{AC+2}, v{AC+3}")
    a(f"v_add_f32 v26, v{AC+4}, v{AC+5}")
    a(f"v_add_f32 v27, v{AC+6}, v{AC+7}")
    for r in range(24, 28):
        a(f"v_cvt_pk_bf16_f32 v{r}, 0, v{r}")
    for op in ("v_mul_f32 v{t}, 0xbfb8aa3b, v{g}", "v_exp_f32 v{t}, v{t}", "v_add_f32 v{t}, 1.0, v{t}", "v_rcp_f32 v{t}, v{t}",
               "v_mul_f32 v{g}, v{g}, v{t}", "v_cvt_pk_bf16_f32 v{g}, 0, v{g}", "v_mul_f32 v{g}, v{g}, v{u}",
               "v_cvt_pk_bf16_f32 v{g}, 0, v{g}", "v_bfi_b32 v{g}, s76, v14, v{g}"):
        for j in range(2):
            a(op.format(g=24 + j, u=26 + j, t=28 + j))
    a(f"global_store_dwordx2 v11, v[24:25], {sr(P_WS,2)}")
    a(f"global_store_dwordx2 v11, v[24:25], {sr(P_WS,2)} offset:2048 sc1")
    a.stamp(6)
    a.lab("RELAY")
    a("s_cmp_ge_u32 s2, 64")
    a("s_cbranch_scc1 W_END")
    a(f"v_mov_b32 v30, {CAND}")
    a("ds_read_b128 v[32:35], v30")
    a("ds_read_b128 v[36:39], v30 offset:16")
    a("s_xor_b32 s12, s3, 4")
    a("s_lshl_b32 s8, s12, 12")
    a("s_lshl_b32 s9, s2, 6")
    a("s_add_u32 s8, s8, s9")
    a(f"s_add_u32 s8, s8, {WS_R}")
    a(f"v_mul_u32_u24 v30, {RP}, v3")
    a("v_lshl_add_u32 v30, v4, 4, v30")
    a("v_add_u32 v30, s8, v30")
    a("s_lshl_b32 s8, s12, 8")
    a("s_and_b32 s9, s2, 15")
    a("s_lshl_b32 s9, s9, 4")
    a("s_add_u32 s8, s8, s9")
    a("s_lshr_b32 s9, s2, 4")
    a("s_add_u32 s8, s8, s9")
    a("v_lshl_add_u32 v31, v4, 2, s8")
    a("v_mul_u32_u24 v31, 1152, v31")
    a("s_mov_b64 s[72:73], -1")
    a("s_waitcnt lgkmcnt(0)")
    for i in range(8):
        a(f"v_cmp_ne_u32 vcc, v31, v{32+i}")
        a("s_and_b64 s[72:73], s[72:73], vcc")
    a("v_lshl_add_u32 v31, v3, 3, v31")
    a(f"s_cmp_lt_u32 s12, {env('RH', 2)}")
    a("s_cbranch_scc1 RL_GO")
    if env("RBAR", 1):
        a("s_cmp_lg_u32 s3, 3")
        a("s_cbranch_scc1 RL_B")
    a("s_lshl_b32 s8, s4, 7")
    a("v_mov_b32 v40, s8")
    a("s_mov_b32 s9, 0")
    a.lab("RL_H")
    a("s_sleep 2")
    a(f"global_load_dword v41, v40, {sr(P_WS,2)} offset:{WS_HINT+env('RHW', 1)*4} sc1")
    a("s_add_u32 s9, s9, 1")
    a("s_waitcnt vmcnt(0)")
    a("v_cmp_ne_u32 vcc, v41, v14")
    a(f"s_cmp_ge_u32 s9, {env('RHN', 64)}")
    a("s_cbranch_scc1 RL_B")
    a("s_cbranch_vccnz RL_H")
    a.lab("RL_B")
    if env("RBAR", 1):
        a("s_barrier")
    a.lab("RL_GO")
    a("s_mov_b32 s9, 0")
    a.lab("RL_P")
    a(f"global_load_dwordx4 v[44:47], v30, {sr(P_WS,2)} sc1")
    a("s_add_u32 s9, s9, 1")
    a("s_waitcnt vmcnt(0)")
    a("v_xor_b32 v41, v44, v14")
    a("v_bitop3_b32 v41, v41, v45, v14 bitop3:0xf6")
    a("v_cmp_ne_u32 vcc, 0, v41")
    a(f"s_cmp_ge_u32 s9, {SPIN}")
    a("s_cbranch_scc1 RL_X")
    a("s_cbranch_vccz RL_X")
    a("s_mov_b64 exec, vcc")
    a(f"s_sleep {env('RSL', 3)}")
    a("s_branch RL_P")
    a.lab("RL_X")
    a("s_mov_b64 exec, s[72:73]")
    a("s_cbranch_execz W_END")
    a(f"global_store_dwordx2 v31, v[46:47], {sr(P_OUT,2)} offset:1024 {os.environ.get('RFL', '')}")
    a.stamp(5)
    a.end()
    if env("FST", 0):
        del a.stamp


def selector(a):
    a.lab("SEL_MAIN")
    a("v_min_u32 v19, 8, v2")
    a("v_lshlrev_b32 v19, 7, v19")
    a("v_lshlrev_b32 v20, 2, v2")
    PA, K0, IX, CS, CR, T0, T1, L0, C0 = 24, 28, 32, 25, 26, 36, 37, 40, 44
    gran_addr(a, PA, T0, T1)
    a(f"s_mul_i32 s8, s3, {16*KP}")
    a(f"v_add_u32 v{PA}, s8, v{PA}")
    a("s_cmp_eq_u32 s3, 7")
    a("s_cselect_b64 vcc, -1, 0")
    a(f"v_cndmask_b32 v{PA}, v{PA}, v{T0}, vcc")
    a(f"v_add_u32 v{PA}, {WS_KEY}, v{PA}")
    a("s_lshl_b32 s8, s3, 8")
    a("s_sub_u32 s8, 0xfff, s8")
    a(f"v_sub_u32 v{IX}, s8, v20")
    for i in range(1, 4):
        a(f"v_subrev_u32 v{IX+i}, {i}, v{IX}")
    a(f"v_mov_b32 v21, {M3}")
    a("s_lshl_b32 s8, s3, 5")
    a(f"s_add_u32 s8, s8, {CAND}")
    a(f"v_lshl_add_u32 v{CS}, v4, 3, s8")
    a("s_mov_b32 s74, 0x01010101")
    a("s_mov_b32 s75, 0x01010101")
    a("s_lshl_b32 s9, s4, 10")
    a(f"s_add_u32 s9, s9, {WS_REP}")
    a("v_lshl_add_u32 v53, v2, 4, s9")
    a(f"global_load_dword v54, v53, {sr(P_WS,2)} sc1")
    a("v_lshrrev_b32 v52, 3, v2")
    a("v_lshl_add_u32 v52, v52, 6, s9")
    CO = 27
    a(f"v_and_b32 v{CO}, 28, v20")
    a(f"v_add_u32 v{CO}, s8, v{CO}")
    a(f"v_add_u32 v{CR}, {CAND}, v20")
    a("s_mov_b32 s76, 0xffff")
    a("s_mov_b32 s10, 0x00010001")
    a("s_mov_b32 s11, 0x00010001")
    touch(a, "S")
    a("s_barrier")
    a("ds_read_b32 v14, v21 offset:4")
    a.stamp(1)
    a("s_mov_b32 s7, 0")
    a("s_waitcnt lgkmcnt(0)")
    if PW >= 0:
        a(f"s_waitcnt vmcnt({PW})")
    if env("NOK", 0) & 2:
        a("s_branch F_GOT")
    a.lab("F_POLL")
    a(f"global_load_dwordx4 {vr(K0,4)}, v{PA}, {sr(P_WS,2)} sc1")
    a("s_add_u32 s7, s7, 1")
    a("s_waitcnt vmcnt(0)")
    a(f"v_xor_b32 v{T0}, v{K0}, v14")
    for i in range(1, 4):
        a(f"v_bitop3_b32 v{T0}, v{T0}, v{K0+i}, v14 bitop3:0xf6")
    a(f"v_and_b32 v{T0}, 0xffff, v{T0}")
    a(f"v_cmp_ne_u32 vcc, 0, v{T0}")
    a(f"s_cmp_ge_u32 s7, {SPIN}")
    a("s_cbranch_scc1 F_GOT")
    a("s_branch F_GOT" if env("NOK", 0) else "s_cbranch_vccz F_GOT")
    a("s_mov_b64 exec, vcc")
    if PSL:
        a(f"s_sleep {PSL}")
    a("s_branch F_POLL")
    a.lab("F_GOT")
    a("s_mov_b64 exec, -1")
    if env("GPF", 1):
        a(f"global_load_dword v56, v{PA}, {sr(P_WS,2)} offset:128 sc1")
    a.stamp(2)
    for i in range(4):
        a(f"v_bfi_b32 v{K0+i}, s76, v{IX+i}, v{K0+i}")
    a(f"v_max_u32 v{T0}, v{K0}, v{K0+1}")
    a(f"v_min_u32 v{T1}, v{K0}, v{K0+1}")
    a(f"v_max3_u32 v{L0}, v{T0}, v{K0+2}, v{K0+3}")
    a(f"v_med3_u32 v{L0+1}, v{T0}, v{K0+2}, v{K0+3}")
    a(f"v_med3_u32 v{L0+2}, v{T1}, v{K0+2}, v{K0+3}")
    a(f"v_max_u32 v{L0+1}, v{L0+1}, v{T1}")
    a(f"v_min_u32 v{L0+2}, v{L0+2}, v{T0}")
    for r in range(3):
        c = C0 + r
        a(f"v_max_u32_dpp v{c}, v{L0}, v{L0} row_ror:8 {DPPF}")
        for k in (4, 2, 1):
            a.nop(2)
            a(f"v_max_u32_dpp v{c}, v{c}, v{c} row_ror:{k} {DPPF}")
        if r < 2:
            a(f"v_cmp_eq_u32 vcc, v{L0}, v{c}")
            a.nop(2)
            a(f"v_cndmask_b32 v{L0}, v{L0}, v{L0+1}, vcc")
            if r == 0:
                a(f"v_cndmask_b32 v{L0+1}, v{L0+1}, v{L0+2}, vcc")
                a.nop(1)
            else:
                a.nop(2)
    a("s_mov_b64 exec, s[10:11]")
    a(f"ds_write_b64 v{CS}, {vr(C0,2)}")
    a(f"ds_max_u32 v21, v{C0+2}")
    a("s_mov_b64 exec, -1")
    cand = [77, 78, 79, 80, 81, 82, 83, 100]
    for i in range(8):
        a(f"v_readlane_b32 s{cand[i]}, v{C0+(i&1)}, {16*(i>>1)}")
    a(f"ds_read_b32 v48, v{CO}")
    a("v_mov_b32 v49, v14")
    a("s_lshl_b32 s72, s4, 8")
    a("s_lshl_b32 s73, s4, 10")
    a(f"s_add_u32 s73, s73, {WS_SELB}")
    a("s_waitcnt lgkmcnt(0)")
    a("s_barrier")
    a.stamp(7)
    a(f"ds_read_b32 v{T0}, v{CR}")
    a(f"ds_read_b32 v{T1}, v21")
    a("v_not_b32 v50, v48")
    a("v_and_b32 v50, 0x7ff, v50")
    a("v_mul_u32_u24 v50, 1152, v50")
    a("s_waitcnt lgkmcnt(0)")
    a(f"v_cmp_gt_u32 vcc, v{T0}, v{T1}")
    pairs = [18, 20, 22, 24, 26, 28, 30, 34]
    for i in range(8):
        a(f"v_cmp_lt_u32 {sr(pairs[i],2)}, s{cand[i]}, v{T0}")
    a("s_bcnt1_i32_b64 s8, vcc")
    a("s_mov_b64 s[80:81], 0")
    a("s_cmp_lt_u32 s8, 8")
    if not env("NOK", 0):
        a("s_cbranch_scc1 F_SLOW")
    for i in range(8):
        a(f"s_bcnt1_i32_b64 s{pairs[i]}, {sr(pairs[i],2)}")
        a(f"s_lshl_b64 exec, s[74:75], {i}")
        a(f"v_mov_b32 v{T1}, s{pairs[i]}")
    a("s_mov_b64 exec, -1")
    a(f"v_cmp_gt_u32 vcc, 8, v{T1}")
    a(f"v_lshl_add_u32 v52, v{T1}, 3, v52")
    a(f"v_lshl_add_u32 v55, v{T1}, 7, s73")
    a(f"v_lshl_add_u32 v{T1}, v{T1}, 3, s72")
    a("s_and_b64 exec, vcc, exec")
    a("s_cbranch_execz F_REST")
    a(f"global_store_dwordx2 v52, v[48:49], {sr(P_WS,2)}")
    a(f"global_store_dwordx2 v52, v[48:49], {sr(P_WS,2)} offset:512")
    a("s_and_b64 exec, vcc, 0xff")
    a(f"global_store_dwordx2 v{T1}, v[48:49], {sr(P_WS,2)} offset:{WS_SEL}")
    a.stamp(4)
    for k in range(9):
        a(f"global_load_dword v51, v50, {sr(P_U,2)} offset:{128*k}")
    if env("BLATE", 0):
        a("s_mov_b64 s[80:81], exec")
    else:
        a(f"global_store_dwordx2 v55, v[48:49], {sr(P_WS,2)} sc1")
    a.lab("F_REST")
    a("s_mov_b64 exec, -1")
    a("s_branch DN_L2")
    a.lab("F_SLOW")
    KY, TK = 28, 60
    gran_addr(a, 24, 26, 27)
    a(f"v_add_u32 v24, {WS_KEY}, v24")
    a(f"v_add_u32 v26, {WS_KEY}, v26")
    for k in range(8):
        a(f"global_load_dwordx4 {vr(KY+4*k,4)}, v{24 if k < 7 else 26}, {sr(P_WS,2)} sc1")
        a(f"v_add_u32 v24, {16*KP}, v24")
    a("v_sub_u32 v24, 0xfff, v20")
    a("s_waitcnt vmcnt(0)")
    for k in range(32):
        a(f"v_subrev_u32 v25, {256*(k>>2)+(k&3)}, v24")
        a(f"v_bfi_b32 v{KY+k}, s76, v25, v{KY+k}")
    a("s_mov_b32 s77, 0")
    a("s_mov_b32 s7, 0")
    a.lab("F_SLOOP")
    for j in range(32):
        a(f"v_subrev_u32 v{TK+j}, s77, v{KY+j}")
    a(f"v_max_u32 v{TK}, v{TK}, v{TK+1}")
    for j in range(15):
        a(f"v_max3_u32 v{TK}, v{TK}, v{TK+2+2*j}, v{TK+3+2*j}")
    for m in ("row_shr:1 " + DPPF, "row_shr:2 " + DPPF, "row_shr:4 " + DPPF, "row_shr:8 " + DPPF,
              "row_bcast:15 row_mask:0xa bank_mask:0xf", "row_bcast:31 row_mask:0xc bank_mask:0xf"):
        a.nop(2)
        a(f"v_max_u32_dpp v{TK}, v{TK}, v{TK} {m}")
    a.nop(1)
    a(f"v_readlane_b32 s8, v{TK}, 63")
    a("s_add_u32 s77, s77, s8")
    a("s_add_u32 s7, s7, 1")
    a("s_cmp_le_u32 s7, s3")
    a("s_cbranch_scc1 F_SLOOP")
    a("s_mov_b64 exec, 1")
    a("v_mov_b32 v48, s77")
    a("v_mov_b32 v49, v14")
    a("s_lshl_b32 s8, s3, 3")
    a("s_add_u32 s8, s8, s72")
    a("v_mov_b32 v50, s8")
    a(f"global_store_dwordx2 v50, v[48:49], {sr(P_WS,2)} offset:{WS_SEL}")
    a("s_lshl_b32 s8, s3, 7")
    a("s_add_u32 s8, s8, s73")
    a("v_mov_b32 v50, s8")
    a(f"global_store_dwordx2 v50, v[48:49], {sr(P_WS,2)} sc1")
    a("s_branch F_REST")


def ck_pro(a):
    a.lab("CK_PRO")
    a("s_and_b32 s7, s3, 3")
    a("s_lshr_b32 s12, s3, 2")
    a("s_lshl_b32 s8, s6, 2")
    a("s_add_u32 s8, s8, s7")
    a("s_lshl_b32 s9, s8, 8")
    a("v_lshl_add_u32 v6, v2, 2, s9")
    a("s_lshl_b32 s8, s8, 1")
    a("v_mov_b32 v7, s8")
    a("v_mov_b32 v18, 0")
    a("s_waitcnt lgkmcnt(0)")
    a(f"global_load_short_d16_hi v18, v7, {sr(P_LDT,2)}")
    for k in range(6):
        a(f"global_load_dword v{28+k}, v6, {sr(P_ARE+2*k,2)}")
    if env("PST", 0):
        a.stamp(3)
    a("s_barrier")
    if env("PST", 0):
        a.stamp(4)
    a("s_branch CK_MAIN")


def cmul(a, d, x, y, t):
    a(f"v_pk_mul_f32 {vr(t,2)}, {vr(x,2)}, {vr(y,2)} op_sel:[1,1] op_sel_hi:[1,0]")
    a(f"v_pk_fma_f32 {vr(d,2)}, {vr(x,2)}, {vr(y,2)}, {vr(t,2)} op_sel:[0,0,0] op_sel_hi:[0,1,1] neg_lo:[0,0,1]")


ZC = 140


def zconst(a):
    S, H = 76, 80
    a("v_lshlrev_b32 v74, 3, v4")
    a("v_sub_u32 v74, v74, v3")
    a("v_and_b32 v74, 0xffff, v74")
    a("v_lshl_or_b32 v74, v74, 16, v74")
    a("v_mov_b32 v75, 0x3f803f80")
    a("s_mul_i32 s8, s7, 0x20002")
    a("s_add_u32 s8, s8, 0xfff0fff1")
    a(f"v_pk_add_u16 v{S}, v74, s8")
    th = (3, 4, 5, 6, 11, 12, 13)
    for i, t in enumerate(th):
        a(f"v_pk_add_u16 v{H+i}, v{S}, {t-1} op_sel_hi:[1,0]")
        a(f"v_pk_ashrrev_i16 v{H+i}, 15, v{H+i} op_sel_hi:[0,1]")
    a("s_lshl_b32 s8, s7, 2")
    a(f"s_add_u32 s8, s8, {ZM}")
    a("v_lshl_add_u32 v74, v2, 4, s8")
    for m, (lo, hi) in enumerate(((3, 6), (6, 11), (5, 12), (4, 13), (3, 5))):
        x, y = H + th.index(lo), H + th.index(hi)
        if m < 4:
            a(f"v_bitop3_b32 v{H+8+m}, v{x}, v{y}, v75 bitop3:0x28")
        else:
            a(f"v_xor_b32 v{H+8+m}, v{x}, v{y}")
        a(f"ds_write_b32 v74, v{H+8+m} offset:{1024*m}")


def ck_main(a):
    a.lab("CK_MAIN")
    if env("PST", 0):
        a.stamp(5)
    a(f"s_mul_i32 s13, s7, {CHP}")
    a(f"s_add_u32 s13, s13, {CH0}")
    a("s_lshr_b32 s14, s7, 1")
    a(f"s_mul_i32 s14, s14, {STG2}")
    a("s_and_b32 s8, s7, 1")
    a("s_lshl_b32 s8, s8, 9")
    a("s_add_u32 s14, s14, s8")
    a("s_lshl_b32 s8, s12, 8")
    a("s_add_u32 m0, s14, s8")
    for j in range(4):
        a(f"v_mov_b32 v{124+j}, 0")
    a("s_lshl_b32 s8, s12, 11")
    a("s_add_u32 s8, s8, s13")
    a("v_lshl_add_u32 v20, v2, 4, s8")
    a("ds_write_b128 v20, v[124:127]")
    a("ds_write_b128 v20, v[124:127] offset:1024")
    a(f"v_mul_u32_u24 v128, {TSP}, v3")
    a("v_lshl_add_u32 v128, v4, 4, v128")
    a("v_add_u32 v128, s14, v128")
    a("s_lshl_b32 s8, s3, 2")
    a(f"s_add_u32 s9, s8, {SYN+32}")
    a("v_mov_b32 v129, s9")
    a("s_xor_b32 s8, s8, 16")
    a(f"s_add_u32 s9, s8, {SYN+32}")
    a("v_mov_b32 v130, s9")
    a("v_mov_b32 v21, 0x3c00")
    a(f"ds_write_addtid_b32 v21 offset:{41*TSP}")
    a(f"v_mov_b32 v22, {L2E:#x}")
    a(f"v_mov_b32 v23, {L2E_LO:#x}")
    a(f"v_mov_b32 v24, {L2E:#x}")
    a(f"v_mov_b32 v25, {INV2PI:#x}")
    a("s_mov_b32 s15, 0x7fff7fff")
    a("s_cmp_eq_u32 s12, 0")
    a("s_mov_b32 s73, 0x01000c0c")
    a("s_cselect_b32 s73, s73, 0x03020c0c")
    a("s_waitcnt vmcnt(6)")
    a("v_mul_f32 v19, v18, v22")
    a("v_fma_f32 v22, v18, v22, -v19")
    a("v_exp_f32 v19, v19")
    a("v_fma_f32 v22, v18, v23, v22")
    a(f"v_mul_f32 v22, {LN2:#x}, v22")
    a("v_fma_f32 v19, v19, v22, v19")
    a("v_cvt_pk_bf16_f32 v19, v19, v19")
    a("v_and_b32 v18, 0xffff0000, v19")
    a("v_pk_mul_f32 v[24:25], v[24:25], v[18:19] op_sel_hi:[1,0]")
    a("s_waitcnt vmcnt(0)")
    a.stamp(1)
    X, W, E1, Q, R, QC, T1, T2 = 40, 56, 58, 60, 62, 64, 66, 68
    Z = 8
    for k in range(4):
        a(f"v_and_b32 v{14+k}, s15, v{30+k}")
    for k in range(6):
        a(f"v_perm_b32 v{8+k}, v{28+k}, v{28+k}, s73")
    a("v_pk_max_u16 v14, v14, v15")
    a("v_pk_max_u16 v16, v16, v17")
    a("v_lshlrev_b32 v15, 16, v14")
    a("v_lshlrev_b32 v17, 16, v16")
    a("v_pk_mul_f32 v[14:15], v[14:15], v[16:17]")
    a(f"v_pk_mul_f32 {vr(Z,2)}, {vr(Z,2)}, v[24:25]")
    a("v_max_f32 v14, v14, v15")
    a("v_pk_mul_f32 v[10:11], v[10:11], v[18:19] op_sel_hi:[1,0]")
    a("v_mul_f32 v14, v14, v18")
    dpp = ["row_shr:1 " + DPPF, "row_shr:2 " + DPPF, "row_shr:4 " + DPPF, "row_shr:8 " + DPPF,
           "row_bcast:15 row_mask:0xa bank_mask:0xf", "row_bcast:31 row_mask:0xc bank_mask:0xf"]
    fill = []
    b = Asm()
    cmul(b, W, 12, 10, T1)
    b(f"v_mul_f32 v{Q}, {fbits(8):#x}, v{Z}")
    b(f"v_mul_f32 v{Q+1}, {fbits(-8):#x}, v{Z+1}")
    b(f"v_mul_f32 v{R}, {fbits(128):#x}, v{Z}")
    b(f"v_mul_f32 v{R+1}, {fbits(128):#x}, v{Z+1}")
    b(f"v_fract_f32 v{E1+1}, v{Z+1}")
    b(f"v_fract_f32 v{Q+1}, v{Q+1}")
    b(f"v_fract_f32 v{R+1}, v{R+1}")
    b(f"v_exp_f32 v20, v{Z}")
    b(f"v_exp_f32 v22, v{Q}")
    b(f"v_exp_f32 v26, v{R}")
    for r_ in (Q, E1, R):
        b(f"v_cos_f32 v{r_}, v{r_+1}")
        b(f"v_sin_f32 v{r_+1}, v{r_+1}")
    fill = b.L
    fi = 0
    for m in dpp:
        a.L += fill[fi:fi + 2]
        fi += 2
        a(f"v_max_u32_dpp v14, v14, v14 {m}")
    a.L += fill[fi:fi + 1]
    fi += 1
    a("v_readlane_b32 s8, v14, 63")
    a.L += fill[fi:]
    a("s_lshr_b32 s8, s8, 23")
    a("s_sub_i32 s8, 258, s8")
    a("s_max_i32 s8, s8, 1")
    a("s_min_i32 s8, s8, 253")
    a("s_lshl_b32 s10, s8, 23")
    a(f"v_pk_mul_f32 {vr(Q,2)}, {vr(Q,2)}, v[22:23] op_sel_hi:[1,0]")
    a(f"v_pk_mul_f32 {vr(E1,2)}, {vr(E1,2)}, v[20:21] op_sel_hi:[1,0]")
    a(f"v_pk_mul_f32 {vr(R,2)}, {vr(R,2)}, v[26:27] op_sel_hi:[1,0]")
    a(f"v_pk_mul_f32 {vr(W,2)}, {vr(W,2)}, s[10:11] op_sel_hi:[1,0]")
    cnt = [0]

    def emit(row, x):
        o = 70 + cnt[0] % 4
        cnt[0] += 1
        a(f"v_cvt_pk_f16_f32 v{o}, v{x}, v{x+1}")
        if env("KSKIP", 0) != 2:
            a(f"ds_write_addtid_b32 v{o} offset:{row*TSP}")

    xc = lambda c: X + 2 * (c - 1)
    if env("KSKIP", 0) == 1:
        a("s_branch CK_SKIP")
    emit(42, Q)
    emit(40, W)
    for c in range(1, 9):
        cmul(a, xc(c), W if c == 1 else xc(c - 1), E1, T1)
        emit(c - 1, xc(c))
    for c in range(1, 9):
        cmul(a, xc(c), xc(c), R, T1)
        emit(8 + c - 1, xc(c))
    for aa in (2, 3):
        for c in (2, 4, 6, 8):
            cmul(a, xc(c), xc(c), R, T1)
            emit(16 + 4 * (aa - 2) + c // 2 - 1, xc(c))
    for aa in range(4, 8):
        for c in (4, 8):
            cmul(a, xc(c), xc(c), R, T1)
            emit(24 + 2 * (aa - 4) + c // 4 - 1, xc(c))
    for aa in range(8, 16):
        cmul(a, xc(8), xc(8), R, T1)
        emit(32 + aa - 8, xc(8))
    for bb in range(2, 16):
        cmul(a, QC, Q if bb == 2 else QC, Q, T1)
        emit(41 + bb, QC)
    a.lab("CK_SKIP")
    a.stamp(2)
    a("ds_write_b32 v129, v129")
    a("s_mov_b32 s9, 0")
    a.lab("CK_PAIR")
    a("ds_read_b32 v8, v130")
    a("s_add_u32 s9, s9, 1")
    a("s_waitcnt lgkmcnt(0)")
    a("v_cmp_eq_u32 vcc, 0, v8")
    a("s_cmp_ge_u32 s9, 0x40000")
    a("s_cbranch_scc1 CK_PAIRED")
    a("s_cbranch_vccnz CK_PAIR")
    a.lab("CK_PAIRED")
    a.stamp(7)
    CF, RF, RF2, AC = 8, 40, 72, 104
    a("s_sub_u32 s8, 254, s8")
    a("s_lshl_b32 s15, s8, 23")
    a("s_cmp_eq_u32 s12, 0")
    a("s_cbranch_scc0 CK_T1")
    for q in range(8):
        a(f"ds_read_b128 {vr(CF+4*q,4)}, v128 offset:{41*TSP+64*q}")
        a(f"ds_read_b128 {vr(RF+4*q,4)}, v128 offset:{64*q}")
    a("v_lshrrev_b32 v114, 1, v4")
    a("v_lshlrev_b32 v114, 8, v114")
    a("v_lshl_add_u32 v114, v3, 4, v114")
    a("v_and_b32 v115, 1, v4")
    a("v_lshl_add_u32 v114, v115, 3, v114")
    a("v_add_u32 v114, s13, v114")
    a("v_lshlrev_b32 v115, 5, v3")
    a("v_lshl_add_u32 v115, v4, 3, v115")
    a("v_add_u32 v115, s13, v115")
    a("v_mov_b32 v116, s13")
    for q in range(8):
        a(f"s_waitcnt lgkmcnt({min(15, 14-2*q+q)})")
        a(f"v_mfma_f32_16x16x32_f16 {vr(AC,4)}, {vr(RF+4*q,4)}, {vr(CF+4*q,4)}, {'0' if q == 0 else vr(AC,4)}")
        a(f"ds_read_b128 {vr(RF2+4*q,4)}, v128 offset:{32*TSP+64*q}")
    for q in range(8):
        a(f"s_waitcnt lgkmcnt({7-q})")
        a(f"v_mfma_f32_16x16x32_f16 {vr(AC+4,4)}, {vr(CF+4*q,4)}, {vr(RF2+4*q,4)}, {'0' if q == 0 else vr(AC+4,4)}")
    for j in range(4):
        a(f"v_mul_f32 v{AC+j}, s15, v{AC+j}")
    a(f"v_cvt_pk_bf16_f32 v118, v{AC}, v{AC+1}")
    a(f"v_cvt_pk_bf16_f32 v119, v{AC+2}, v{AC+3}")
    a(f"v_cvt_pk_bf16_f32 v120, v{AC+1}, v{AC+2}")
    a(f"v_cvt_pk_bf16_f32 v121, v{AC+3}, v{AC+3}")
    a(f"ds_write_b16 v114, v121 offset:{TO+4*(7+3)}")
    a(f"ds_write_b64 v114, v[120:121] offset:{TE+4*(7+1)}")
    a(f"ds_write_b64 v114, v[118:119] offset:{TO+4*(7+1)}")
    a(f"ds_write_b16 v114, v118 offset:{TE+4*7+2}")
    for j in range(4, 8):
        a(f"v_mul_f32 v{AC+j}, s15, v{AC+j}")
    a(f"v_cvt_pk_bf16_f32 v118, v{AC+4}, v{AC+5}")
    a(f"v_cvt_pk_bf16_f32 v119, v{AC+6}, v{AC+7}")
    a("s_mov_b32 s10, 0x00ff00ff")
    a("s_mov_b32 s11, 0x00ff00ff")
    a("s_mov_b64 exec, s[10:11]")
    a(f"ds_write_b64 v115, v[118:119] offset:{TS3+64}")
    a("s_mov_b64 exec, 0x100")
    a(f"ds_write_b16 v116, v118 offset:{TE+4*7}")
    a(f"ds_write_b16 v116, v118 offset:{TO+4*7+2}")
    a("s_mov_b64 exec, -1")
    a.stamp(6)
    d_wave(a)
    a.lab("CK_T1")
    for q in range(8):
        a(f"ds_read_b128 {vr(CF+4*q,4)}, v128 offset:{41*TSP+64*q}")
        a(f"ds_read_b128 {vr(RF+4*q,4)}, v128 offset:{16*TSP+64*q}")
    a("v_lshlrev_b32 v114, 8, v4")
    a("v_lshl_add_u32 v114, v3, 4, v114")
    a("v_add_u32 v114, s13, v114")
    a("v_lshlrev_b32 v115, 7, v4")
    a("v_lshl_add_u32 v115, v3, 2, v115")
    a("v_add_u32 v115, s13, v115")
    for q in range(8):
        a(f"s_waitcnt lgkmcnt({14-2*q})")
        a(f"v_mfma_f32_16x16x32_f16 {vr(AC,4)}, {vr(RF+4*q,4)}, {vr(CF+4*q,4)}, {'0' if q == 0 else vr(AC,4)}")
    a.nop(8)
    for j in range(4):
        a(f"v_mul_f32 v{AC+j}, s15, v{AC+j}")
    a(f"v_cvt_pk_bf16_f32 v116, v{AC}, v{AC+1}")
    a(f"v_cvt_pk_bf16_f32 v117, v{AC+1}, v{AC+1}")
    a(f"v_cvt_pk_bf16_f32 v118, v{AC+2}, v{AC+3}")
    a(f"v_cvt_pk_bf16_f32 v119, v{AC+3}, v{AC+3}")
    a(f"v_cvt_pk_bf16_f32 v120, v{AC+1}, v{AC+2}")
    a("s_mov_b32 exec_hi, 0")
    a(f"ds_write_b16 v114, v119 offset:{TE+512+4*(7+5)}")
    a(f"v_add_u32 v121, {TO+512}, v114")
    a(f"ds_write_b128 v114, v[116:119] offset:{TE+512+4*(7+1)}")
    a(f"ds_write2_b32 v121, v119, v119 offset0:{7+4} offset1:{7+5}")
    a(f"ds_write2_b32 v121, v117, v120 offset0:{7+2} offset1:{7+3}")
    a(f"ds_write_b16 v121, v116 offset:{4*(7+1)+2}")
    a("s_not_b64 exec, exec")
    a(f"ds_write_b32 v115, v116 offset:{TS2+128-256}")
    a(f"ds_write_b32 v115, v118 offset:{TS2+128-256+64}")
    a("s_mov_b64 exec, -1")
    z_wave(a)


def pf_item(a, sm, tag):
    ng = 9 - CR0
    a(f"s_cmp_ge_u32 s{sm}, {ng}")
    a(f"s_cbranch_scc1 CPF_D{tag}")
    a(f"s_mul_i32 s14, s{sm}, 18")
    a("s_add_u32 s14, s14, s101")
    a("v_mul_u32_u24 v140, 9216, v2")
    a("s_mul_i32 s8, s4, 1152")
    a("v_add_u32 v140, s8, v140")
    pf_gu(a, 14, CR0, 140, 148)
    a(f"s_branch CPF_X{tag}")
    a.lab(f"CPF_D{tag}")
    a(f"s_sub_u32 s14, s{sm}, {ng}")
    a("s_mul_i32 s14, s14, 18")
    a("s_add_u32 s14, s14, s101")
    a("s_min_u32 s14, s14, 80")
    a("s_mul_i32 s8, s4, 81")
    a("s_add_u32 s8, s8, 80")
    a("s_sub_u32 s8, s8, s14")
    a("s_lshl_b32 s8, s8, 13")
    a("v_lshl_add_u32 v148, v2, 7, s8")
    a(f"global_load_dword v149, v148, {sr(P_WD,2)} {PFL}")
    a.lab(f"CPF_X{tag}")


def c3_item(a, sq):
    a("s_sub_u32 s14, 3, s4")
    a("s_and_b32 s14, s14, 7")
    a(f"s_and_b32 s8, s{sq}, 1")
    a("s_lshl_b32 s8, s8, 3")
    a(f"s_lshr_b32 s9, s{sq}, 1")
    a("s_cmp_eq_u32 s4, 3")
    a("s_cselect_b32 s14, s8, s14")
    a(f"s_cselect_b32 s9, s9, s{sq}")
    a(f"s_add_u32 s9, s9, {env('C3H', 4)}")
    a("s_min_u32 s9, s9, 17")
    a("s_mul_i32 s9, s9, 9")
    a("s_add_u32 s14, s14, s9")
    a("v_mul_u32_u24 v140, 9216, v2")
    a("s_mul_i32 s8, s4, 1152")
    a("v_add_u32 v140, s8, v140")
    pf_gu(a, 14, 0, 140, 148)


def y_addr(a, v):
    a(f"v_mov_b32 v{v+3}, {SYN}")
    a(f"v_mov_b32 v{v+2}, 1")
    a("s_lshl_b32 s8, s7, 2")
    a(f"v_add_u32 v131, s8, v{v+3}")
    a("s_mov_b64 exec, 1")
    a(f"ds_add_u32 v131, v{v+2} offset:{CT}")
    a(f"ds_add_u32 v{v+3}, v{v+2} offset:{CK8}")
    a("s_mov_b64 exec, -1")
    a(f"v_mul_u32_u24 v{v}, 320, v4")
    a(f"v_lshl_add_u32 v{v}, v3, 4, v{v}")
    a(f"s_mul_i32 s8, s7, {YCH}")
    a(f"v_add_u32 v{v}, s8, v{v}")
    a("s_lshl_b32 s8, s3, 2")
    a(f"s_add_u32 s8, s8, {SYN+FLG}")
    a(f"v_mov_b32 v{v+1}, s8")


def d_wave(a):
    T, UR, AC = 8, 76, 108
    NR = 8
    y_addr(a, 124)
    a("v_and_b32 v5, 1, v3")
    a(f"v_mul_u32_u24 v5, {TO}, v5")
    a(f"v_sub_u32 v5, {TO+48}, v5")
    a("v_lshrrev_b32 v6, 1, v3")
    a("v_lshl_add_u32 v5, v6, 2, v5")
    a("v_lshlrev_b32 v6, 4, v4")
    a("v_sub_u32 v5, v5, v6")
    a("v_add_u32 v5, s13, v5")
    a("v_add_u32 v7, 576, v5")
    a("v_lshl_add_u32 v6, v3, 5, v6")
    a(f"v_add_u32 v6, {U0-480}, v6")
    a("v_add_u32 v6, s13, v6")
    spin(a, 131, CT, "ne", 2, 128, 9, sleep=0)
    for kp in (7, 6, 5, 4, 3, 2, 1, 0, 15, 14, 13, 12, 11, 10, 9, 8, 16):
        va, o = (5, 16 * kp) if kp < 9 else (7, 16 * (kp - 9))
        a(f"ds_read2_b32 {vr(T+4*kp,2)}, v{va} offset0:{o+3} offset1:{o+2}")
        a(f"ds_read2_b32 {vr(T+4*kp+2,2)}, v{va} offset0:{o+1} offset1:{o}")
    a.stamp(3)
    spin(a, 127, CK8, "ne", 12, 128, 9)
    a.lab("D_PASS")
    spin(a, 127, CCONV, "ne", 2, 128, 9, mask=15)
    a.stamp(4)
    a.lab("D_LOOP")
    if env("CLK", 0):
        a("s_memtime s[78:79]")
    AH = NR - 1
    started = set()
    for lo, hi in ((-7, 25), (25, 57)):
        q = []
        side = []
        nm = [0]

        def rd(b):
            a(f"ds_read_b128 {vr(UR+4*(b%NR),4)}, v6 offset:{64*(b+7)}")
            q.append(("r", b))
        if lo == 25:
            if env("CLK", 0):
                a("s_memtime s[80:81]")
                a("s_waitcnt lgkmcnt(0)")
                a("s_sub_u32 s80, s80, s78")
                a("s_add_u32 s98, s84, s80")
            if not env("KST", 0):
                a.stamp(1)
            spin(a, 127, CCONV, "ne", 34, 128, 9)
            if not env("KST", 0):
                a.stamp(2)
        for b in range(lo, lo + AH):
            rd(b)
        for beta in range(lo, hi):
            pos = q.index(("r", beta))
            a(f"s_waitcnt lgkmcnt({min(15, len(q)-1-pos)})")
            del q[:pos + 1]
            tiles = [A for A in range(8) if 0 <= 8 * A - beta <= 16]
            for k, A in enumerate(tiles):
                acc = vr(AC + 4 * (A % 4), 4)
                a(f"v_mfma_f32_16x16x32_bf16 {acc}, {vr(T+4*(8*A-beta),4)}, {vr(UR+4*(beta%NR),4)}, {acc if A in started else '0'}")
                started.add(A)
                nm[0] += 1
                if beta == 8 * A:
                    r = AC + 4 * (A % 4)
                    side += [(nm[0] + 6, f"ds_write_b64 v124, {vr(r,2)} offset:{1280*A}"),
                             (nm[0] + 6, f"ds_write_b64 v124, {vr(r+2,2)} offset:{1280*A+8}"),
                             (nm[0] + 6, f"ds_write_b32 v125, v126 offset:{32*A}")]
                if k == 0 and side and side[0][0] <= nm[0] and not env("NOSIDE", 0):
                    a(side.pop(0)[1])
                    q.append(("w", 0))
            if beta + AH < hi:
                rd(beta + AH)
        a.nop(8)
        for x in side:
            a(x[1])
    a.stamp(5)
    a("s_waitcnt lgkmcnt(0)")
    a.end()


def z_wave(a):
    S2F, S3F, WN, FO, AC = 8, 32, 48, 64, 100
    VS = ((88, 92, 96), (132, 136, 160))
    TB = ZC + 16
    y_addr(a, 164)
    a("v_lshlrev_b32 v5, 2, v4")
    a("v_sub_u32 v5, v3, v5")
    a("v_lshl_add_u32 v7, v5, 2, s13")
    a("v_lshl_add_u32 v5, v5, 3, s13")
    a(f"v_add_u32 v7, {TS3}, v7")
    a("v_mov_b32 v6, s13")
    spin(a, 131, CT, "ne", 2, 128, 9, sleep=1)
    a(f"ds_read_b32 v130, v6 offset:{TS2+128+252}")
    for D in (2, 3, 4):
        for h in range(2):
            for jj in range(2):
                a(f"ds_read_b64 {vr(S2F+8*(D-2)+4*h+2*jj,2)}, v5 offset:{TS2+8*(16*D-16-2*h-jj)}")
    for D in range(4, 8):
        o = 16 * D - 48
        a(f"ds_read2_b32 {vr(S3F+4*(D-4),2)}, v7 offset0:{o} offset1:{o-1}")
        a(f"ds_read2_b32 {vr(S3F+4*(D-4)+2,2)}, v7 offset0:{o-2} offset1:{o-3}")
    a("v_lshlrev_b32 v6, 4, v4")
    a("v_lshl_add_u32 v6, v3, 5, v6")
    a(f"v_add_u32 v6, {U0-48}, v6")
    a("v_add_u32 v6, s13, v6")
    a("v_lshlrev_b32 v5, 4, v2")
    a(f"v_add_u32 v5, {ZM}, v5")
    spin(a, 167, CK8, "ne", 12, 128, 9)
    for k in range(5):
        a(f"ds_read_b128 {vr(ZC+4*k,4)}, v5 offset:{1024*k}")
    a.lab("Z_PASS")
    for A in range(2):
        a(f"ds_write_b128 v164, v[124:127] offset:{1280*(8+A)}")
        a(f"ds_write_b32 v165, v166 offset:{32*A}")
    a("s_mov_b32 s8, 0x07060706")
    a.stamp(3)
    spin(a, 167, CCONV, "ne", 2, 128, 9, mask=15)
    a("v_perm_b32 v130, v130, v130, s8")
    if ZPRIO:
        a(f"s_setprio {ZPRIO}")
    a.stamp(4)
    w1 = lambda B: vr(WN + 8 * (B & 1), 4)
    w2 = lambda B: vr(WN + 8 * (B & 1) + 4, 4)

    def rdw(B):
        o = 512 * B
        a(f"ds_read_b128 {w1(B)}, v6 offset:{o+16}")
        a(f"ds_read_b128 {w2(B)}, v6 offset:{o}")

    def filters(B):
        L = []
        for i in range(6 if B < 4 else 4):
            w = w2(B) if i in (2, 3, 5) else w1(B)
            L.append(f"v_mfma_f32_16x16x32_bf16 {vr(FO+4*i,4)}, {w}, {vr(ZC+4*(0,1,0,1,2,3)[i],4)}, 0")
        return L

    def cvt(B):
        V = VS[B & 1]
        L = [f"v_cvt_pk_bf16_f32 v{V[j>>1]+2*(j&1)}, v{FO+j}, v{FO+4+j}" for j in range(4)]
        L += [f"v_cvt_pk_bf16_f32 v{V[j>>1]+2*(j&1)+1}, v{FO+8+j}, v{FO+12+j}" for j in range(4)]
        if B < 4:
            L += [f"v_cvt_pk_bf16_f32 v{V[2]+j}, v{FO+16+j}, v{FO+20+j}" for j in range(4)]
        return L

    started = set()

    def mm(A, x, y):
        acc = vr(AC + 4 * (A - 2), 4)
        r = f"v_mfma_f32_16x16x32_bf16 {acc}, {x}, {y}, {acc if A in started else '0'}"
        started.add(A)
        return r

    def mains(B):
        V = VS[B & 1]
        L = []
        if B < 4:
            L.append(mm(B + 4, vr(TB, 4), w1(B)))
        for D in (2, 3, 4):
            if B + D <= 7:
                for h in range(2):
                    L.append(mm(B + D, vr(V[h], 4), vr(S2F + 8 * (D - 2) + 4 * h, 4)))
        if B < 4:
            for D in range(4, 8 - B):
                L.append(mm(B + D, vr(V[2], 4), vr(S3F + 4 * (D - 4), 4)))
        return L

    def wr(A):
        r = AC + 4 * (A - 2)
        return [f"ds_write_b64 v164, {vr(r,2)} offset:{1280*(8+A)}", f"ds_write_b64 v164, {vr(r+2,2)} offset:{1280*(8+A)+8}",
                f"ds_write_b32 v165, v166 offset:{32*A}"]

    def weave(M, S, first, per):
        S = list(S)
        for i, m in enumerate(M):
            a(m)
            if i >= first:
                for x in S[:per]:
                    a(x)
                S = S[per:]
        return S

    a.lab("Z_LOOP")
    if env("ZDEL", 0):
        a("s_sleep 40")
    rdw(0); rdw(1)
    for j in range(4):
        a(f"v_and_b32 v{TB+j}, v130, v{TB+j}")
    a("s_waitcnt lgkmcnt(2)")
    for m in filters(0):
        a(m)
    a.nop(4)
    for c in cvt(0):
        a(c)
    pend = []
    for B in range(4):
        if B < 3:
            a("s_waitcnt lgkmcnt(0)")
            assert not weave(filters(B + 1), pend, 1, 1)
            M = mains(B)
            a(M[0])
            if B < 2:
                rdw(B + 2)
            for x in weave(M[1:], cvt(B + 1), 1 if B < 2 else 2, 2):
                a(x)
            pend = wr(B + 2)
        else:
            a.nop(2)
            assert not weave(mains(B), pend, 0, 1)
    if not env("KST", 0):
        a.stamp(1)
    spin(a, 167, CCONV, "ne", 34, 128, 9)
    if not env("KST", 0):
        a.stamp(2)
    a("s_cmp_lg_u32 s3, 4")
    a("s_cbranch_scc1 Z_NOSEL")
    sel_addr(a, 126, 1)
    a(f"global_load_dwordx2 v[124:125], v126, {sr(P_WS,2)} offset:{WS_SEL} sc1")
    a("s_lshl_b32 s9, s4, 7")
    a("v_mov_b32 v126, s9")
    a(f"global_load_dword v127, v126, {sr(P_WS,2)} offset:{WS_HINT} sc1")
    if env("PWARM", 0):
        a(f"s_mul_i32 s9, s6, {PS}")
        a(f"s_add_u32 s9, s9, {WS_PART}")
        a("v_lshl_add_u32 v126, v2, 4, s9")
        a(f"global_load_dword v127, v126, {sr(P_WS,2)} sc1")
    a.lab("Z_NOSEL")
    rdw(4); rdw(5)
    for x in wr(5):
        a(x)
    a("s_waitcnt lgkmcnt(5)")
    for m in filters(4):
        a(m)
    a.nop(6)
    for c in cvt(4):
        a(c)
    a("s_waitcnt lgkmcnt(3)")
    for m in filters(5) + mains(4):
        a(m)
    a.nop(2)
    for c in cvt(5):
        a(c)
    for x in wr(6)[:2]:
        a(x)
    for m in mains(5):
        a(m)
    a(wr(6)[2])
    a.nop(7)
    for x in wr(7):
        a(x)
    a.stamp(5)
    a("s_setprio 0")
    a("s_cmp_eq_u32 s3, 4")
    a("s_cbranch_scc1 FINAL")
    a("s_waitcnt lgkmcnt(0)")
    a.end()


UL, UX = 8, 24


def cu_pro(a):
    a.lab("CU_PRO")
    a("s_sub_u32 s7, s3, 8")
    a("s_lshl_b32 s8, s101, 2")
    a("s_add_u32 s8, s8, s7")
    a("s_mul_i32 s10, s8, 57")
    a("s_lshr_b32 s10, s10, 9")
    a("s_mul_i32 s11, s10, 9")
    a("s_sub_u32 s11, s8, s11")
    a("s_sub_u32 s8, s8, s10")
    a(f"s_mul_i32 s8, s8, {32*1152}")
    a("s_lshl_b32 s9, s4, 7")
    a("s_add_u32 s8, s8, s9")
    a("v_lshrrev_b32 v5, 1, v2")
    a("v_mul_u32_u24 v5, 1152, v5")
    a("v_and_b32 v6, 1, v2")
    if LINE:
        a("s_sub_u32 s9, 1024, s9")
        a("v_mad_u32_u24 v5, v6, s9, v5")
    else:
        a("v_lshl_add_u32 v5, v6, 7, v5")
    a("v_add_u32 v7, s8, v5")
    a("s_and_b32 s15, s7, 2")
    a("s_add_u32 s15, s15, s7")
    a(f"s_mul_i32 s8, s15, {256*1152}")
    a("s_lshl_b32 s9, s6, 3")
    a("s_add_u32 s8, s8, s9")
    a("v_mul_u32_u24 v5, 4608, v2")
    a("v_add_u32 v5, s8, v5")
    a(f"v_add_u32 v6, {512*1152}, v5")
    a("v_mov_b32 v58, 0")
    a("v_mov_b32 v59, 0")
    a(f"v_mov_b32 v57, {SYN}")
    a("v_lshl_add_u32 v56, v2, 3, v57")
    a("ds_write_b64 v56, v[58:59]")
    a("s_waitcnt lgkmcnt(0)")
    a("s_barrier")
    if env("XDEL", 0):
        a(f"s_sleep {env('XDEL', 0)}")
    if C3N:
        a("s_cmp_eq_u32 s7, 3")
        a("s_cbranch_scc1 CU_C3A")
        a.lab("CU_C3B")
    a(f"global_load_dword v60, v59, {sr(P_LDT,2)}")
    a(f"s_load_dwordx2 s[52:53], {sr(P_DSK,2)}, s9")
    a("s_branch CU_PRE")
    a.lab("CU_PREX")
    a("s_cmp_eq_u32 s11, 8")
    a("s_cbranch_scc1 CU_C3")
    a(f"global_load_dword v60, v7, {sr(P_U,2)} {PFL}")
    a.lab("CU_C3X")
    a(f"s_cmp_ge_u32 s7, {env('CHN', 2)}")
    a("s_cbranch_scc1 CU_MID")
    a.lab("CU_LD")
    if env("NOU", 0):
        a("v_mov_b32 v5, 0")
        a("v_mov_b32 v6, 0")
    for t in range(2):
        for i in range(4):
            a(f"global_load_dwordx2 {vr(UL+8*t+2*i,2)}, v{5+t}, {sr(P_U,2)} offset:{1152*i} {UFL}")
    a("s_branch CU_MAIN")


def cu_main(a):
    if C3N:
        a.lab("CU_C3A")
        a("s_cmp_eq_u32 s4, 3")
        a(f"s_cselect_b32 s8, 18, {C3N}")
        a("s_cmp_ge_u32 s101, s8")
        a("s_cbranch_scc1 CU_C3B")
        c3_item(a, 101)
        a("s_lshl_b32 s9, s6, 3")
        a("s_branch CU_C3B")
    a.lab("CU_C3")
    if env("C3", 1):
        a("s_cmp_eq_u32 s4, 3")
        a(f"s_cselect_b32 s8, 18, {C3N}")
        a("s_add_u32 s10, s10, s8")
        c3_item(a, 10)
        a("s_lshl_b32 s9, s6, 3")
    a("s_branch CU_C3X")
    a.lab("CU_MID")
    touch(a, "U")
    a("s_min_u32 s13, s7, 2")
    spin(a, 57, CISS, "gt", "s13", 56, 12, sleep=2)
    a("s_branch CU_LD")
    a.lab("CU_PRE")
    G, DS = 128, 154
    a("v_mov_b32 v139, 1")
    zconst(a)
    post(a, 57, CK8, 139)
    a("s_mov_b32 s72, s15")
    gran_addr(a, 158, 138, 137)
    a(f"s_mul_i32 s8, s15, {16*KP}")
    a(f"s_add_u32 s8, s8, {WS_G}")
    a("v_add_u32 v158, s8, v158")
    a(f"v_add_u32 v137, {96*KP}, v158")
    a(f"v_add_u32 v138, {WS_G}, v138")
    a("s_cmp_eq_u32 s7, 1")
    a("s_cselect_b64 vcc, -1, 0")
    a("v_cndmask_b32 v138, v137, v138, vcc")
    a("v_and_b32 v146, 3, v2")
    a("v_mul_u32_u24 v159, 320, v146")
    a("v_lshl_add_u32 v146, v146, 2, v57")
    a("v_lshrrev_b32 v136, 2, v2")
    a("v_lshl_add_u32 v159, v136, 4, v159")
    a("s_mul_i32 s8, s72, 1280")
    a("v_add_u32 v159, s8, v159")
    a(f"v_add_u32 v136, {2*YCH}, v159")
    a("v_and_b32 v141, 7, v2")
    a("s_lshl_b32 s8, s72, 5")
    a(f"s_add_u32 s8, s8, {SYN+FLG}")
    a("v_lshl_add_u32 v141, v141, 2, s8")
    a("s_lshl_b32 s8, s72, 10")
    a("v_lshl_add_u32 v147, v2, 4, s8")
    a("v_lshlrev_b32 v142, 1, v147")
    a(f"v_add_u32 v147, {GL}, v147")
    a(f"v_add_u32 v142, {XR}, v142")
    a("s_lshl_b32 s8, s72, 9")
    a(f"s_add_u32 s8, s8, {CH0+U0}")
    a("v_lshl_add_u32 v58, v2, 3, s8")
    a("s_mov_b32 s74, 0x05040100")
    a("s_mov_b32 s75, 0x07060302")
    a("s_cmp_lt_u32 s7, 2")
    a("s_cselect_b32 s8, 1, 16")
    a("v_mov_b32 v143, s8")
    a("s_waitcnt lgkmcnt(0)")
    a(f"v_lshlrev_b32 v{DS}, 16, s52")
    a(f"v_mov_b32 v{DS+1}, s52")
    a(f"v_lshlrev_b32 v{DS+2}, 16, s53")
    a(f"v_mov_b32 v{DS+3}, s53")
    a(f"v_and_b32 v{DS+1}, 0xffff0000, v{DS+1}")
    a(f"v_and_b32 v{DS+3}, 0xffff0000, v{DS+3}")
    for ch in range(4):
        a(f"v_add_f32 v{DS+ch}, -1.0, v{DS+ch}")
    if env("XW", 1):
        a("s_waitcnt vmcnt(0)")
    a("s_branch CU_PREX")
    a.lab("CU_MAIN")
    assert FUSE
    G2 = 160

    def gload():
        if env("NOG", 0) & 2:
            a(f"global_load_dwordx2 v[144:145], v59, {sr(P_DBG,2)} sc1")
            return
        a(f"global_load_dwordx2 v[144:145], v59, {sr(P_DBG,2)} sc1")
        a(f"global_load_dwordx4 {vr(G,4)}, v158, {sr(P_WS,2)} sc1")
        a(f"v_add_u32 v137, {32*KP}, v158")
        a(f"global_load_dwordx4 {vr(G+4,4)}, v137, {sr(P_WS,2)} sc1")
        a(f"v_add_u32 v137, {64*KP}, v158")
        a(f"global_load_dwordx4 {vr(G2,4)}, v137, {sr(P_WS,2)} sc1")
        a(f"global_load_dwordx4 {vr(G2+4,4)}, v138, {sr(P_WS,2)} sc1")
    X = lambda t, ch, i: UX + 16 * t + 4 * ch + i
    C = 64

    def unpack(t):
        for i in range(4):
            r = UL + 8 * t + 2 * i
            a(f"v_lshlrev_b32 v{X(t,0,i)}, 16, v{r}")
            a(f"v_and_b32 v{X(t,1,i)}, 0xffff0000, v{r}")
            a(f"v_lshlrev_b32 v{X(t,2,i)}, 16, v{r+1}")
            a(f"v_and_b32 v{X(t,3,i)}, 0xffff0000, v{r+1}")
    post(a, 57, CISS, 139)
    a(f"s_setprio {env('UPRIO', 3)}")
    a.stamp(7)
    for t in range(2):
        for h in range(2):
            a(f"s_waitcnt vmcnt({6-4*t-2*h})")
            for ch in range(4):
                r = UL + 8 * t + 4 * h + (ch >> 1)
                a(f"v_perm_b32 v{C+8*t+2*ch+h}, v{r}, v{r+2}, s{74+(ch&1)}")
        if t:
            a.stamp(1)
        for ch in range(4):
            a(f"ds_write_b64 v58, {vr(C+8*t+2*ch,2)} offset:{CHP*ch+1024*t}")
    post(a, 57, CCONV, 143)
    a(f"s_setprio {env('EPRIO', 3)}")
    a.stamp(2)
    if env("UST", 0):
        a.stamp = lambda i: None
    a("s_cmp_ge_u32 s7, 2")
    a("s_cbranch_scc1 E_NOG")
    spin(a, 57, CISS, "gt", env("PFT", 4), 60, 12, sleep=1)
    for k in range(N1):
        if k == PFG:
            gload()
        a(f"s_add_u32 s15, s7, {N0+2*N2+2*k}")
        pf_item(a, 15, f"E{k}")
    if PFG >= N1:
        gload()
    a.lab("E_NOG")
    if env("ENOP", 0):
        a("s_sleep 90")
    OM, XD, Y, YF = 140, 64, 96, 112
    rnd = lambda r: a(f"v_cvt_pk_bf16_f32 v{r}, 0, v{r}")
    unpack(0)
    unpack(1)

    def gates():
        a("s_cmp_lt_u32 s7, 2")
        a("s_cbranch_scc1 E_G1")
        spin(a, 57, CG, "ne", 2, 60, 12)
        a(f"ds_read_b128 {vr(G,4)}, v147")
        a(f"ds_read_b128 {vr(G+4,4)}, v147 offset:2048")
        a(f"ds_read_b32 v144, v57 offset:{TAGW}")
        a("s_waitcnt lgkmcnt(0)")
        a("s_branch E_GX")
        a.lab("E_G1")
        a("s_mov_b32 s12, 0")
        a(f"s_waitcnt vmcnt({max(0, N1-PFG)})")
        a("s_branch E_GCHK")
        a.lab("E_GPOLL")
        gload()
        a("s_add_u32 s12, s12, 1")
        a("s_waitcnt vmcnt(0)")
        a.lab("E_GCHK")
        a("v_xor_b32 v61, 1, v145")
        for r in list(range(G, G + 8)) + list(range(G2, G2 + 8)):
            a(f"v_bitop3_b32 v61, v61, v{r}, v144 bitop3:0xf6")
        a("v_and_b32 v61, 0xffff, v61")
        a("v_cmp_ne_u32 vcc, 0, v61")
        a(f"s_cmp_ge_u32 s12, {SPIN}")
        a("s_cbranch_scc1 E_GOK")
        if not env("NOG", 0):
            a("s_cbranch_vccnz E_GPOLL")
        a.lab("E_GOK")
        for k, r in enumerate((G2, G2 + 4, G, G + 4)):
            a(f"ds_write_b128 v147, {vr(r,4)} offset:{2048*((k+2)&3)}")
        a(f"ds_write_b32 v57, v144 offset:{TAGW}")
        post(a, 57, CG, 139)
        a.lab("E_GX")
        a.stamp(3)
        for t in range(2):
            a(f"ds_write_b128 v142, {vr(UL+8*t,4)} offset:{4096*t}")
            a(f"ds_write_b128 v142, {vr(UL+8*t+4,4)} offset:{4096*t+16}")
        post(a, 57, CDUMP, 139)

    def gx(t):
        g = G + 4 * t
        for i in range(4):
            a(f"v_and_b32 v{g+i}, 0xffff0000, v{g+i}")
        if FUSE:
            return
        for i in range(4):
            a(f"v_sub_f32 v{OM+i}, 1.0, v{g+i}")
            rnd(OM + i)
        for ch in range(4):
            for i in range(4):
                a(f"v_mul_f32 v{X(t,ch,i)}, v{X(t,ch,i)}, v{OM+i}")
                rnd(X(t, ch, i))
    a("s_cmp_ge_u32 s7, 2")
    a("s_cbranch_scc1 E_GATES")
    for t in range(2):
        g = G + 4 * t
        if t == 0:
            a.lab("E_T0")
        else:
            gx(1)
        spin(a, 141, 64 * t, "eq", 0, 60, 12)
        a.stamp(4 + t)
        for ch in range(4):
            va, o = (159, 136)[ch >> 1], YCH * (ch & 1) + 2560 * t
            a(f"ds_read_b128 {vr(Y+4*ch,4)}, v{va} offset:{o}")
            a(f"ds_read_b128 {vr(YF+4*ch,4)}, v{va} offset:{o+10240}")
        for ch in range(4):
            a(f"s_waitcnt lgkmcnt({6-2*ch})")
            for i in range(4):
                y = Y + 4 * ch + i
                a(f"v_add_f32 v{y}, v{y}, v{YF+4*ch+i}")
                a(f"v_fmac_f32 v{y}, v{X(t,ch,i)}, v{DS+ch}")
        if t == 0:
            a("s_cmp_ge_u32 s7, 2")
            a("s_cbranch_scc1 E_OUT0")
            a.lab("E_GATES")
            gates()
            gx(0)
            a("s_cmp_ge_u32 s7, 2")
            a("s_cbranch_scc1 E_T0")
            a.lab("E_OUT0")
        for i in range(4):
            for ch in range(4):
                y = Y + 4 * ch + i
                if FUSE:
                    a(f"v_fma_f32 v{y}, v{y}, v{g+i}, v{X(t,ch,i)}")
                    continue
                a(f"v_mul_f32 v{y}, v{y}, v{g+i}")
                rnd(y)
                a(f"v_add_f32 v{y}, v{y}, v{X(t,ch,i)}")
            a(f"v_cvt_pk_bf16_f32 v{YF+4*i+2}, v{Y+i}, v{Y+4+i}")
            a(f"v_cvt_pk_bf16_f32 v{YF+4*i+3}, v{Y+8+i}, v{Y+12+i}")
            a("s_cmp_ge_u32 s101, 16")
            a(f"s_cbranch_scc1 E_NS{t}{i}")
            a(f"global_store_dwordx2 v{5+t}, {vr(YF+4*i+2,2)}, {sr(P_OUT,2)} offset:{1152*i}")
            a.lab(f"E_NS{t}{i}")
        a("s_cmp_lt_u32 s101, 16")
        a(f"s_cbranch_scc1 E_WX{t}")
        for i in range(4):
            a(f"v_mov_b32 v{YF+4*i}, v144")
            a(f"v_mov_b32 v{YF+4*i+1}, v144")
        a(f"s_mul_i32 s8, s6, {RP}")
        a("s_lshl_b32 s9, s72, 12")
        a("s_add_u32 s8, s8, s9")
        a(f"s_add_u32 s8, s8, {(WS_R-128*RP+8192*t) & 0xffffffff}")
        a("v_lshl_add_u32 v60, v2, 4, s8")
        for i in range(4):
            a(f"global_store_dwordx4 v60, {vr(YF+4*i,4)}, {sr(P_WS,2)} offset:{1024*i} sc1")
        a.lab(f"E_WX{t}")
    a.stamp(6)
    if env("UST", 0):
        del a.stamp
    a("s_waitcnt vmcnt(0)")
    if env("WB", 0):
        a(f"s_cmp_lg_u32 s7, {env('WBW', 3)}")
        a("s_cbranch_scc1 W_END")
        if env("WB", 0) == 2:
            a("s_cmp_lg_u32 s101, 0")
            a("s_cbranch_scc1 W_END")
        a("buffer_wbl2 sc1")
    a.end()


def finalizer(a):
    a.lab("FINAL")
    a("v_and_b32 v5, 7, v2")
    a("v_lshlrev_b32 v5, 2, v5")
    a("s_lshl_b32 s10, s6, 3")
    a(f"s_load_dwordx2 s[52:53], {sr(P_DSK,2)}, s10")
    spin(a, 167, CDUMP, "ne", 4, 42, 12)
    a(f"ds_read_b32 v42, v167 offset:{TAGW}")
    a("s_waitcnt lgkmcnt(0)")
    sel_poll(a, 42, "F", early=124)
    a("v_and_b32 v9, 0xff, v42")
    a("v_not_b32 v10, v8")
    a("v_and_b32 v10, 0x7ff, v10")
    a("v_and_b32 v23, 3, v2")
    a("v_mul_u32_u24 v11, 1152, v10")
    a("v_lshl_add_u32 v11, v23, 1, v11")
    a("v_add_u32 v11, s10, v11")
    a("v_lshlrev_b32 v14, 3, v10")
    a("v_lshl_add_u32 v14, v23, 1, v14")
    a(f"v_add_u32 v14, {XR}, v14")
    a("ds_read_u16 v24, v14")
    a("v_lshlrev_b32 v14, 2, v10")
    a(f"v_add_u32 v14, {GL}, v14")
    a("ds_read_b32 v15, v14")
    a("v_lshrrev_b32 v16, 8, v10")
    a("v_mul_u32_u24 v16, 1280, v16")
    a("v_and_b32 v17, 0xf0, v10")
    a("v_add_u32 v16, v16, v17")
    a("v_bfe_u32 v17, v10, 2, 2")
    a("v_mul_u32_u24 v17, 320, v17")
    a("v_add_u32 v16, v16, v17")
    a("v_and_b32 v17, 3, v10")
    a("v_lshl_add_u32 v16, v17, 2, v16")
    a(f"v_mul_u32_u24 v17, {YCH}, v23")
    a("v_add_u32 v16, v16, v17")
    a(f"v_add_u32 v18, {SYN+FLG+224}, v5")
    a("v_and_b32 v20, 0xffff0000, v8")
    a("v_not_b32 v21, v20")
    a("v_ashrrev_i32 v21, 31, v21")
    a("v_and_b32 v21, 0x7fff0000, v21")
    a("v_or_b32 v21, 0x80000000, v21")
    a("v_xor_b32 v20, v20, v21")
    sigmoid_bf16(a, 20, 21)
    a("v_and_b32 v20, 0xffff0000, v20")
    a("s_waitcnt lgkmcnt(0)")
    a("v_and_b32 v15, 0xffff0000, v15")
    a("v_sub_f32 v21, 1.0, v15")
    a("v_cvt_pk_bf16_f32 v21, v21, v21")
    a("v_and_b32 v21, 0xffff0000, v21")
    a("v_lshlrev_b32 v24, 16, v24")
    a("v_lshlrev_b32 v25, 4, v23")
    a("v_lshrrev_b64 v[26:27], v25, s[52:53]")
    a("v_lshlrev_b32 v26, 16, v26")
    rnd = lambda r: a(f"v_cvt_pk_bf16_f32 v{r}, 0, v{r}")
    a("v_mul_f32 v26, v26, v24")
    rnd(26)
    a(f"s_mul_i32 s8, s6, {PS}")
    a(f"s_add_u32 s8, s8, {WS_PART}")
    spin(a, 18, 0, "eq", 0, 22, 12)
    a("ds_read_b32 v28, v16")
    a("ds_read_b32 v29, v16 offset:10240")
    a("v_lshl_add_u32 v22, v2, 4, s8")
    a("s_mov_b32 s72, 0x00ff00ff")
    a("s_mov_b32 s73, 0x00ff00ff")
    a("s_waitcnt lgkmcnt(0)")
    a("v_add_f32 v28, v28, v29")
    rnd(28)
    a("v_add_f32 v28, v28, v26")
    rnd(28)
    a("v_mul_f32 v28, v28, v15")
    rnd(28)
    a.stamp(6)
    P = 48
    if env("NOFIN", 0):
        a.end()
    if FREP:
        a("v_min_u32 v33, 4, v2")
        a("s_lshl_b32 s11, s4, 7")
        a("v_lshl_add_u32 v33, v33, 2, s11")
        a("s_mov_b32 s12, 0")
        a.lab("FN_R")
        a(f"global_load_dword v34, v33, {sr(P_WS,2)} offset:{WS_HINT} sc1")
        a("s_add_u32 s12, s12, 1")
        a("s_waitcnt vmcnt(0)")
        a("v_cmp_ne_u32 vcc, v34, v42")
        a("s_cmp_ge_u32 s12, 64")
        a("s_cbranch_scc1 FN_RX")
        a("s_cbranch_vccz FN_RX")
        a(f"s_sleep {env('FHS', 2)}")
        a("s_branch FN_R")
        a.lab("FN_RX")
        a.stamp(1)
    a("s_mov_b32 s12, 0")
    a.lab("FN_P")
    a(f"global_load_dwordx4 {vr(P,4)}, v22, {sr(P_WS,2)} sc1")
    a("s_add_u32 s12, s12, 1")
    a("s_waitcnt vmcnt(0)")
    for i in range(4):
        a(f"v_xor_b32 v{P+i}, v{P+i}, v9")
    a(f"v_or3_b32 v32, v{P}, v{P+1}, v{P+2}")
    a(f"v_or_b32 v32, v32, v{P+3}")
    a("v_and_b32 v32, 0xff, v32")
    a("v_cmp_ne_u32 vcc, 0, v32")
    a(f"s_cmp_ge_u32 s12, {4*SPIN}")
    a("s_cbranch_scc1 FN_POK")
    a("s_cbranch_vccz FN_POK")
    a("s_mov_b64 exec, vcc")
    if FSL:
        a(f"s_sleep {FSL}")
    a("s_branch FN_P")
    a.lab("FN_POK")
    a("s_mov_b64 exec, -1")
    if STAMP:
        a("s_mul_i32 s12, s12, 100")
        a("s_add_u32 s90, s84, s12")
    a.stamp(2)
    a(f"v_permlane32_swap_b32 v{P}, v{P+2}")
    a(f"v_permlane32_swap_b32 v{P+1}, v{P+3}")
    a(f"v_add_f32 v{P}, v{P}, v{P+2}")
    a(f"v_add_f32 v{P+1}, v{P+1}, v{P+3}")
    a.nop(2)
    a(f"v_permlane16_swap_b32 v{P}, v{P+1}")
    a(f"v_add_f32 v{P}, v{P}, v{P+1}")
    a.nop(2)
    a(f"v_add_f32_dpp v{P}, v{P}, v{P} row_ror:8 {DPPF}")
    rnd(P)
    a(f"v_mul_f32 v{P}, v{P}, v20")
    rnd(P)
    a(f"v_add_f32 v{P}, v{P}, v24")
    rnd(P)
    a(f"v_mul_f32 v{P}, v{P}, v21")
    rnd(P)
    a(f"v_add_f32 v{P}, v{P}, v28")
    rnd(P)
    if os.environ.get("PERT"):
        a(f"v_add_f32 v{P}, {fbits(float(os.environ['PERT'])):#x}, v{P}")
    a("s_barrier")
    a("s_mov_b64 exec, s[72:73]")
    a(f"global_store_short_d16_hi v11, v{P}, {sr(P_OUT,2)}")
    a.stamp(7)
    a.end()


def const_table(a):
    a.L.append(".p2align 7")
    a.lab("CONST_TAB")
    perm = [1, 0, 3, 2, 5, 4, 7, 6]
    for w0, lo, hi, one in ((-16, 3, 5, 0x3c00), (-16, 6, 10, 0x3c00),
                            (-16, 5, 11, 0x3c00), (-24, 12, 20, 0x3c00), (-16, 3, 4, 0xffff)):
        for lane in range(64):
            c, g = lane & 15, lane >> 4
            e = [one if lo <= c - (w0 + 8 * g + perm[k]) <= hi else 0 for k in range(8)]
            a(".long " + ", ".join(f"{e[2*p] | e[2*p+1] << 16:#x}" for p in range(4)))


def kernel(a):
    a.L.append(".p2align 8")
    a.L.append(".globl k1_kernel")
    a.L.append(".type k1_kernel,@function")
    a.lab("k1_kernel")
    a.stamp(0)
    a("s_cmp_ge_u32 s2, 256")
    a("s_cbranch_scc1 K_END")
    a("s_load_dwordx16 s[16:31], s[0:1], 0")
    a("s_load_dwordx16 s[32:47], s[0:1], 64")
    a("s_load_dwordx4 s[48:51], s[0:1], 128")
    a("v_lshrrev_b32 v1, 6, v0")
    a("v_and_b32 v2, 63, v0")
    a("v_readfirstlane_b32 s3, v1")
    a("v_and_b32 v3, 15, v2")
    a("v_lshrrev_b32 v4, 4, v2")
    a("s_and_b32 s4, s2, 7")
    a("s_lshr_b32 s5, s2, 3")
    a("s_cmp_lg_u32 s3, 0")
    a("s_cbranch_scc1 K_NOCPF")
    a("s_getpc_b64 s[8:9]")
    a("s_and_b32 s8, s8, 0xffffff00")
    a("v_and_b32 v5, 7, v2")
    a("v_lshl_add_u32 v5, s5, 3, v5")
    a("v_lshlrev_b32 v5, 7, v5")
    a("v_min_u32 v5, CODE_END-k1_kernel-4, v5")
    a("global_load_dword v167, v5, s[8:9]")
    a.lab("K_NOCPF")
    a("s_cmp_lt_u32 s2, 112")
    a("s_cbranch_scc1 K_NC")
    touch(a, "K")
    a("s_sub_u32 s101, s5, 14")
    if LINE:
        a("s_cmp_lt_u32 s101, 16")
        a("s_cselect_b32 s6, 4, 1")
        a("s_cselect_b32 s8, 0, 112")
        a("s_lshl_b32 s6, s4, s6")
        a("s_add_u32 s6, s6, s8")
    else:
        a("s_mul_i32 s6, s4, 18")
    a("s_add_u32 s6, s6, s101")
    a("s_cmp_lt_u32 s3, 8")
    a("s_cbranch_scc1 CK_PRO")
    cu_pro(a)
    ck_pro(a)
    a.lab("K_NC")
    touch(a, "N")
    a("s_lshl_b32 s6, s2, 4")
    a("s_lshl_b32 s7, s3, 2")
    a("s_sub_u32 s7, s7, 32")
    a("s_cmp_ge_u32 s3, 8")
    a("s_cbranch_scc1 RT_PRO")
    a("s_cmp_lt_u32 s2, 72")
    a("s_cbranch_scc1 F_PRO")
    a("s_cmp_lt_u32 s3, 6")
    a("s_cbranch_scc1 HELPER")
    a("s_cmp_lt_u32 s2, 80")
    a("s_cbranch_scc1 HELPER")
    a("s_add_u32 s7, s7, 24")
    a("s_lshr_b32 s6, s6, 1")
    a(f"s_add_u32 s6, s6, {1792-640-16}")
    router_pro(a)
    ffn_pro(a)
    helper(a)
    router_main(a)
    down_main(a)
    ffn_main(a)
    selector(a)
    ck_main(a)
    cu_main(a)
    finalizer(a)
    a.lab("W_END")
    a.end()
    stamp_out(a)
    a.lab("K_END")
    a("s_endpgm")
    a.lab("CODE_END")


def main():
    ref = open(os.path.join(HERE, NAME + ".s.ref")).read().splitlines()
    head = [l for l in ref if l.startswith(";") and "@launch" not in l and "Override" not in l and "grid=ceil" not in l]
    a = Asm()
    kernel(a)
    if TOUCH:
        plan = {}
        if TOUCH & 1:
            plan["N"] = ([(w, 2) for w in range(8)], [("HELPER", "F_SLOW", 1)])
        if TOUCH & 2:
            plan["U"] = ([(10, 9), (11, 9)], [("CK_SKIP", "W_END", 1)])
        if TOUCH & 4:
            plan["F"] = ([(w, 1) for w in range(8)], [("RT_TAIL", "F_MAIN", 1), ("F_MAIN", "SEL_MAIN", 0)])
            plan["S"] = ([(w, 1) for w in range(8)], [("SEL_MAIN", "F_SLOW", 0)])
        a.L = place_pads([l for l in a.L if not l.startswith("@TOUCH") or l[7:] in plan], plan)
    else:
        a.L = [l for l in a.L if not l.startswith("@TOUCH")]
    grp = []
    if STAMP and not AMP:
        F, H, C = "list(range(72))", "list(range(72,112))", "list(range(112,256))"
        grp = [f'; GROUPS ([("ctl",{F},[8]),("sel",list(range(72,80)),list(range(8))),("dn",list(range(80,112)),list(range(12))),("ffn",{F},list(range(8))),("D",{C},[0,1,2,3]),("Z",{C},[5,6,7]),("fin",{C},[4]),("E1",{C},[8,9]),("E2",{C},[10,11])],12)']
    out = head + grp + [
        f"; @launch kernel=k1_kernel grid=(256,1,1) block=(768,1,1) lds={LDS_BYTES}",
        '.amdgcn_target "amdgcn-amd-amdhsa--gfx950"',
        ".text",
    ] + a.L + [
        '.section .rodata,"a"',
        ".p2align 6",
        ".amdhsa_kernel k1_kernel",
        "  .amdhsa_next_free_vgpr 168",
        "  .amdhsa_next_free_sgpr 102",
        "  .amdhsa_accum_offset 168",
        "  .amdhsa_group_segment_fixed_size 0",
        "  .amdhsa_kernarg_size 144",
        "  .amdhsa_user_sgpr_count 2",
        "  .amdhsa_user_sgpr_kernarg_segment_ptr 1",
        "  .amdhsa_system_sgpr_workgroup_id_x 1",
        ".end_amdhsa_kernel",
    ]
    path = sys.argv[1] if len(sys.argv) > 1 else os.path.join(HERE, NAME + ".s")
    open(path, "w").write("\n".join(out) + "\n")


if __name__ == "__main__":
    main()
```

```python
import sys, os, struct

NAME = "gated_mix__ssm_conv_s4__moe_arch_mod__prompt"
HERE = os.path.dirname(os.path.abspath(__file__))
env = lambda k, d: int(os.environ.get(k, str(d)))

AMP = os.environ.get("AMP", "")
STAMP = env("STAMP", 1 if AMP else 0)
RA = env("RA", 2)
RB = env("RB", 5)
RC = env("RC", 8)
HA = env("HA", 4)
HR0 = env("HR0", 0)
HR1 = env("HR1", 2)
CR0 = env("CR0", 5)
CDN = env("CDN", 1)
PSL = env("PSL", 4)
PW = env("PW", 0)
WIN = env("WIN", 4)
DP = env("DP", 0)
LATE = env("LATE", 2)
DE = env("DE", 0)
WIN2 = env("WIN2", 4)
WSW = env("WSW", 27)
SPF = env("SPF", 0)
N1 = env("N1", 3)
N2 = env("N2", 0)
HB = env("HB", 0)
UWAIT = env("UWAIT", 0)
ZPRIO = env("ZPRIO", 0)
UFL = os.environ.get("UFL", "sc1")
PFL = os.environ.get("PFL", "")
FREP = env("FREP", 1)
FSL = env("FSL", 0)
N0 = env("N0", 0)
HD = env("HD", 0)
C3N = env("C3N", 6)
SCP = env("SCP", 1)
FUSE = env("FUSE", 1)
HPOS = env("HPOS", 2)
DFD = env("DFD", 1)
HW = env("HW", 6)
TLB = env("TLB", 0)
LINE = env("LINE", 1)
UROT = env("UROT", 0)
PFG = env("PFG", 0)
HG = env("HG", 0)
DNL = env("DNL", 2)
STAGE = env("STAGE", 1)
SPIN = 0x4000

WS_SEL = 256
WS_HINT = 2304
WS_KEY = env("KOFF", 4096)
KP = env("KP", 256)
WS_G = WS_KEY + env("GOFF", 128)
WS_REP = 40960
WS_SELB = WS_REP + 8192
WS_H = WS_SELB + 8192
WS_PART = WS_H + 72 * 4096
WS_R = 1 << 20
RP = 32768 + 128
PS = 9 * 128
WS_SIZE = 0x10000000
WS_STAMP = 4 << 20

TSP = 1056
STG2 = 57 * TSP
CH0 = 120832
CHP = 8192
TE, TO, TS2, TS3 = 0, 1216, 2336, 2848
U0 = 4096
U1 = U0 + 2048
ZT = CH0 + 4 * CHP
SYN = ZT
MX1, ISA, PAIR, CISS, CSC, CK8, FLG = 0, 16, 32, 64, 68, 76, 256
CT = 80
ZM = SYN + 512
CCONV = 240
UEXP = 260
CDUMP, CG, TAGW = 244, 116, 120
XR, GL = 81920, 98304
YCH = 20480
L_UP = 73728
XS, XSP = 147456, 1344
EX = 157952
H2, HP2 = XS, 1344
CAND = 163200
M3 = 163456
LT = 163460
RKL = 163520
SELL = RKL + 96
LDS_BYTES = 163840

L2E = 0x3fb8aa3b
L2E_LO = 0x32a57060
LN2 = 0x3f317218
INV2PI = 0x3e22f983

P_U, P_ARE, P_AIM, P_BRE, P_BIM, P_CRE, P_CIM, P_LDT = 16, 18, 20, 22, 24, 26, 28, 30
P_DSK, P_BX, P_WR, P_WG, P_WU, P_WD, P_GW, P_OUT = 32, 34, 36, 38, 40, 42, 44, 46
P_DBG, P_WS = 48, 50


def fbits(x):
    return struct.unpack("<I", struct.pack("<f", float(x)))[0]


def vr(i, n):
    return f"v[{i}:{i+n-1}]"


def sr(i, n):
    return f"s[{i}:{i+n-1}]"


TOUCH = env("TOUCH", 0)
KEND = os.environ.get("KEND", "E_GOK")


def touch(a, name):
    a.L.append(f"@TOUCH {name}")


def place_pads(L, plan):
    import subprocess, re
    room = {n: 2 * len(w) for n, (w, _) in plan.items()}
    P = []
    for l in L:
        P += ["    s_nop 0"] * room[l[7:]] if l.startswith("@TOUCH") else [l]
    open("pad0.s", "w").write('.amdgcn_target "amdgcn-amd-amdhsa--gfx950"\n.text\n' + "\n".join(P) + "\n")
    subprocess.run(["clang", "-x", "assembler", "-target", "amdgcn-amd-amdhsa", "-mcpu=gfx950", "-c",
                    "pad0.s", "-o", "pad0.o"], check=True)
    dis = subprocess.run(["llvm-objdump", "-d", "--mcpu=gfx950", "pad0.o"], capture_output=True, text=True).stdout
    adr = [int(m.group(1), 16) for m in re.finditer(r"// ([0-9A-F]{12}):", dis)]
    at, k = [], 0
    for l in L:
        at.append(adr[k] if k < len(adr) else adr[-1] + 4)
        k += room[l[7:]] if l.startswith("@TOUCH") else l.startswith("    ") and not l.strip().startswith(".")
    idx = {l[:-1]: i for i, l in enumerate(L) if l.endswith(":")}
    spots = {}
    chains = {}
    for n, (waves, regions) in plan.items():
        pts = []
        for r0, r1, first in regions:
            last = at[idx[r0]] - (1000 if first else 0)
            for i in range(idx[r0], idx[r1]):
                if at[i] >= last + 1000 and at[idx[r1]] - at[i] > 64 and L[i].startswith("    "):
                    pts.append(i)
                    last = at[i]
        slots = [(h, w) for w, nh in waves for h in range(nh)]
        slots.sort()
        assert len(pts) <= len(slots), (n, len(pts), len(slots))
        ch = {}
        for p, (h, w) in zip(pts, slots):
            ch.setdefault(w, []).append(p)
        chains[n] = ch
        for w, ps in ch.items():
            for j, p in enumerate(ps):
                nxt = f"PAD_{n}_{ps[j+1]}" if j + 1 < len(ps) else f"BACK_{n}"
                spots.setdefault(p, []).append((f"PAD_{n}_{p}", nxt))
    out = []
    for i, l in enumerate(L):
        if i in spots:
            out.append(f"    s_branch OVER_{i}")
            for lab, nxt in spots[i]:
                out += [f"{lab}:", f"    s_branch {nxt}"]
            out.append(f"OVER_{i}:")
        if l.startswith("@TOUCH"):
            n = l[7:]
            for w, ps in chains[n].items():
                out += [f"    s_cmp_eq_u32 s3, {w}", f"    s_cbranch_scc1 PAD_{n}_{ps[0]}"]
            out.append(f"BACK_{n}:")
        else:
            out.append(l)
    return out


class Asm:
    def __init__(s):
        s.L = []
        s.nl = 0

    def __call__(s, x):
        s.L.append("    " + x)

    def lab(s, x):
        s.L.append(x + ":")

    def nop(s, n):
        while n > 0:
            k = min(n, 16)
            s(f"s_nop {k-1}")
            n -= k

    def stamp(s, i):
        if STAMP:
            s(f"s_memrealtime s[{84+2*i}:{85+2*i}]")

    def end(s):
        if STAMP:
            s("s_branch STAMP_OUT")
        else:
            s("s_endpgm")


def stamp_out(a):
    if not STAMP:
        return
    a.lab("STAMP_OUT")
    a("s_mov_b64 exec, -1")
    a("s_waitcnt lgkmcnt(0)")
    if AMP:
        wg, wv, i, mult = [int(x) for x in AMP.split(",")]
        a(f"s_cmp_lg_u32 s2, {wg}")
        a("s_cbranch_scc1 K_END")
        a(f"s_cmp_lg_u32 s3, {wv}")
        a("s_cbranch_scc1 K_END")
        a(f"s_sub_u32 s100, s{84+2*i}, s84")
        a("s_min_u32 s100, s100, 4000")
        a(f"s_mul_i32 s100, s100, {mult}")
        a("s_add_u32 s100, s100, s84")
        a("s_add_u32 s100, s100, 3000")
        a.lab("AMPL")
        a("s_memrealtime s[84:85]")
        a("s_waitcnt lgkmcnt(0)")
        a("s_sub_u32 s86, s84, s100")
        a("s_cmp_lt_i32 s86, 0")
        a("s_cbranch_scc1 AMPL")
        a("s_endpgm")
        return
    a("s_lshl_b32 s100, s2, 4")
    a("s_add_u32 s100, s100, s3")
    a("s_lshl_b32 s100, s100, 6")
    a(f"s_add_u32 s100, s100, {WS_STAMP}")
    a("v_mov_b32 v1, s100")
    for i in range(8):
        a(f"v_mov_b32 v2, s{84+2*i}")
        a(f"global_store_dword v1, v2, {sr(P_WS,2)} offset:{4*i}")
    a("s_endpgm")


def spin(a, va, off, cmp, val, vt, sc, sleep=1, mask=None):
    a.nl += 1
    n = a.nl
    a(f"s_mov_b32 s{sc}, 0")
    a.lab(f"SPN{n}")
    a(f"ds_read_b32 v{vt}, v{va} offset:{off}")
    a(f"s_add_u32 s{sc}, s{sc}, 1")
    a("s_waitcnt lgkmcnt(0)")
    if mask is not None:
        a(f"v_and_b32 v{vt}, {mask}, v{vt}")
    a(f"v_cmp_{cmp}_u32 vcc, {val}, v{vt}")
    a(f"s_cmp_ge_u32 s{sc}, 0x40000")
    a(f"s_cbranch_scc1 SPX{n}")
    if sleep:
        a(f"s_cbranch_vccz SPX{n}")
        a(f"s_sleep {sleep}")
        a(f"s_branch SPN{n}")
    else:
        a(f"s_cbranch_vccnz SPN{n}")
    a.lab(f"SPX{n}")


def post(a, va, off, vone):
    a("s_mov_b64 exec, 1")
    a(f"ds_add_u32 v{va}, v{vone} offset:{off}")
    a("s_mov_b64 exec, -1")


def srd(a, d, p, size):
    a(f"s_mov_b32 s{d}, s{p}")
    a(f"s_mov_b32 s{d+1}, s{p+1}")
    a(f"s_mov_b32 s{d+2}, {size}")
    a(f"s_mov_b32 s{d+3}, 0x20000")


DPPF = "row_mask:0xf bank_mask:0xf"


def gran_addr(a, d, d7, t):
    a(f"v_lshrrev_b32 v{d}, 2, v2")
    a(f"v_mul_u32_u24 v{d}, {KP}, v{d}")
    a(f"v_and_b32 v{t}, 3, v2")
    a(f"v_lshl_add_u32 v{d}, v{t}, 4, v{d}")
    a(f"v_lshrrev_b32 v{d7}, 1, v2")
    a(f"v_mul_u32_u24 v{d7}, {KP}, v{d7}")
    a(f"v_and_b32 v{t}, 1, v2")
    a(f"v_lshl_add_u32 v{d7}, v{t}, 4, v{d7}")
    a(f"v_add_u32 v{d7}, {80*KP+64}, v{d7}")


def sigmoid_bf16(a, x, t):
    a(f"v_mul_f32 v{t}, 0xbfb8aa3b, v{x}")
    a(f"v_exp_f32 v{t}, v{t}")
    a.nop(1)
    a(f"v_add_f32 v{t}, 1.0, v{t}")
    a(f"v_rcp_f32 v{t}, v{t}")
    a.nop(1)
    a(f"v_cvt_pk_bf16_f32 v{x}, v{t}, v{t}")


RX, RW, RG = 16, 34, 52


RL = 84


def router_pro(a):
    a.lab("RT_PRO")
    a("s_add_u32 s6, s6, s7")
    a("v_add_u32 v5, s6, v4")
    a("v_lshlrev_b32 v6, 4, v3")
    a("v_lshlrev_b32 v7, 3, v3")
    a("v_mul_u32_u24 v9, 1152, v5")
    a("v_add_u32 v8, v9, v6")
    a("v_add_u32 v9, v9, v7")
    a("v_mov_b32 v10, 0")
    a("v_lshlrev_b32 v11, 2, v2")
    a(f"v_add_u32 v12, {RKL}, v11")
    a("ds_write_b32 v12, v10")
    a("v_and_b32 v11, 0x7c, v11")
    a("v_lshlrev_b32 v12, 4, v2")
    a("s_mul_i32 s13, s7, 640")
    a(f"s_add_u32 s13, s13, {XS}")
    a("s_mov_b32 m0, s13")
    a("s_waitcnt lgkmcnt(0)")
    a(f"s_load_dword s12, {sr(P_WS,2)}, 0")
    a(f"global_load_lds_dwordx4 v12, {sr(P_WR,2)}")
    a(f"global_load_lds_dword v11, {sr(P_WR,2)} offset:1024")
    a("s_add_u32 m0, s13, 1280")
    a("v_add_u32 v6, s13, v6")
    a(f"global_load_lds_dwordx4 v12, {sr(P_GW,2)}")
    a(f"global_load_lds_dword v11, {sr(P_GW,2)} offset:1024")
    for i in range(4):
        a(f"global_load_dwordx4 {vr(RX+4*i,4)}, v8, {sr(P_U,2)} offset:{256*i}")
    a(f"global_load_dwordx2 {vr(RX+16,2)}, v9, {sr(P_U,2)} offset:1024")
    a("s_barrier")
    a("s_branch RT_MAIN")


def row_sum(a, v):
    for k in (8, 4, 2, 1):
        a.nop(2)
        a(f"v_add_f32_dpp v{v}, v{v}, v{v} row_ror:{k} {DPPF}")


def router_main(a):
    a.lab("RT_MAIN")
    assert KP == 256 and WS_G == WS_KEY + 128
    a(f"s_mul_i32 s6, s2, {KP}")
    a(f"s_add_u32 s6, s6, {WS_KEY}")
    a("v_lshl_add_u32 v5, v2, 2, s6")
    a("s_cmp_lt_u32 s2, 80")
    a("s_cselect_b32 s8, 15, 23")
    a("v_and_b32 v14, 31, v2")
    a("v_min_u32 v14, s8, v14")
    a("v_and_or_b32 v14, v2, 32, v14")
    a(f"s_mov_b32 s8, {RKL}")
    a("v_lshl_add_u32 v14, v14, 2, s8")
    a("v_add_u32 v13, s7, v4")
    a("v_lshl_add_u32 v13, v13, 2, s8")
    a("s_mov_b32 s8, 0xffff")
    a("s_mov_b32 s10, 0x00010001")
    a("s_mov_b32 s11, 0x00010001")
    a(f"v_mov_b32 v12, {M3}")
    a("s_waitcnt lgkmcnt(0)")
    a("s_add_u32 s12, s12, 1")
    a("v_mov_b32 v11, s12")
    a("ds_write_b64 v12, v[10:11]")
    a("v_add_u32 v7, s13, v7")
    a("s_waitcnt vmcnt(5)")
    for base, o in ((RG, 1280), (RW, 0)):
        for i in range(4):
            a(f"ds_read_b128 {vr(base+4*i,4)}, v6 offset:{o+256*i}")
        a(f"ds_read_b64 {vr(base+16,2)}, v7 offset:{o+1024}")
    if env("GRND", 1):
        T = 70
        a("v_mov_b32 v8, 0x3f803f80")
        a("s_waitcnt lgkmcnt(5)")
        for k in range(18):
            a(f"v_and_b32 v{RL+k}, 0xffff, v{RG+k}")
            a(f"v_and_b32 v{RG+k}, 0xffff0000, v{RG+k}")
        a("s_waitcnt lgkmcnt(0)")
        for b in range(5):
            ks = range(4 * b, min(4 * b + 4, 18))
            a(f"s_waitcnt vmcnt({4-b})")
            for k in ks:
                a(f"v_dot2_f32_bf16 v{T+2*(k&3)}, v{RX+k}, v{RL+k}, 0")
                a(f"v_dot2_f32_bf16 v{T+2*(k&3)+1}, v{RX+k}, v{RG+k}, 0")
            for k in ks:
                a(f"v_dot2_f32_bf16 v12, v{RX+k}, v{RW+k}, {'v12' if k else '0'}")
            for k in ks:
                a(f"v_cvt_pk_bf16_f32 v{T+2*(k&3)}, v{T+2*(k&3)}, v{T+2*(k&3)+1}")
            for k in ks:
                a(f"v_dot2_f32_bf16 v15, v{T+2*(k&3)}, v8, {'v15' if k else '0'}")
        a.nop(1)
    else:
        a("s_waitcnt lgkmcnt(0)")
        for i in range(18):
            if i % 4 == 0:
                a(f"s_waitcnt vmcnt({4-i//4})")
            a(f"v_dot2_f32_bf16 v15, v{RX+i}, v{RG+i}, {'v15' if i else '0'}")
            a(f"v_dot2_f32_bf16 v12, v{RX+i}, v{RW+i}, {'v12' if i else '0'}")
    a.stamp(1)
    a.nop(2)
    for k in (8, 4, 2, 1):
        a(f"v_add_f32_dpp v15, v15, v15 row_ror:{k} {DPPF}")
        a(f"v_add_f32_dpp v12, v12, v12 row_ror:{k} {DPPF}")
        a.nop(1)
    a("v_cvt_pk_bf16_f32 v15, 0, v15")
    a("v_mul_f32 v15, 0xbfb8aa3b, v15")
    a("v_exp_f32 v15, v15")
    a("v_cvt_pk_bf16_f32 v12, v12, v12")
    a("v_add_f32 v15, 1.0, v15")
    a("v_rcp_f32 v15, v15")
    a("v_ashrrev_i32 v9, 31, v12")
    a("v_cvt_pk_bf16_f32 v15, 1.0, v15")
    a("v_or_b32 v9, 0x80000000, v9")
    a("v_bitop3_b32 v12, v12, v9, 1 bitop3:0xbe")
    a("s_mov_b64 exec, s[10:11]")
    a("ds_write2_b32 v13, v12, v15 offset0:0 offset1:32")
    a("s_mov_b64 exec, -1")
    a("s_cmp_lg_u32 s7, 0")
    a("s_cbranch_scc1 RT_X")
    spin(a, 14, 0, "eq", 0, 12, 9, sleep=0)
    a("v_bfi_b32 v12, s8, v11, v12")
    if env("HALF", 0):
        a(f"s_mov_b64 exec, {env('HALF', 0):#x}")
    if not env("NOK", 0) & 1:
        a(f"global_store_dword v5, v12, {sr(P_WS,2)} {os.environ.get('KFL', 'sc1')}")
    a("s_mov_b64 exec, -1")
    a.stamp(2)
    a("s_cmp_lg_u32 s2, 0")
    a("s_cbranch_scc1 RT_X")
    a("v_mov_b32 v8, v11")
    a("v_mov_b32 v9, 1")
    a(f"global_store_dwordx2 v10, v[8:9], {sr(P_DBG,2)} sc1")
    a.lab("RT_X")
    a("s_barrier")
    a.lab("RT_TAIL")
    a("s_cmp_ge_u32 s2, 80")
    a("s_cbranch_scc1 DN_JOIN")
    a("s_cmp_lt_u32 s2, 72")
    a("s_cbranch_scc1 RT_CTL")
    a("s_barrier")
    a("s_branch DN_JOIN")
    a.lab("RT_CTL")
    a("s_cmp_lg_u32 s3, 8")
    a("s_cbranch_scc1 W_END")
    a("v_mov_b32 v14, v11")
    a("s_mul_i32 s8, s4, 9")
    a("s_add_u32 s8, s8, s5")
    a("s_lshl_b32 s8, s8, 12")
    a(f"s_add_u32 s8, s8, {WS_H}")
    a("v_lshl_add_u32 v23, v3, 7, s8")
    a(f"global_load_dword v24, v23, {sr(P_WS,2)} sc1")
    a(f"v_mov_b32 v21, {M3}")
    a("v_mov_b32 v22, 16")
    srd(a, SX, P_U, 2359296)
    a("v_lshlrev_b32 v19, 4, v2")
    a("v_lshlrev_b32 v20, 2, v2")
    if SCP:
        a("s_lshl_b32 s13, s4, 10")
        a(f"s_add_u32 s13, s13, {WS_REP}")
        a("s_add_u32 s7, s13, 1024")
        a(f"s_sleep {env('SC0', 16)}")
        a.lab("RT_SC")
        a(f"s_load_dwordx16 s[16:31], {sr(P_WS,2)}, s13")
        a("s_add_u32 s13, s13, 64")
        a("s_waitcnt lgkmcnt(0)")
        a("s_xor_b32 s8, s17, s12")
        for i in range(1, 8):
            a(f"s_xor_b32 s9, s{17+2*i}, s12")
            a("s_or_b32 s8, s8, s9")
        a("s_cbranch_scc0 RT_SCOK")
        a(f"s_sleep {env('SCS', 2)}")
        a("s_cmp_lt_u32 s13, s7")
        a("s_cbranch_scc1 RT_SC")
    sel_poll(a, 14, "C")
    for i in range(8):
        a(f"v_readlane_b32 s{16+2*i}, v8, {i}")
    a.lab("RT_SCOK")
    a.stamp(4)
    a(f"s_mov_b32 m0, {XS}")
    for i in range(8):
        a(f"s_andn2_b32 s{76+i}, 0x7ff, s{16+2*i}")
        a(f"s_mul_i32 s{76+i}, s{76+i}, 1152")
    for i in range(8):
        a(f"buffer_load_dwordx4 v19, {sr(SX,4)}, s{76+i} offen lds")
        a(f"buffer_load_dword v20, {sr(SX,4)}, s{76+i} offen offset:1024 lds")
        a(f"s_add_u32 m0, m0, {XSP}")
        a("s_nop 0")
    for i in range(8):
        a(f"v_mov_b32 v{28+i}, s{76+i}")
    a(f"v_mov_b32 v23, {CAND}")
    a("ds_write_b128 v23, v[28:31]")
    a("ds_write_b128 v23, v[32:35] offset:16")
    a("s_waitcnt vmcnt(0)")
    post(a, 21, C2, 22)
    a("s_waitcnt lgkmcnt(0)")
    a.stamp(1)
    a("s_barrier")
    a.end()


def sel_slot(a, v, spread):
    if spread:
        a(f"v_and_b32 v{v}, 4, v2")
        a(f"v_add_u32 v{v}, v{v}, v4")
    else:
        a(f"v_and_b32 v{v}, 7, v2")


def sel_addr(a, v, spread):
    sel_slot(a, v, spread)
    a("s_lshl_b32 s9, s4, 8")
    a(f"v_lshl_add_u32 v{v}, v{v}, 3, s9")


def sel_poll(a, vtag, lab, early=None):
    sel_addr(a, 6, early)
    sel_slot(a, 7, early)
    a("s_lshl_b32 s9, s4, 10")
    a(f"s_add_u32 s9, s9, {WS_SELB-WS_SEL}")
    a("v_lshl_add_u32 v7, v7, 7, s9")
    a("s_mov_b32 s12, 0")
    if early:
        a("s_waitcnt vmcnt(0)")
        a(f"v_mov_b32 v8, v{early}")
        a(f"v_mov_b32 v9, v{early+1}")
        a("s_branch SPC_" + lab)
    a.lab("SP_" + lab)
    a("s_add_u32 s12, s12, 1")
    a("s_and_b32 s9, s12, 7")
    a("s_cselect_b64 s[14:15], 0, -1")
    a("v_cndmask_b32 v10, v6, v7, s[14:15]")
    a(f"global_load_dwordx2 v[8:9], v10, {sr(P_WS,2)} offset:{WS_SEL} sc1")
    a("s_waitcnt vmcnt(0)")
    a.lab("SPC_" + lab)
    a(f"v_cmp_ne_u32 vcc, v9, v{vtag}")
    a(f"s_cmp_ge_u32 s12, {SPIN}")
    a(f"s_cbranch_scc1 SPX_{lab}")
    a(f"s_cbranch_vccz SPX_{lab}")
    a("s_mov_b64 exec, vcc")
    a(f"s_sleep {env('CSL', 2)}")
    a("s_branch SP_" + lab)
    a.lab("SPX_" + lab)
    a("s_mov_b64 exec, -1")


def sparse_lane(a, vaddr, vidx, pitch, base):
    a(f"v_lshrrev_b32 v{vaddr}, 1, v3")
    a(f"v_mul_u32_u24 v{vaddr}, {pitch}, v{vaddr}")
    a(f"v_lshl_add_u32 v{vaddr}, v4, 5, v{vaddr}")
    a(f"v_and_b32 v{vidx}, 1, v2")
    a(f"v_lshl_add_u32 v{vaddr}, v{vidx}, 4, v{vaddr}")
    a(f"v_add_u32 v{vaddr}, {base}, v{vaddr}")
    a(f"v_mul_u32_u24 v{vidx}, 0xaaaa, v{vidx}")
    a(f"v_add_u32 v{vidx}, 0x4444, v{vidx}")


def dn_issue(a):
    a("s_lshr_b32 s8, s6, 3")
    a("s_lshl_b32 s8, s8, s67")
    a("s_and_b32 s9, s6, 7")
    a("s_lshl_b32 s12, s8, 3")
    a("s_add_u32 s12, s12, s9")
    a("s_lshl_b32 m0, s12, 10")
    a("s_mul_i32 s9, s9, 9216")
    a("s_bitcmp1_b32 s6, 0")
    a("s_cselect_b32 s12, 6912, 0")
    a("s_sub_u32 s9, s9, s12")
    a("s_bitcmp1_b32 s8, 0")
    a(f"s_cselect_b32 s12, {36864-128}, 0")
    a("s_mul_i32 s8, s8, 36864")
    a("s_sub_u32 s8, s8, s12")
    a("s_add_u32 s8, s8, s9")
    a("s_add_u32 s8, s8, s14")
    a(f"buffer_load_dwordx4 v5, {sr(SD,4)}, s8 offen {os.environ.get('WFL', '')} lds")
    a("s_add_u32 s6, s6, s70")


def helper(a):
    a.lab("HELPER")
    a("v_lshrrev_b32 v6, 3, v2")
    a("v_and_b32 v7, 2, v6")
    a("v_mad_u32_u24 v7, v7, 3, v6")
    a("v_mul_u32_u24 v5, 1152, v7")
    a("v_and_b32 v7, 6, v6")
    a("v_xor_b32 v7, v7, v2")
    a("v_and_b32 v7, 7, v7")
    a("v_lshl_add_u32 v5, v7, 4, v5")
    a("s_lshl_b32 s8, s5, 1")
    a("s_sub_u32 s8, s8, 20")
    a("s_cmp_lt_u32 s2, 80")
    a("s_cselect_b32 s8, 8, s8")
    a("s_cselect_b32 s70, 8, 6")
    a(f"s_cselect_b32 s69, {env('HS', 2)}, {HA}")
    a("s_cselect_b32 s67, 1, 0")
    a("s_cselect_b32 s71, 1, 2")
    a("s_mul_i32 s71, s71, 72")
    a("s_lshl_b32 s8, s8, 7")
    a(f"s_mul_i32 s14, s4, {9*73728}")
    a("s_add_u32 s14, s14, s8")
    a("s_mov_b32 s6, s3")
    a("s_waitcnt lgkmcnt(0)")
    srd(a, SD, P_WD, 5308416)
    a("s_barrier")
    a("s_branch DN_LOAD")


def down_main(a):
    a.lab("DN_LOAD")
    a(f"v_mov_b32 v55, {WS_SELB}")
    a("s_mov_b64 s[80:81], 0")
    if env("DTLB", 1):
        a("s_cmp_lg_u32 s3, 0")
        a("s_cbranch_scc1 DN_NOT")
        a("v_min_u32 v8, 8, v2")
        a("v_mul_u32_u24 v8, 73728, v8")
        a("v_add_u32 v8, 72576, v8")
        a(f"buffer_load_dword v9, v8, {sr(SD,4)}, s14 offen")
        a.lab("DN_NOT")
    if env("SA", 2) > 1:
        a("s_cmp_ge_u32 s2, 80")
        a("s_cbranch_scc1 DN_SA")
        a.lab("DN_SAL")
        dn_issue(a)
        a(f"s_cmp_lt_u32 s6, {8*(env('SA', 2)-1)}")
        a("s_cbranch_scc1 DN_SAL")
        a.lab("DN_SA")
    if env("DA", 1):
        dn_issue(a)
    else:
        a("v_mov_b32 v8, 0")
        a(f"global_load_dword v9, v8, {sr(P_WR,2)}")
    a("s_waitcnt vmcnt(0)")
    if HG:
        a("s_cmp_lt_u32 s2, 80")
        a("s_cbranch_scc1 DN_L0")
        a("s_lshl_b32 s68, s3, 2")
        a("s_add_u32 s68, s68, s5")
        a(f"s_sub_u32 s68, {162+9}, s68")
        a("v_mul_u32_u24 v10, 9216, v2")
        a("s_mul_i32 s8, s4, 1152")
        a("v_add_u32 v10, s8, v10")
        a(f"s_cmp_ge_u32 s3, {env('HGW', 3)}")
        a("s_cbranch_scc1 DN_G1")
        pf_gu(a, 68, 0, 10, 8)
        a.lab("DN_G1")
        a("s_barrier")
        a(f"s_cmp_lt_u32 s3, {env('HGW', 3)}")
        a("s_cbranch_scc1 DN_G2")
        a(f"s_cmp_ge_u32 s3, {HG}")
        a("s_cbranch_scc1 DN_G3")
        pf_gu(a, 68, 0, 10, 8)
        a.lab("DN_G2")
        a("s_waitcnt vmcnt(0)")
        a.lab("DN_G3")
        a("s_branch DN_L2")
        a.lab("DN_L0")
    a("s_mov_b32 s13, 0")
    a.lab("DN_L1")
    dn_issue(a)
    a("s_add_u32 s13, s13, 1")
    a("s_cmp_lt_u32 s13, s69")
    a("s_cbranch_scc1 DN_L1")
    a("s_cmp_lt_u32 s2, 80")
    a("s_cbranch_scc1 SEL_MAIN")
    a("s_barrier")
    a.lab("DN_L2")
    a("s_cmp_ge_u32 s6, s71")
    a("s_cbranch_scc1 DN_LX")
    a(f"s_waitcnt vmcnt({HW-1})")
    dn_issue(a)
    a("s_branch DN_L2")
    a.lab("DN_LX")
    a.lab("DN_JOIN")
    AF, BF, AC = 24, 96, 132
    a(f"v_mov_b32 v21, {M3}")
    a("ds_read_b32 v14, v21 offset:4")
    a("v_and_b32 v18, 1, v4")
    a("v_bfe_u32 v6, v2, 2, 2")
    a("v_lshl_add_u32 v18, v18, 2, v6")
    a("v_lshrrev_b32 v19, 1, v18")
    a("v_lshlrev_b32 v18, 7, v18")
    a("v_and_b32 v7, 3, v2")
    a("v_lshl_add_u32 v18, v7, 3, v18")
    a("v_lshrrev_b32 v6, 1, v4")
    a("v_lshl_add_u32 v18, v6, 11, v18")
    a("s_and_b32 s9, s3, 3")
    a("v_xor_b32 v19, s9, v19")
    a("v_lshl_add_u32 v18, v19, 5, v18")
    a("s_lshr_b32 s8, s3, 2")
    a("s_lshl_b32 s8, s8, 13")
    a("v_add_u32 v8, s8, v18")
    a("v_add_u32 v9, 49152, v8")
    a("v_add_u32 v10, 98304, v8")
    sparse_lane(a, 11, 22, HP2, H2)
    for j in range(4):
        a(f"v_mov_b32 v{AC+j}, 0")
    a("v_lshrrev_b32 v12, 2, v3")
    a(f"v_mul_u32_u24 v17, {2*HP2}, v12")
    a(f"v_mul_u32_u24 v12, {PS}, v12")
    a("v_lshl_add_u32 v12, v7, 4, v12")
    a("v_lshl_add_u32 v12, v6, 6, v12")
    a("s_lshl_b32 s8, s5, 3")
    a("s_sub_u32 s8, s8, 80")
    a("s_cmp_lt_u32 s2, 80")
    a("s_cselect_b32 s8, 32, s8")
    a("s_cselect_b32 s13, 4, 8")
    a("s_cselect_b32 s15, 8, 6")
    a("s_add_u32 s8, s8, s3")
    a(f"s_mul_i32 s8, s8, {4*PS}")
    a("s_lshl_b32 s9, s4, 7")
    a("s_add_u32 s8, s8, s9")
    a(f"s_add_u32 s8, s8, {WS_PART}")
    a("v_add_u32 v12, s8, v12")
    a("s_sub_u32 s9, s3, 3")
    a("s_mul_i32 s8, s4, 9")
    a("s_add_u32 s8, s8, s9")
    a("s_lshl_b32 s8, s8, 12")
    a(f"s_add_u32 s8, s8, {WS_H}")
    a("v_lshl_add_u32 v16, v2, 5, s8")
    a("v_lshl_add_u32 v17, v4, 5, v17")
    a("v_lshl_add_u32 v17, v7, 3, v17")
    a("s_lshl_b32 s9, s9, 7")
    a(f"s_add_u32 s9, s9, {H2}")
    a("v_add_u32 v17, s9, v17")
    a("s_mov_b32 s10, 0xffff")
    a("s_mov_b32 s11, 0xffff")
    a("s_movk_i32 s78, 0xff")
    a("s_mov_b32 s76, 0x07060302")

    def frag(b):
        for q in range(4):
            a(f"ds_read_b64_tr_b16 {vr(AF+8*b+2*q,2)}, v{8+b//3} offset:{16384*(b%3)+4096*(q>>1)+1024*(q&1)}")
    a("s_cmp_ge_u32 s3, s15")
    a("s_cbranch_scc1 DN_NL")
    a("v_mov_b32 v23, 1")
    a("s_cmp_lt_u32 s2, 80")
    a("s_cbranch_scc1 DN_LS")
    a(f"s_waitcnt vmcnt({DNL*16//6})")
    a("s_branch DN_LP")
    a.lab("DN_LS")
    a(f"s_waitcnt vmcnt({DNL})")
    if env("BLATE", 0):
        a("s_mov_b64 exec, s[80:81]")
        a("s_cbranch_execz DN_NOB")
        a(f"global_store_dwordx2 v55, v[48:49], {sr(P_WS,2)} sc1")
        a.lab("DN_NOB")
        a("s_mov_b64 exec, -1")
    a.lab("DN_LP")
    post(a, 21, C1, 23)
    a.lab("DN_NL")
    a("s_cmp_ge_u32 s3, s13")
    a("s_cbranch_scc1 DN_NOF")
    spin(a, 21, C1, "ne", "s15", 23, 9, sleep=2)
    for b in range(9 - DNL):
        frag(b)
    a.lab("DN_NOF")
    a("s_waitcnt vmcnt(0) lgkmcnt(0)")
    a("s_barrier")
    a.stamp(3)
    a("s_cmp_ge_u32 s3, s13")
    a("s_cbranch_scc1 DN_NOF2")
    for b in range(9 - DNL, 9):
        frag(b)
    a.lab("DN_NOF2")
    a("s_cmp_lt_u32 s3, 3")
    a("s_cbranch_scc1 DN_W")
    a("s_mov_b32 s12, 0")
    a.lab("DN_POLL")
    a("s_add_u32 s12, s12, 1")
    a(f"s_and_b32 s8, s12, {env('BEV', 63)}")
    a("s_cselect_b32 s8, 0, 2048")
    a("v_add_u32 v20, s8, v16")
    a(f"global_load_dwordx4 {vr(BF,4)}, v20, {sr(P_WS,2)} sc1")
    a(f"global_load_dwordx4 {vr(BF+4,4)}, v20, {sr(P_WS,2)} offset:16 sc1")
    a("s_waitcnt vmcnt(0)")
    a(f"v_xor_b32 v20, v{BF}, v14")
    for r in range(BF + 1, BF + 8):
        a(f"v_bitop3_b32 v20, v20, v{r}, v14 bitop3:0xf6")
    a("v_and_b32 v20, 0xffff, v20")
    a("v_cmp_ne_u32 vcc, 0, v20")
    a(f"s_cmp_ge_u32 s12, {4*SPIN}")
    a("s_cbranch_scc1 DN_GOT")
    a("s_cbranch_vccnz DN_POLL")
    a.lab("DN_GOT")
    for p in range(4):
        a(f"v_perm_b32 v{BF+8+p}, v{BF+4*(p&1)+2+(p>>1)}, v{BF+4*(p&1)+(p>>1)}, s76")
    a(f"ds_write_b64 v17, {vr(BF+8,2)}")
    a(f"ds_write_b64 v17, {vr(BF+10,2)} offset:{HP2}")
    a.lab("DN_W")
    a("s_waitcnt lgkmcnt(0)")
    a("s_barrier")
    a.stamp(5)
    a("s_cmp_ge_u32 s3, s13")
    a("s_cbranch_scc1 W_END")
    for b in range(9):
        a(f"ds_read_b128 {vr(BF+4*b,4)}, v11 offset:{128*b}")
    for b in range(9):
        a(f"s_waitcnt lgkmcnt({8-b})")
        a(f"v_smfmac_f32_16x16x64_bf16 {vr(AC,4)}, {vr(BF+4*b,4)}, {vr(AF+8*b,8)}, v22")
    S = 136
    a.nop(8)
    a(f"v_add_f32 v{S}, v{AC}, v{AC+1}")
    a(f"v_add_f32 v{S+1}, v{AC+2}, v{AC+3}")
    a(f"v_bfi_b32 v{S+2}, s78, v14, v{S}")
    a(f"v_bfi_b32 v{S+3}, s78, v14, v{S+1}")
    a(f"v_bfi_b32 v{S}, s78, v14, v{S}")
    a(f"v_bfi_b32 v{S+1}, s78, v14, v{S+1}")
    a.nop(1)
    a(f"v_permlane16_swap_b32 v{S}, v{S+2}")
    a(f"v_permlane16_swap_b32 v{S+1}, v{S+3}")
    a("s_mov_b64 exec, s[10:11]")
    a(f"global_store_dwordx4 v12, {vr(S,4)}, {sr(P_WS,2)} sc1")
    a(f"s_cmp_lg_u32 s3, {env('HWV', 3)}")
    a("s_cbranch_scc1 DN_NOHINT")
    a("s_lshl_b32 s8, s4, 7")
    a("s_lshl_b32 s9, s5, 2")
    a("s_add_u32 s8, s8, s9")
    a("v_mov_b32 v20, s8")
    a(f"global_store_dword v20, v14, {sr(P_WS,2)} offset:{WS_HINT-36}")
    if env("WBD", 0):
        a("s_cmp_ge_u32 s2, 80")
        a("s_cbranch_scc1 DN_NOHINT")
        if env("WBD", 0) > 1:
            a(f"s_sleep {env('WBD', 0)}")
        a("buffer_wbl2 sc1")
    a("s_cmp_lg_u32 s2, 72")
    a("s_cbranch_scc1 DN_NOHINT")
    a("v_mov_b32 v20, 0")
    a(f"global_store_dword v20, v14, {sr(P_WS,2)} sc1")
    a.lab("DN_NOHINT")
    a.stamp(6)
    a.end()


def pf_gu(a, sq, r0, vbase, vt):
    a(f"s_mul_i32 s8, s{sq}, 7282")
    a("s_lshr_b32 s8, s8, 16")
    a("s_mul_i32 s9, s8, 9")
    a(f"s_sub_u32 s9, s{sq}, s9")
    a("s_lshl_b32 s9, s9, 7")
    a("s_bitcmp1_b32 s8, 0")
    a(f"s_cselect_b32 s12, s{P_WU}, s{P_WG}")
    a(f"s_cselect_b32 s13, s{P_WU+1}, s{P_WG+1}")
    if UROT:
        a(f"s_cselect_b32 s14, {UROT}, 0")
    a("s_lshr_b32 s8, s8, 1")
    a(f"s_add_u32 s8, s8, {r0}")
    if UROT:
        a("s_add_u32 s8, s8, s14")
        a("s_cmp_ge_u32 s8, 9")
        a("s_cselect_b32 s14, 9, 0")
        a("s_sub_u32 s8, s8, s14")
    a(f"s_mul_i32 s8, s8, {64*9216}")
    a("s_add_u32 s8, s8, s9")
    a(f"v_add_u32 v{vt}, s8, v{vbase}")
    a(f"global_load_dword v{vt+1}, v{vt}, s[12:13] {PFL}")


SG, SU, SD, SX, SDB, SW = 52, 56, 60, 64, 68, 72


def ffn_round(a, h):
    i = h >> 1
    a(f"s_add_u32 m0, s15, {8192*i+L_UP*(h&1)}")
    a(f"s_add_u32 s8, s14, {64*9216*((i+UROT*(h&1))%9)}")
    a(f"buffer_load_dwordx4 v5, {sr(SU if h & 1 else SG,4)}, s8 offen {os.environ.get('WFL', '')} lds")


def ffn_pro(a):
    a.lab("F_PRO")
    a("s_mul_i32 s6, s4, 9")
    a("s_add_u32 s6, s6, s5")
    a("v_lshrrev_b32 v6, 3, v2")
    a("v_and_b32 v7, 2, v6")
    a("v_mad_u32_u24 v7, v7, 3, v6")
    a("v_mul_u32_u24 v5, 9216, v7")
    a("v_and_b32 v7, 6, v6")
    a("v_xor_b32 v7, v7, v2")
    a("v_and_b32 v7, 7, v7")
    a("v_lshl_add_u32 v5, v7, 4, v5")
    a("s_and_b32 s8, s3, 1")
    a("s_lshr_b32 s9, s3, 1")
    a("s_lshl_b32 s9, s9, 3")
    a("s_add_u32 s8, s8, s9")
    a(f"s_mul_i32 s14, s8, {2*9216}")
    a("s_lshl_b32 s8, s6, 7")
    a("s_add_u32 s14, s14, s8")
    a("s_lshl_b32 s15, s3, 10")
    a(f"s_mov_b32 s{SG+2}, 5308416")
    a(f"s_mov_b32 s{SG+3}, 0x20000")
    a(f"s_mov_b32 s{SU+2}, 5308416")
    a(f"s_mov_b32 s{SU+3}, 0x20000")
    a("s_waitcnt lgkmcnt(0)")
    a(f"s_mov_b64 {sr(SG,2)}, {sr(P_WG,2)}")
    a(f"s_mov_b64 {sr(SU,2)}, {sr(P_WU,2)}")
    a("s_barrier")
    a("s_branch F_MAIN")


C1, C2, C3 = SELL - M3, SELL - M3 + 4, SELL - M3 + 8


def ffn_main(a):
    a.lab("F_MAIN")
    issue = lambda n: ffn_round(a, n)
    NG = 18
    a("v_and_b32 v7, 7, v2")
    if TLB:
        a("s_cmp_ge_u32 s3, 2")
        a("s_cbranch_scc1 F_NOTLB")
        a(f"v_and_b32 v8, {TLB-1}, v2")
        a(f"v_mul_u32_u24 v8, {576//TLB*9216}, v8")
        a("s_lshl_b32 s8, s6, 7")
        a(f"s_add_u32 s8, s8, {(576//TLB-1)*9216}")
        a("v_add_u32 v8, s8, v8")
        a("s_cmp_eq_u32 s3, 0")
        a(f"s_cselect_b32 s12, s{P_WU}, s{P_WG}")
        a(f"s_cselect_b32 s13, s{P_WU+1}, s{P_WG+1}")
        a("global_load_dword v23, v8, s[12:13]")
        a.lab("F_NOTLB")
    for i in range(RA):
        issue(i)
    if RA == 0:
        a("v_mov_b32 v8, 0")
        a(f"global_load_dword v23, v8, {sr(P_WR,2)}")
    a("s_and_b32 s12, s3, 3")
    a("v_and_b32 v18, 1, v4")
    a("v_bfe_u32 v6, v2, 2, 2")
    a("v_lshl_add_u32 v18, v18, 2, v6")
    a("v_lshrrev_b32 v6, 1, v18")
    a("v_xor_b32 v6, s12, v6")
    a("v_lshlrev_b32 v18, 7, v18")
    a("v_lshl_add_u32 v18, v6, 5, v18")
    a("v_and_b32 v6, 3, v2")
    a("v_lshl_add_u32 v18, v6, 3, v18")
    a("v_lshrrev_b32 v6, 1, v4")
    a("v_lshl_add_u32 v18, v6, 11, v18")
    a(f"v_add_u32 v6, {L_UP}, v18")
    a("v_add_u32 v0, 40960, v18")
    a("v_add_u32 v1, 40960, v6")
    sparse_lane(a, 8, 9, XSP, XS)
    a("s_lshl_b32 s8, s6, 12")
    a("s_lshl_b32 s9, s3, 9")
    a("s_add_u32 s8, s8, s9")
    a(f"s_add_u32 s8, s8, {WS_H}")
    a("v_lshl_add_u32 v11, v2, 3, s8")
    a("s_mov_b32 s76, 0xffff")
    a(f"v_mov_b32 v21, {M3}")
    a("v_mov_b32 v22, 1")
    a("s_mov_b32 s10, 0xff00ff00")
    a("s_mov_b32 s11, 0xff00ff00")
    touch(a, "F")
    a("s_waitcnt vmcnt(0)")
    for i in range(RA, RB):
        issue(i)
    for j in range(8):
        a(f"v_mov_b32 v{160+j}, 0")
    a("s_barrier")
    a("ds_read_b32 v14, v21 offset:4")
    AG, XB, AC = 24, 136, 160
    for i in range(RB, NG):
        w = WIN if i < WSW else WIN2
        if i - RA >= w:
            a(f"s_waitcnt vmcnt({w-1})")
        issue(i)
        if env("FST", 0):
            if i in (5, 7, 9, 11, 13, 15, 17):
                a.stamp(1 + (5, 7, 9, 11, 13, 15, 17).index(i))
        elif i == 13:
            a.stamp(1)
    if env("FST", 0):
        a.stamp = lambda i: None
    a.stamp(2)

    NE, NX = 7, 6
    assert LATE == 2 and not UROT

    def rda(i):
        for m in range(2):
            va, o = ((18, 6)[m], 8192 * i) if i < 5 else (m, 8192 * (i - 5))
            for q in range(4):
                a(f"ds_read_b64_tr_b16 {vr(AG+16*(i%NE)+8*m+2*q,2)}, v{va} offset:{o+4096*(q>>1)+1024*(q&1)}")

    def rdx(i):
        a(f"ds_read_b128 {vr(XB+4*(i%NX),4)}, v8 offset:{128*i}")
    a(f"s_waitcnt vmcnt({2*LATE})")
    post(a, 21, C1, 22)
    a("s_cmp_ge_u32 s3, 4")
    a("s_cbranch_scc1 F_LD")
    spin(a, 21, C1, "ne", 8, 23, 9, sleep=0)
    for i in range(NE):
        rda(i)
    if STAGE:
        spin(a, 21, C2, "eq", 0, 23, 9, sleep=0)
        for i in range(NX):
            rdx(i)
        for i in range(NE):
            a(f"s_waitcnt lgkmcnt({NX-1-i+min(max(i-1,0),3) if i < NX else 2})")
            for m in range(2):
                a(f"v_smfmac_f32_16x16x64_bf16 {vr(AC+4*m,4)}, {vr(XB+4*(i%NX),4)}, {vr(AG+16*(i%NE)+8*m,8)}, v9")
            if 1 <= i <= 3:
                rdx(NX + i - 1)
    a.lab("F_LD")
    a("s_waitcnt vmcnt(0)")
    a.stamp(3)
    a("s_barrier")
    a.stamp(4)
    a("s_cmp_ge_u32 s3, 4")
    a("s_cbranch_scc1 RELAY")
    q = []
    if STAGE:
        for i in range(NE, 9):
            rda(i)
        for i in range(NE, 9):
            for m in range(2):
                a(f"s_waitcnt lgkmcnt({8*(8-i)+4*(1-m)})")
                a(f"v_smfmac_f32_16x16x64_bf16 {vr(AC+4*m,4)}, {vr(XB+4*(i%NX),4)}, {vr(AG+16*(i%NE)+8*m,8)}, v9")
    for i in range(NX if not STAGE else 0):
        rdx(i)
        q.append(("x", i))
    for i in range(9 if not STAGE else 0):
        hit = [j for j, e in enumerate(q) if e in (("x", i), ("a", i))]
        if hit:
            a(f"s_waitcnt lgkmcnt({min(15, len(q)-1-hit[-1])})")
            del q[:hit[-1] + 1]
        for m in range(2):
            a(f"v_smfmac_f32_16x16x64_bf16 {vr(AC+4*m,4)}, {vr(XB+4*(i%NX),4)}, {vr(AG+16*(i%NE)+8*m,8)}, v9")
        if 1 <= i <= 3:
            rdx(NX + i - 1)
            q.append(("x", NX + i - 1))
        if 1 <= i <= 2:
            rda(NE + i - 1)
            q += [("a", NE + i - 1)] * 8
    a.nop(7)
    a(f"v_add_f32 v24, v{AC}, v{AC+1}")
    a(f"v_add_f32 v25, v{AC+2}, v{AC+3}")
    a(f"v_add_f32 v26, v{AC+4}, v{AC+5}")
    a(f"v_add_f32 v27, v{AC+6}, v{AC+7}")
    for r in range(24, 28):
        a(f"v_cvt_pk_bf16_f32 v{r}, 0, v{r}")
    for op in ("v_mul_f32 v{t}, 0xbfb8aa3b, v{g}", "v_exp_f32 v{t}, v{t}", "v_add_f32 v{t}, 1.0, v{t}", "v_rcp_f32 v{t}, v{t}",
               "v_mul_f32 v{g}, v{g}, v{t}", "v_cvt_pk_bf16_f32 v{g}, 0, v{g}", "v_mul_f32 v{g}, v{g}, v{u}",
               "v_cvt_pk_bf16_f32 v{g}, 0, v{g}", "v_bfi_b32 v{g}, s76, v14, v{g}"):
        for j in range(2):
            a(op.format(g=24 + j, u=26 + j, t=28 + j))
    a(f"global_store_dwordx2 v11, v[24:25], {sr(P_WS,2)}")
    a(f"global_store_dwordx2 v11, v[24:25], {sr(P_WS,2)} offset:2048 sc1")
    a.stamp(6)
    a.lab("RELAY")
    a("s_cmp_ge_u32 s2, 64")
    a("s_cbranch_scc1 W_END")
    a(f"v_mov_b32 v30, {CAND}")
    a("ds_read_b128 v[32:35], v30")
    a("ds_read_b128 v[36:39], v30 offset:16")
    a("s_xor_b32 s12, s3, 4")
    a("s_lshl_b32 s8, s12, 12")
    a("s_lshl_b32 s9, s2, 6")
    a("s_add_u32 s8, s8, s9")
    a(f"s_add_u32 s8, s8, {WS_R}")
    a(f"v_mul_u32_u24 v30, {RP}, v3")
    a("v_lshl_add_u32 v30, v4, 4, v30")
    a("v_add_u32 v30, s8, v30")
    a("s_lshl_b32 s8, s12, 8")
    a("s_and_b32 s9, s2, 15")
    a("s_lshl_b32 s9, s9, 4")
    a("s_add_u32 s8, s8, s9")
    a("s_lshr_b32 s9, s2, 4")
    a("s_add_u32 s8, s8, s9")
    a("v_lshl_add_u32 v31, v4, 2, s8")
    a("v_mul_u32_u24 v31, 1152, v31")
    a("s_mov_b64 s[72:73], -1")
    a("s_waitcnt lgkmcnt(0)")
    for i in range(8):
        a(f"v_cmp_ne_u32 vcc, v31, v{32+i}")
        a("s_and_b64 s[72:73], s[72:73], vcc")
    a("v_lshl_add_u32 v31, v3, 3, v31")
    a(f"s_cmp_lt_u32 s12, {env('RH', 2)}")
    a("s_cbranch_scc1 RL_GO")
    if env("RBAR", 1):
        a("s_cmp_lg_u32 s3, 3")
        a("s_cbranch_scc1 RL_B")
    a("s_lshl_b32 s8, s4, 7")
    a("v_mov_b32 v40, s8")
    a("s_mov_b32 s9, 0")
    a.lab("RL_H")
    a("s_sleep 2")
    a(f"global_load_dword v41, v40, {sr(P_WS,2)} offset:{WS_HINT+env('RHW', 1)*4} sc1")
    a("s_add_u32 s9, s9, 1")
    a("s_waitcnt vmcnt(0)")
    a("v_cmp_ne_u32 vcc, v41, v14")
    a(f"s_cmp_ge_u32 s9, {env('RHN', 64)}")
    a("s_cbranch_scc1 RL_B")
    a("s_cbranch_vccnz RL_H")
    a.lab("RL_B")
    if env("RBAR", 1):
        a("s_barrier")
    a.lab("RL_GO")
    if env("CLEAN", 0):
        n = env("CLEAN", 0)
        a("s_lshr_b32 s8, s2, 3")
        a("s_lshl_b32 s8, s8, 3")
        a("s_add_u32 s8, s8, s3")
        a(f"s_mul_i32 s8, s8, {8*n*1152}")
        a("s_lshl_b32 s9, s4, 7")
        a("s_add_u32 s8, s8, s9")
        a("v_lshrrev_b32 v48, 3, v2")
        a("v_mul_u32_u24 v48, 1152, v48")
        a("v_and_b32 v49, 7, v2")
        a("v_lshl_add_u32 v48, v49, 4, v48")
        a("v_add_u32 v48, s8, v48")
        a("v_mov_b32 v49, v48")
        for k in range(n):
            a(f"global_load_dwordx4 {vr(52+4*k,4)}, v48, {sr(P_OUT,2)} sc1")
            a(f"v_add_u32 v48, {8*1152}, v48")
        a("s_waitcnt vmcnt(0)")
        for k in range(n):
            a(f"global_store_dwordx4 v49, {vr(52+4*k,4)}, {sr(P_OUT,2)} sc1")
            a(f"v_add_u32 v49, {8*1152}, v49")
    a("s_mov_b32 s9, 0")
    a.lab("RL_P")
    a(f"global_load_dwordx4 v[44:47], v30, {sr(P_WS,2)} sc1")
    a("s_add_u32 s9, s9, 1")
    a("s_waitcnt vmcnt(0)")
    a("v_xor_b32 v41, v44, v14")
    a("v_bitop3_b32 v41, v41, v45, v14 bitop3:0xf6")
    a("v_cmp_ne_u32 vcc, 0, v41")
    a(f"s_cmp_ge_u32 s9, {SPIN}")
    a("s_cbranch_scc1 RL_X")
    a("s_cbranch_vccz RL_X")
    a("s_mov_b64 exec, vcc")
    a(f"s_sleep {env('RSL', 3)}")
    a("s_branch RL_P")
    a.lab("RL_X")
    a("s_mov_b64 exec, s[72:73]")
    a("s_cbranch_execz W_END")
    a(f"global_store_dwordx2 v31, v[46:47], {sr(P_OUT,2)} offset:1024 {os.environ.get('RFL', '')}")
    a.stamp(5)
    a.end()
    if env("FST", 0):
        del a.stamp


def selector(a):
    a.lab("SEL_MAIN")
    a("v_min_u32 v19, 8, v2")
    a("v_lshlrev_b32 v19, 7, v19")
    a("v_lshlrev_b32 v20, 2, v2")
    PA, K0, IX, CS, CR, T0, T1, L0, C0 = 24, 28, 32, 25, 26, 36, 37, 40, 44
    gran_addr(a, PA, T0, T1)
    a(f"s_mul_i32 s8, s3, {16*KP}")
    a(f"v_add_u32 v{PA}, s8, v{PA}")
    a("s_cmp_eq_u32 s3, 7")
    a("s_cselect_b64 vcc, -1, 0")
    a(f"v_cndmask_b32 v{PA}, v{PA}, v{T0}, vcc")
    a(f"v_add_u32 v{PA}, {WS_KEY}, v{PA}")
    a("s_lshl_b32 s8, s3, 8")
    a("s_sub_u32 s8, 0xfff, s8")
    a(f"v_sub_u32 v{IX}, s8, v20")
    for i in range(1, 4):
        a(f"v_subrev_u32 v{IX+i}, {i}, v{IX}")
    a(f"v_mov_b32 v21, {M3}")
    a("s_lshl_b32 s8, s3, 5")
    a(f"s_add_u32 s8, s8, {CAND}")
    a(f"v_lshl_add_u32 v{CS}, v4, 3, s8")
    a("s_mov_b32 s74, 0x01010101")
    a("s_mov_b32 s75, 0x01010101")
    a("s_lshl_b32 s9, s4, 10")
    a(f"s_add_u32 s9, s9, {WS_REP}")
    a("v_lshl_add_u32 v53, v2, 4, s9")
    a(f"global_load_dword v54, v53, {sr(P_WS,2)} sc1")
    a("v_lshrrev_b32 v52, 3, v2")
    a("v_lshl_add_u32 v52, v52, 6, s9")
    CO = 27
    a(f"v_and_b32 v{CO}, 28, v20")
    a(f"v_add_u32 v{CO}, s8, v{CO}")
    a(f"v_add_u32 v{CR}, {CAND}, v20")
    a("s_mov_b32 s76, 0xffff")
    a("s_mov_b32 s10, 0x00010001")
    a("s_mov_b32 s11, 0x00010001")
    touch(a, "S")
    a("s_barrier")
    a("ds_read_b32 v14, v21 offset:4")
    a.stamp(1)
    a("s_mov_b32 s7, 0")
    a("s_waitcnt lgkmcnt(0)")
    if PW >= 0:
        a(f"s_waitcnt vmcnt({PW})")
    if env("NOK", 0) & 2:
        a("s_branch F_GOT")
    a.lab("F_POLL")
    a(f"global_load_dwordx4 {vr(K0,4)}, v{PA}, {sr(P_WS,2)} sc1")
    a("s_add_u32 s7, s7, 1")
    a("s_waitcnt vmcnt(0)")
    a(f"v_xor_b32 v{T0}, v{K0}, v14")
    for i in range(1, 4):
        a(f"v_bitop3_b32 v{T0}, v{T0}, v{K0+i}, v14 bitop3:0xf6")
    a(f"v_and_b32 v{T0}, 0xffff, v{T0}")
    a(f"v_cmp_ne_u32 vcc, 0, v{T0}")
    a(f"s_cmp_ge_u32 s7, {SPIN}")
    a("s_cbranch_scc1 F_GOT")
    a("s_branch F_GOT" if env("NOK", 0) else "s_cbranch_vccz F_GOT")
    a("s_mov_b64 exec, vcc")
    if PSL:
        a(f"s_sleep {PSL}")
    a("s_branch F_POLL")
    a.lab("F_GOT")
    a("s_mov_b64 exec, -1")
    if env("GPF", 1):
        a(f"global_load_dword v56, v{PA}, {sr(P_WS,2)} offset:128 sc1")
    a.stamp(2)
    for i in range(4):
        a(f"v_bfi_b32 v{K0+i}, s76, v{IX+i}, v{K0+i}")
    a(f"v_max_u32 v{T0}, v{K0}, v{K0+1}")
    a(f"v_min_u32 v{T1}, v{K0}, v{K0+1}")
    a(f"v_max3_u32 v{L0}, v{T0}, v{K0+2}, v{K0+3}")
    a(f"v_med3_u32 v{L0+1}, v{T0}, v{K0+2}, v{K0+3}")
    a(f"v_med3_u32 v{L0+2}, v{T1}, v{K0+2}, v{K0+3}")
    a(f"v_max_u32 v{L0+1}, v{L0+1}, v{T1}")
    a(f"v_min_u32 v{L0+2}, v{L0+2}, v{T0}")
    for r in range(3):
        c = C0 + r
        a(f"v_max_u32_dpp v{c}, v{L0}, v{L0} row_ror:8 {DPPF}")
        for k in (4, 2, 1):
            a.nop(2)
            a(f"v_max_u32_dpp v{c}, v{c}, v{c} row_ror:{k} {DPPF}")
        if r < 2:
            a(f"v_cmp_eq_u32 vcc, v{L0}, v{c}")
            a.nop(2)
            a(f"v_cndmask_b32 v{L0}, v{L0}, v{L0+1}, vcc")
            if r == 0:
                a(f"v_cndmask_b32 v{L0+1}, v{L0+1}, v{L0+2}, vcc")
                a.nop(1)
            else:
                a.nop(2)
    a("s_mov_b64 exec, s[10:11]")
    a(f"ds_write_b64 v{CS}, {vr(C0,2)}")
    a(f"ds_max_u32 v21, v{C0+2}")
    a("s_mov_b64 exec, -1")
    cand = [77, 78, 79, 80, 81, 82, 83, 100]
    for i in range(8):
        a(f"v_readlane_b32 s{cand[i]}, v{C0+(i&1)}, {16*(i>>1)}")
    a(f"ds_read_b32 v48, v{CO}")
    a("v_mov_b32 v49, v14")
    a("s_lshl_b32 s72, s4, 8")
    a("s_lshl_b32 s73, s4, 10")
    a(f"s_add_u32 s73, s73, {WS_SELB}")
    a("s_waitcnt lgkmcnt(0)")
    a("s_barrier")
    a.stamp(7)
    a(f"ds_read_b32 v{T0}, v{CR}")
    a(f"ds_read_b32 v{T1}, v21")
    a("v_not_b32 v50, v48")
    a("v_and_b32 v50, 0x7ff, v50")
    a("v_mul_u32_u24 v50, 1152, v50")
    a("s_waitcnt lgkmcnt(0)")
    a(f"v_cmp_gt_u32 vcc, v{T0}, v{T1}")
    pairs = [18, 20, 22, 24, 26, 28, 30, 34]
    for i in range(8):
        a(f"v_cmp_lt_u32 {sr(pairs[i],2)}, s{cand[i]}, v{T0}")
    a("s_bcnt1_i32_b64 s8, vcc")
    a("s_mov_b64 s[80:81], 0")
    a("s_cmp_lt_u32 s8, 8")
    if not env("NOK", 0):
        a("s_cbranch_scc1 F_SLOW")
    for i in range(8):
        a(f"s_bcnt1_i32_b64 s{pairs[i]}, {sr(pairs[i],2)}")
        a(f"s_lshl_b64 exec, s[74:75], {i}")
        a(f"v_mov_b32 v{T1}, s{pairs[i]}")
    a("s_mov_b64 exec, -1")
    a(f"v_cmp_gt_u32 vcc, 8, v{T1}")
    a(f"v_lshl_add_u32 v52, v{T1}, 3, v52")
    a(f"v_lshl_add_u32 v55, v{T1}, 7, s73")
    a(f"v_lshl_add_u32 v{T1}, v{T1}, 3, s72")
    a("s_and_b64 exec, vcc, exec")
    a("s_cbranch_execz F_REST")
    a(f"global_store_dwordx2 v52, v[48:49], {sr(P_WS,2)}")
    a(f"global_store_dwordx2 v52, v[48:49], {sr(P_WS,2)} offset:512")
    a("s_and_b64 exec, vcc, 0xff")
    a(f"global_store_dwordx2 v{T1}, v[48:49], {sr(P_WS,2)} offset:{WS_SEL}")
    a.stamp(4)
    for k in range(9):
        a(f"global_load_dword v51, v50, {sr(P_U,2)} offset:{128*k}")
    if env("BLATE", 0):
        a("s_mov_b64 s[80:81], exec")
    else:
        a(f"global_store_dwordx2 v55, v[48:49], {sr(P_WS,2)} sc1")
    a.lab("F_REST")
    a("s_mov_b64 exec, -1")
    a("s_branch DN_L2")
    a.lab("F_SLOW")
    KY, TK = 28, 60
    gran_addr(a, 24, 26, 27)
    a(f"v_add_u32 v24, {WS_KEY}, v24")
    a(f"v_add_u32 v26, {WS_KEY}, v26")
    for k in range(8):
        a(f"global_load_dwordx4 {vr(KY+4*k,4)}, v{24 if k < 7 else 26}, {sr(P_WS,2)} sc1")
        a(f"v_add_u32 v24, {16*KP}, v24")
    a("v_sub_u32 v24, 0xfff, v20")
    a("s_waitcnt vmcnt(0)")
    for k in range(32):
        a(f"v_subrev_u32 v25, {256*(k>>2)+(k&3)}, v24")
        a(f"v_bfi_b32 v{KY+k}, s76, v25, v{KY+k}")
    a("s_mov_b32 s77, 0")
    a("s_mov_b32 s7, 0")
    a.lab("F_SLOOP")
    for j in range(32):
        a(f"v_subrev_u32 v{TK+j}, s77, v{KY+j}")
    a(f"v_max_u32 v{TK}, v{TK}, v{TK+1}")
    for j in range(15):
        a(f"v_max3_u32 v{TK}, v{TK}, v{TK+2+2*j}, v{TK+3+2*j}")
    for m in ("row_shr:1 " + DPPF, "row_shr:2 " + DPPF, "row_shr:4 " + DPPF, "row_shr:8 " + DPPF,
              "row_bcast:15 row_mask:0xa bank_mask:0xf", "row_bcast:31 row_mask:0xc bank_mask:0xf"):
        a.nop(2)
        a(f"v_max_u32_dpp v{TK}, v{TK}, v{TK} {m}")
    a.nop(1)
    a(f"v_readlane_b32 s8, v{TK}, 63")
    a("s_add_u32 s77, s77, s8")
    a("s_add_u32 s7, s7, 1")
    a("s_cmp_le_u32 s7, s3")
    a("s_cbranch_scc1 F_SLOOP")
    a("s_mov_b64 exec, 1")
    a("v_mov_b32 v48, s77")
    a("v_mov_b32 v49, v14")
    a("s_lshl_b32 s8, s3, 3")
    a("s_add_u32 s8, s8, s72")
    a("v_mov_b32 v50, s8")
    a(f"global_store_dwordx2 v50, v[48:49], {sr(P_WS,2)} offset:{WS_SEL}")
    a("s_lshl_b32 s8, s3, 7")
    a("s_add_u32 s8, s8, s73")
    a("v_mov_b32 v50, s8")
    a(f"global_store_dwordx2 v50, v[48:49], {sr(P_WS,2)} sc1")
    a("s_branch F_REST")


def ck_pro(a):
    a.lab("CK_PRO")
    a("s_and_b32 s7, s3, 3")
    a("s_lshr_b32 s12, s3, 2")
    a("s_lshl_b32 s8, s6, 2")
    a("s_add_u32 s8, s8, s7")
    a("s_lshl_b32 s9, s8, 8")
    a("v_lshl_add_u32 v6, v2, 2, s9")
    a("s_lshl_b32 s8, s8, 1")
    a("v_mov_b32 v7, s8")
    a("v_mov_b32 v18, 0")
    a("s_waitcnt lgkmcnt(0)")
    a(f"global_load_short_d16_hi v18, v7, {sr(P_LDT,2)}")
    for k in range(6):
        a(f"global_load_dword v{28+k}, v6, {sr(P_ARE+2*k,2)}")
    if env("PST", 0):
        a.stamp(3)
    a("s_barrier")
    if env("PST", 0):
        a.stamp(4)
    a("s_branch CK_MAIN")


def cmul(a, d, x, y, t):
    a(f"v_pk_mul_f32 {vr(t,2)}, {vr(x,2)}, {vr(y,2)} op_sel:[1,1] op_sel_hi:[1,0]")
    a(f"v_pk_fma_f32 {vr(d,2)}, {vr(x,2)}, {vr(y,2)}, {vr(t,2)} op_sel:[0,0,0] op_sel_hi:[0,1,1] neg_lo:[0,0,1]")


ZC = 140


def zconst(a):
    S, H = 76, 80
    a("v_lshlrev_b32 v74, 3, v4")
    a("v_sub_u32 v74, v74, v3")
    a("v_and_b32 v74, 0xffff, v74")
    a("v_lshl_or_b32 v74, v74, 16, v74")
    a("v_mov_b32 v75, 0x3f803f80")
    a("s_mul_i32 s8, s7, 0x20002")
    a("s_add_u32 s8, s8, 0xfff0fff1")
    a(f"v_pk_add_u16 v{S}, v74, s8")
    th = (3, 4, 5, 6, 11, 12, 13)
    for i, t in enumerate(th):
        a(f"v_pk_add_u16 v{H+i}, v{S}, {t-1} op_sel_hi:[1,0]")
        a(f"v_pk_ashrrev_i16 v{H+i}, 15, v{H+i} op_sel_hi:[0,1]")
    a("s_lshl_b32 s8, s7, 2")
    a(f"s_add_u32 s8, s8, {ZM}")
    a("v_lshl_add_u32 v74, v2, 4, s8")
    for m, (lo, hi) in enumerate(((3, 6), (6, 11), (5, 12), (4, 13), (3, 5))):
        x, y = H + th.index(lo), H + th.index(hi)
        if m < 4:
            a(f"v_bitop3_b32 v{H+8+m}, v{x}, v{y}, v75 bitop3:0x28")
        else:
            a(f"v_xor_b32 v{H+8+m}, v{x}, v{y}")
        a(f"ds_write_b32 v74, v{H+8+m} offset:{1024*m}")


def ck_main(a):
    a.lab("CK_MAIN")
    if env("PST", 0):
        a.stamp(5)
    a(f"s_mul_i32 s13, s7, {CHP}")
    a(f"s_add_u32 s13, s13, {CH0}")
    a("s_lshr_b32 s14, s7, 1")
    a(f"s_mul_i32 s14, s14, {STG2}")
    a("s_and_b32 s8, s7, 1")
    a("s_lshl_b32 s8, s8, 9")
    a("s_add_u32 s14, s14, s8")
    a("s_lshl_b32 s8, s12, 8")
    a("s_add_u32 m0, s14, s8")
    for j in range(4):
        a(f"v_mov_b32 v{124+j}, 0")
    a("s_lshl_b32 s8, s12, 11")
    a("s_add_u32 s8, s8, s13")
    a("v_lshl_add_u32 v20, v2, 4, s8")
    a("ds_write_b128 v20, v[124:127]")
    a("ds_write_b128 v20, v[124:127] offset:1024")
    a(f"v_mul_u32_u24 v128, {TSP}, v3")
    a("v_lshl_add_u32 v128, v4, 4, v128")
    a("v_add_u32 v128, s14, v128")
    a("s_lshl_b32 s8, s3, 2")
    a(f"s_add_u32 s9, s8, {SYN+32}")
    a("v_mov_b32 v129, s9")
    a("s_xor_b32 s8, s8, 16")
    a(f"s_add_u32 s9, s8, {SYN+32}")
    a("v_mov_b32 v130, s9")
    a("v_mov_b32 v21, 0x3c00")
    a(f"ds_write_addtid_b32 v21 offset:{41*TSP}")
    a(f"v_mov_b32 v22, {L2E:#x}")
    a(f"v_mov_b32 v23, {L2E_LO:#x}")
    a(f"v_mov_b32 v24, {L2E:#x}")
    a(f"v_mov_b32 v25, {INV2PI:#x}")
    a("s_mov_b32 s15, 0x7fff7fff")
    a("s_cmp_eq_u32 s12, 0")
    a("s_mov_b32 s73, 0x01000c0c")
    a("s_cselect_b32 s73, s73, 0x03020c0c")
    a("s_waitcnt vmcnt(6)")
    a("v_mul_f32 v19, v18, v22")
    a("v_fma_f32 v22, v18, v22, -v19")
    a("v_exp_f32 v19, v19")
    a("v_fma_f32 v22, v18, v23, v22")
    a(f"v_mul_f32 v22, {LN2:#x}, v22")
    a("v_fma_f32 v19, v19, v22, v19")
    a("v_cvt_pk_bf16_f32 v19, v19, v19")
    a("v_and_b32 v18, 0xffff0000, v19")
    a("v_pk_mul_f32 v[24:25], v[24:25], v[18:19] op_sel_hi:[1,0]")
    a("s_waitcnt vmcnt(0)")
    a.stamp(1)
    X, W, E1, Q, R, QC, T1, T2 = 40, 56, 58, 60, 62, 64, 66, 68
    Z = 8
    for k in range(4):
        a(f"v_and_b32 v{14+k}, s15, v{30+k}")
    for k in range(6):
        a(f"v_perm_b32 v{8+k}, v{28+k}, v{28+k}, s73")
    a("v_pk_max_u16 v14, v14, v15")
    a("v_pk_max_u16 v16, v16, v17")
    a("v_lshlrev_b32 v15, 16, v14")
    a("v_lshlrev_b32 v17, 16, v16")
    a("v_pk_mul_f32 v[14:15], v[14:15], v[16:17]")
    a(f"v_pk_mul_f32 {vr(Z,2)}, {vr(Z,2)}, v[24:25]")
    a("v_max_f32 v14, v14, v15")
    a("v_pk_mul_f32 v[10:11], v[10:11], v[18:19] op_sel_hi:[1,0]")
    a("v_mul_f32 v14, v14, v18")
    dpp = ["row_shr:1 " + DPPF, "row_shr:2 " + DPPF, "row_shr:4 " + DPPF, "row_shr:8 " + DPPF,
           "row_bcast:15 row_mask:0xa bank_mask:0xf", "row_bcast:31 row_mask:0xc bank_mask:0xf"]
    fill = []
    b = Asm()
    cmul(b, W, 12, 10, T1)
    b(f"v_mul_f32 v{Q}, {fbits(8):#x}, v{Z}")
    b(f"v_mul_f32 v{Q+1}, {fbits(-8):#x}, v{Z+1}")
    b(f"v_mul_f32 v{R}, {fbits(128):#x}, v{Z}")
    b(f"v_mul_f32 v{R+1}, {fbits(128):#x}, v{Z+1}")
    b(f"v_fract_f32 v{E1+1}, v{Z+1}")
    b(f"v_fract_f32 v{Q+1}, v{Q+1}")
    b(f"v_fract_f32 v{R+1}, v{R+1}")
    b(f"v_exp_f32 v20, v{Z}")
    b(f"v_exp_f32 v22, v{Q}")
    b(f"v_exp_f32 v26, v{R}")
    for r_ in (Q, E1, R):
        b(f"v_cos_f32 v{r_}, v{r_+1}")
        b(f"v_sin_f32 v{r_+1}, v{r_+1}")
    fill = b.L
    fi = 0
    for m in dpp:
        a.L += fill[fi:fi + 2]
        fi += 2
        a(f"v_max_u32_dpp v14, v14, v14 {m}")
    a.L += fill[fi:fi + 1]
    fi += 1
    a("v_readlane_b32 s8, v14, 63")
    a.L += fill[fi:]
    a("s_lshr_b32 s8, s8, 23")
    a("s_sub_i32 s8, 258, s8")
    a("s_max_i32 s8, s8, 1")
    a("s_min_i32 s8, s8, 253")
    a("s_lshl_b32 s10, s8, 23")
    a(f"v_pk_mul_f32 {vr(Q,2)}, {vr(Q,2)}, v[22:23] op_sel_hi:[1,0]")
    a(f"v_pk_mul_f32 {vr(E1,2)}, {vr(E1,2)}, v[20:21] op_sel_hi:[1,0]")
    a(f"v_pk_mul_f32 {vr(R,2)}, {vr(R,2)}, v[26:27] op_sel_hi:[1,0]")
    a(f"v_pk_mul_f32 {vr(W,2)}, {vr(W,2)}, s[10:11] op_sel_hi:[1,0]")
    cnt = [0]

    def emit(row, x):
        o = 70 + cnt[0] % 4
        cnt[0] += 1
        a(f"v_cvt_pk_f16_f32 v{o}, v{x}, v{x+1}")
        if env("KSKIP", 0) != 2:
            a(f"ds_write_addtid_b32 v{o} offset:{row*TSP}")

    xc = lambda c: X + 2 * (c - 1)
    if env("KSKIP", 0) == 1:
        a("s_branch CK_SKIP")
    emit(42, Q)
    emit(40, W)
    for c in range(1, 9):
        cmul(a, xc(c), W if c == 1 else xc(c - 1), E1, T1)
        emit(c - 1, xc(c))
    for c in range(1, 9):
        cmul(a, xc(c), xc(c), R, T1)
        emit(8 + c - 1, xc(c))
    for aa in (2, 3):
        for c in (2, 4, 6, 8):
            cmul(a, xc(c), xc(c), R, T1)
            emit(16 + 4 * (aa - 2) + c // 2 - 1, xc(c))
    for aa in range(4, 8):
        for c in (4, 8):
            cmul(a, xc(c), xc(c), R, T1)
            emit(24 + 2 * (aa - 4) + c // 4 - 1, xc(c))
    for aa in range(8, 16):
        cmul(a, xc(8), xc(8), R, T1)
        emit(32 + aa - 8, xc(8))
    for bb in range(2, 16):
        cmul(a, QC, Q if bb == 2 else QC, Q, T1)
        emit(41 + bb, QC)
    a.lab("CK_SKIP")
    a.stamp(2)
    a("ds_write_b32 v129, v129")
    a("s_mov_b32 s9, 0")
    a.lab("CK_PAIR")
    a("ds_read_b32 v8, v130")
    a("s_add_u32 s9, s9, 1")
    a("s_waitcnt lgkmcnt(0)")
    a("v_cmp_eq_u32 vcc, 0, v8")
    a("s_cmp_ge_u32 s9, 0x40000")
    a("s_cbranch_scc1 CK_PAIRED")
    a("s_cbranch_vccnz CK_PAIR")
    a.lab("CK_PAIRED")
    a.stamp(7)
    CF, RF, RF2, AC = 8, 40, 72, 104
    a("s_sub_u32 s8, 254, s8")
    a("s_lshl_b32 s15, s8, 23")
    a("s_cmp_eq_u32 s12, 0")
    a("s_cbranch_scc0 CK_T1")
    for q in range(8):
        a(f"ds_read_b128 {vr(CF+4*q,4)}, v128 offset:{41*TSP+64*q}")
        a(f"ds_read_b128 {vr(RF+4*q,4)}, v128 offset:{64*q}")
    a("v_lshrrev_b32 v114, 1, v4")
    a("v_lshlrev_b32 v114, 8, v114")
    a("v_lshl_add_u32 v114, v3, 4, v114")
    a("v_and_b32 v115, 1, v4")
    a("v_lshl_add_u32 v114, v115, 3, v114")
    a("v_add_u32 v114, s13, v114")
    a("v_lshlrev_b32 v115, 5, v3")
    a("v_lshl_add_u32 v115, v4, 3, v115")
    a("v_add_u32 v115, s13, v115")
    a("v_mov_b32 v116, s13")
    for q in range(8):
        a(f"s_waitcnt lgkmcnt({min(15, 14-2*q+q)})")
        a(f"v_mfma_f32_16x16x32_f16 {vr(AC,4)}, {vr(RF+4*q,4)}, {vr(CF+4*q,4)}, {'0' if q == 0 else vr(AC,4)}")
        a(f"ds_read_b128 {vr(RF2+4*q,4)}, v128 offset:{32*TSP+64*q}")
    for q in range(8):
        a(f"s_waitcnt lgkmcnt({7-q})")
        a(f"v_mfma_f32_16x16x32_f16 {vr(AC+4,4)}, {vr(CF+4*q,4)}, {vr(RF2+4*q,4)}, {'0' if q == 0 else vr(AC+4,4)}")
    for j in range(4):
        a(f"v_mul_f32 v{AC+j}, s15, v{AC+j}")
    a(f"v_cvt_pk_bf16_f32 v118, v{AC}, v{AC+1}")
    a(f"v_cvt_pk_bf16_f32 v119, v{AC+2}, v{AC+3}")
    a(f"v_cvt_pk_bf16_f32 v120, v{AC+1}, v{AC+2}")
    a(f"v_cvt_pk_bf16_f32 v121, v{AC+3}, v{AC+3}")
    a(f"ds_write_b16 v114, v121 offset:{TO+4*(7+3)}")
    a(f"ds_write_b64 v114, v[120:121] offset:{TE+4*(7+1)}")
    a(f"ds_write_b64 v114, v[118:119] offset:{TO+4*(7+1)}")
    a(f"ds_write_b16 v114, v118 offset:{TE+4*7+2}")
    for j in range(4, 8):
        a(f"v_mul_f32 v{AC+j}, s15, v{AC+j}")
    a(f"v_cvt_pk_bf16_f32 v118, v{AC+4}, v{AC+5}")
    a(f"v_cvt_pk_bf16_f32 v119, v{AC+6}, v{AC+7}")
    a("s_mov_b32 s10, 0x00ff00ff")
    a("s_mov_b32 s11, 0x00ff00ff")
    a("s_mov_b64 exec, s[10:11]")
    a(f"ds_write_b64 v115, v[118:119] offset:{TS3+64}")
    a("s_mov_b64 exec, 0x100")
    a(f"ds_write_b16 v116, v118 offset:{TE+4*7}")
    a(f"ds_write_b16 v116, v118 offset:{TO+4*7+2}")
    a("s_mov_b64 exec, -1")
    a.stamp(6)
    d_wave(a)
    a.lab("CK_T1")
    for q in range(8):
        a(f"ds_read_b128 {vr(CF+4*q,4)}, v128 offset:{41*TSP+64*q}")
        a(f"ds_read_b128 {vr(RF+4*q,4)}, v128 offset:{16*TSP+64*q}")
    a("v_lshlrev_b32 v114, 8, v4")
    a("v_lshl_add_u32 v114, v3, 4, v114")
    a("v_add_u32 v114, s13, v114")
    a("v_lshlrev_b32 v115, 7, v4")
    a("v_lshl_add_u32 v115, v3, 2, v115")
    a("v_add_u32 v115, s13, v115")
    for q in range(8):
        a(f"s_waitcnt lgkmcnt({14-2*q})")
        a(f"v_mfma_f32_16x16x32_f16 {vr(AC,4)}, {vr(RF+4*q,4)}, {vr(CF+4*q,4)}, {'0' if q == 0 else vr(AC,4)}")
    a.nop(8)
    for j in range(4):
        a(f"v_mul_f32 v{AC+j}, s15, v{AC+j}")
    a(f"v_cvt_pk_bf16_f32 v116, v{AC}, v{AC+1}")
    a(f"v_cvt_pk_bf16_f32 v117, v{AC+1}, v{AC+1}")
    a(f"v_cvt_pk_bf16_f32 v118, v{AC+2}, v{AC+3}")
    a(f"v_cvt_pk_bf16_f32 v119, v{AC+3}, v{AC+3}")
    a(f"v_cvt_pk_bf16_f32 v120, v{AC+1}, v{AC+2}")
    a("s_mov_b32 exec_hi, 0")
    a(f"ds_write_b16 v114, v119 offset:{TE+512+4*(7+5)}")
    a(f"v_add_u32 v121, {TO+512}, v114")
    a(f"ds_write_b128 v114, v[116:119] offset:{TE+512+4*(7+1)}")
    a(f"ds_write2_b32 v121, v119, v119 offset0:{7+4} offset1:{7+5}")
    a(f"ds_write2_b32 v121, v117, v120 offset0:{7+2} offset1:{7+3}")
    a(f"ds_write_b16 v121, v116 offset:{4*(7+1)+2}")
    a("s_not_b64 exec, exec")
    a(f"ds_write_b32 v115, v116 offset:{TS2+128-256}")
    a(f"ds_write_b32 v115, v118 offset:{TS2+128-256+64}")
    a("s_mov_b64 exec, -1")
    z_wave(a)


def pf_item(a, sm, tag):
    ng = 9 - CR0
    a(f"s_cmp_ge_u32 s{sm}, {ng}")
    a(f"s_cbranch_scc1 CPF_D{tag}")
    a(f"s_mul_i32 s14, s{sm}, 18")
    a("s_add_u32 s14, s14, s101")
    a("v_mul_u32_u24 v140, 9216, v2")
    a("s_mul_i32 s8, s4, 1152")
    a("v_add_u32 v140, s8, v140")
    pf_gu(a, 14, CR0, 140, 148)
    a(f"s_branch CPF_X{tag}")
    a.lab(f"CPF_D{tag}")
    a(f"s_sub_u32 s14, s{sm}, {ng}")
    a("s_mul_i32 s14, s14, 18")
    a("s_add_u32 s14, s14, s101")
    a("s_min_u32 s14, s14, 80")
    a("s_mul_i32 s8, s4, 81")
    a("s_add_u32 s8, s8, 80")
    a("s_sub_u32 s8, s8, s14")
    a("s_lshl_b32 s8, s8, 13")
    a("v_lshl_add_u32 v148, v2, 7, s8")
    a(f"global_load_dword v149, v148, {sr(P_WD,2)} {PFL}")
    a.lab(f"CPF_X{tag}")


def c3_item(a, sq):
    a("s_sub_u32 s14, 3, s4")
    a("s_and_b32 s14, s14, 7")
    a(f"s_and_b32 s8, s{sq}, 1")
    a("s_lshl_b32 s8, s8, 3")
    a(f"s_lshr_b32 s9, s{sq}, 1")
    a("s_cmp_eq_u32 s4, 3")
    a("s_cselect_b32 s14, s8, s14")
    a(f"s_cselect_b32 s9, s9, s{sq}")
    a(f"s_add_u32 s9, s9, {env('C3H', 4)}")
    a("s_min_u32 s9, s9, 17")
    a("s_mul_i32 s9, s9, 9")
    a("s_add_u32 s14, s14, s9")
    a("v_mul_u32_u24 v140, 9216, v2")
    a("s_mul_i32 s8, s4, 1152")
    a("v_add_u32 v140, s8, v140")
    pf_gu(a, 14, 0, 140, 148)


def y_addr(a, v):
    a(f"v_mov_b32 v{v+3}, {SYN}")
    a(f"v_mov_b32 v{v+2}, 1")
    a("s_lshl_b32 s8, s7, 2")
    a(f"v_add_u32 v131, s8, v{v+3}")
    a("s_mov_b64 exec, 1")
    a(f"ds_add_u32 v131, v{v+2} offset:{CT}")
    a(f"ds_add_u32 v{v+3}, v{v+2} offset:{CK8}")
    a("s_mov_b64 exec, -1")
    a(f"v_mul_u32_u24 v{v}, 320, v4")
    a(f"v_lshl_add_u32 v{v}, v3, 4, v{v}")
    a(f"s_mul_i32 s8, s7, {YCH}")
    a(f"v_add_u32 v{v}, s8, v{v}")
    a("s_lshl_b32 s8, s3, 2")
    a(f"s_add_u32 s8, s8, {SYN+FLG}")
    a(f"v_mov_b32 v{v+1}, s8")


def d_wave(a):
    T, UR, AC = 8, 76, 108
    NR = 8
    y_addr(a, 124)
    a("v_and_b32 v5, 1, v3")
    a(f"v_mul_u32_u24 v5, {TO}, v5")
    a(f"v_sub_u32 v5, {TO+48}, v5")
    a("v_lshrrev_b32 v6, 1, v3")
    a("v_lshl_add_u32 v5, v6, 2, v5")
    a("v_lshlrev_b32 v6, 4, v4")
    a("v_sub_u32 v5, v5, v6")
    a("v_add_u32 v5, s13, v5")
    a("v_add_u32 v7, 576, v5")
    a("v_lshl_add_u32 v6, v3, 5, v6")
    a(f"v_add_u32 v6, {U0-480}, v6")
    a("v_add_u32 v6, s13, v6")
    spin(a, 131, CT, "ne", 2, 128, 9, sleep=0)
    for kp in (7, 6, 5, 4, 3, 2, 1, 0, 15, 14, 13, 12, 11, 10, 9, 8, 16):
        va, o = (5, 16 * kp) if kp < 9 else (7, 16 * (kp - 9))
        a(f"ds_read2_b32 {vr(T+4*kp,2)}, v{va} offset0:{o+3} offset1:{o+2}")
        a(f"ds_read2_b32 {vr(T+4*kp+2,2)}, v{va} offset0:{o+1} offset1:{o}")
    a.stamp(3)
    spin(a, 127, CK8, "ne", 12, 128, 9)
    a.lab("D_PASS")
    spin(a, 127, CCONV, "ne", 2, 128, 9, mask=15)
    a.stamp(4)
    a.lab("D_LOOP")
    if env("CLK", 0):
        a("s_memtime s[78:79]")
    AH = NR - 1
    started = set()
    for lo, hi in ((-7, 25), (25, 57)):
        q = []
        side = []
        nm = [0]

        def rd(b):
            a(f"ds_read_b128 {vr(UR+4*(b%NR),4)}, v6 offset:{64*(b+7)}")
            q.append(("r", b))
        if lo == 25:
            if env("CLK", 0):
                a("s_memtime s[80:81]")
                a("s_waitcnt lgkmcnt(0)")
                a("s_sub_u32 s80, s80, s78")
                a("s_add_u32 s98, s84, s80")
            if not env("KST", 0):
                a.stamp(1)
            spin(a, 127, CCONV, "ne", 34, 128, 9)
            if not env("KST", 0):
                a.stamp(2)
        for b in range(lo, lo + AH):
            rd(b)
        for beta in range(lo, hi):
            pos = q.index(("r", beta))
            a(f"s_waitcnt lgkmcnt({min(15, len(q)-1-pos)})")
            del q[:pos + 1]
            tiles = [A for A in range(8) if 0 <= 8 * A - beta <= 16]
            for k, A in enumerate(tiles):
                acc = vr(AC + 4 * (A % 4), 4)
                a(f"v_mfma_f32_16x16x32_bf16 {acc}, {vr(T+4*(8*A-beta),4)}, {vr(UR+4*(beta%NR),4)}, {acc if A in started else '0'}")
                started.add(A)
                nm[0] += 1
                if beta == 8 * A:
                    r = AC + 4 * (A % 4)
                    side += [(nm[0] + 6, f"ds_write_b64 v124, {vr(r,2)} offset:{1280*A}"),
                             (nm[0] + 6, f"ds_write_b64 v124, {vr(r+2,2)} offset:{1280*A+8}"),
                             (nm[0] + 6, f"ds_write_b32 v125, v126 offset:{32*A}")]
                if k == 0 and side and side[0][0] <= nm[0] and not env("NOSIDE", 0):
                    a(side.pop(0)[1])
                    q.append(("w", 0))
            if beta + AH < hi:
                rd(beta + AH)
        a.nop(8)
        for x in side:
            a(x[1])
    a.stamp(5)
    a("s_waitcnt lgkmcnt(0)")
    a.end()


def z_wave(a):
    S2F, S3F, WN, FO, AC = 8, 32, 48, 64, 100
    VS = ((88, 92, 96), (132, 136, 160))
    TB = ZC + 16
    y_addr(a, 164)
    a("v_lshlrev_b32 v5, 2, v4")
    a("v_sub_u32 v5, v3, v5")
    a("v_lshl_add_u32 v7, v5, 2, s13")
    a("v_lshl_add_u32 v5, v5, 3, s13")
    a(f"v_add_u32 v7, {TS3}, v7")
    a("v_mov_b32 v6, s13")
    spin(a, 131, CT, "ne", 2, 128, 9, sleep=1)
    a(f"ds_read_b32 v130, v6 offset:{TS2+128+252}")
    for D in (2, 3, 4):
        for h in range(2):
            for jj in range(2):
                a(f"ds_read_b64 {vr(S2F+8*(D-2)+4*h+2*jj,2)}, v5 offset:{TS2+8*(16*D-16-2*h-jj)}")
    for D in range(4, 8):
        o = 16 * D - 48
        a(f"ds_read2_b32 {vr(S3F+4*(D-4),2)}, v7 offset0:{o} offset1:{o-1}")
        a(f"ds_read2_b32 {vr(S3F+4*(D-4)+2,2)}, v7 offset0:{o-2} offset1:{o-3}")
    a("v_lshlrev_b32 v6, 4, v4")
    a("v_lshl_add_u32 v6, v3, 5, v6")
    a(f"v_add_u32 v6, {U0-48}, v6")
    a("v_add_u32 v6, s13, v6")
    a("v_lshlrev_b32 v5, 4, v2")
    a(f"v_add_u32 v5, {ZM}, v5")
    spin(a, 167, CK8, "ne", 12, 128, 9)
    for k in range(5):
        a(f"ds_read_b128 {vr(ZC+4*k,4)}, v5 offset:{1024*k}")
    a.lab("Z_PASS")
    for A in range(2):
        a(f"ds_write_b128 v164, v[124:127] offset:{1280*(8+A)}")
        a(f"ds_write_b32 v165, v166 offset:{32*A}")
    a("s_mov_b32 s8, 0x07060706")
    a.stamp(3)
    spin(a, 167, CCONV, "ne", 2, 128, 9, mask=15)
    a("v_perm_b32 v130, v130, v130, s8")
    if ZPRIO:
        a(f"s_setprio {ZPRIO}")
    a.stamp(4)
    w1 = lambda B: vr(WN + 8 * (B & 1), 4)
    w2 = lambda B: vr(WN + 8 * (B & 1) + 4, 4)

    def rdw(B):
        o = 512 * B
        a(f"ds_read_b128 {w1(B)}, v6 offset:{o+16}")
        a(f"ds_read_b128 {w2(B)}, v6 offset:{o}")

    def filters(B):
        L = []
        for i in range(6 if B < 4 else 4):
            w = w2(B) if i in (2, 3, 5) else w1(B)
            L.append(f"v_mfma_f32_16x16x32_bf16 {vr(FO+4*i,4)}, {w}, {vr(ZC+4*(0,1,0,1,2,3)[i],4)}, 0")
        return L

    def cvt(B):
        V = VS[B & 1]
        L = [f"v_cvt_pk_bf16_f32 v{V[j>>1]+2*(j&1)}, v{FO+j}, v{FO+4+j}" for j in range(4)]
        L += [f"v_cvt_pk_bf16_f32 v{V[j>>1]+2*(j&1)+1}, v{FO+8+j}, v{FO+12+j}" for j in range(4)]
        if B < 4:
            L += [f"v_cvt_pk_bf16_f32 v{V[2]+j}, v{FO+16+j}, v{FO+20+j}" for j in range(4)]
        return L

    started = set()

    def mm(A, x, y):
        acc = vr(AC + 4 * (A - 2), 4)
        r = f"v_mfma_f32_16x16x32_bf16 {acc}, {x}, {y}, {acc if A in started else '0'}"
        started.add(A)
        return r

    def mains(B):
        V = VS[B & 1]
        L = []
        if B < 4:
            L.append(mm(B + 4, vr(TB, 4), w1(B)))
        for D in (2, 3, 4):
            if B + D <= 7:
                for h in range(2):
                    L.append(mm(B + D, vr(V[h], 4), vr(S2F + 8 * (D - 2) + 4 * h, 4)))
        if B < 4:
            for D in range(4, 8 - B):
                L.append(mm(B + D, vr(V[2], 4), vr(S3F + 4 * (D - 4), 4)))
        return L

    def wr(A):
        r = AC + 4 * (A - 2)
        return [f"ds_write_b64 v164, {vr(r,2)} offset:{1280*(8+A)}", f"ds_write_b64 v164, {vr(r+2,2)} offset:{1280*(8+A)+8}",
                f"ds_write_b32 v165, v166 offset:{32*A}"]

    def weave(M, S, first, per):
        S = list(S)
        for i, m in enumerate(M):
            a(m)
            if i >= first:
                for x in S[:per]:
                    a(x)
                S = S[per:]
        return S

    a.lab("Z_LOOP")
    if env("ZDEL", 0):
        a("s_sleep 40")
    rdw(0); rdw(1)
    for j in range(4):
        a(f"v_and_b32 v{TB+j}, v130, v{TB+j}")
    a("s_waitcnt lgkmcnt(2)")
    for m in filters(0):
        a(m)
    a.nop(4)
    for c in cvt(0):
        a(c)
    pend = []
    for B in range(4):
        if B < 3:
            a("s_waitcnt lgkmcnt(0)")
            assert not weave(filters(B + 1), pend, 1, 1)
            M = mains(B)
            a(M[0])
            if B < 2:
                rdw(B + 2)
            for x in weave(M[1:], cvt(B + 1), 1 if B < 2 else 2, 2):
                a(x)
            pend = wr(B + 2)
        else:
            a.nop(2)
            assert not weave(mains(B), pend, 0, 1)
    if not env("KST", 0):
        a.stamp(1)
    spin(a, 167, CCONV, "ne", 34, 128, 9)
    if not env("KST", 0):
        a.stamp(2)
    a("s_cmp_lg_u32 s3, 4")
    a("s_cbranch_scc1 Z_NOSEL")
    sel_addr(a, 126, 1)
    a(f"global_load_dwordx2 v[124:125], v126, {sr(P_WS,2)} offset:{WS_SEL} sc1")
    a("s_lshl_b32 s9, s4, 7")
    a("v_mov_b32 v126, s9")
    a(f"global_load_dword v127, v126, {sr(P_WS,2)} offset:{WS_HINT} sc1")
    if env("PWARM", 0):
        a(f"s_mul_i32 s9, s6, {PS}")
        a(f"s_add_u32 s9, s9, {WS_PART}")
        a("v_lshl_add_u32 v126, v2, 4, s9")
        a(f"global_load_dword v127, v126, {sr(P_WS,2)} sc1")
    a.lab("Z_NOSEL")
    rdw(4); rdw(5)
    for x in wr(5):
        a(x)
    a("s_waitcnt lgkmcnt(5)")
    for m in filters(4):
        a(m)
    a.nop(6)
    for c in cvt(4):
        a(c)
    a("s_waitcnt lgkmcnt(3)")
    for m in filters(5) + mains(4):
        a(m)
    a.nop(2)
    for c in cvt(5):
        a(c)
    for x in wr(6)[:2]:
        a(x)
    for m in mains(5):
        a(m)
    a(wr(6)[2])
    a.nop(7)
    for x in wr(7):
        a(x)
    a.stamp(5)
    a("s_setprio 0")
    a("s_cmp_eq_u32 s3, 4")
    a("s_cbranch_scc1 FINAL")
    a("s_waitcnt lgkmcnt(0)")
    a.end()


UL, UX = 8, 24


def cu_pro(a):
    a.lab("CU_PRO")
    a("s_sub_u32 s7, s3, 8")
    a("s_lshl_b32 s8, s101, 2")
    a("s_add_u32 s8, s8, s7")
    a("s_mul_i32 s10, s8, 57")
    a("s_lshr_b32 s10, s10, 9")
    a("s_mul_i32 s11, s10, 9")
    a("s_sub_u32 s11, s8, s11")
    a("s_sub_u32 s8, s8, s10")
    a(f"s_mul_i32 s8, s8, {32*1152}")
    a("s_lshl_b32 s9, s4, 7")
    a("s_add_u32 s8, s8, s9")
    a("v_lshrrev_b32 v5, 1, v2")
    a("v_mul_u32_u24 v5, 1152, v5")
    a("v_and_b32 v6, 1, v2")
    if LINE:
        a("s_sub_u32 s9, 1024, s9")
        a("v_mad_u32_u24 v5, v6, s9, v5")
    else:
        a("v_lshl_add_u32 v5, v6, 7, v5")
    a("v_add_u32 v7, s8, v5")
    a("s_and_b32 s15, s7, 2")
    a("s_add_u32 s15, s15, s7")
    a(f"s_mul_i32 s8, s15, {256*1152}")
    a("s_lshl_b32 s9, s6, 3")
    a("s_add_u32 s8, s8, s9")
    a("v_mul_u32_u24 v5, 4608, v2")
    a("v_add_u32 v5, s8, v5")
    a(f"v_add_u32 v6, {512*1152}, v5")
    a("v_mov_b32 v58, 0")
    a("v_mov_b32 v59, 0")
    a(f"v_mov_b32 v57, {SYN}")
    a("v_lshl_add_u32 v56, v2, 3, v57")
    a("ds_write_b64 v56, v[58:59]")
    a("s_waitcnt lgkmcnt(0)")
    a("s_barrier")
    if env("XDEL", 0):
        a(f"s_sleep {env('XDEL', 0)}")
    if C3N:
        a("s_cmp_eq_u32 s7, 3")
        a("s_cbranch_scc1 CU_C3A")
        a.lab("CU_C3B")
    a(f"global_load_dword v60, v59, {sr(P_LDT,2)}")
    a(f"s_load_dwordx2 s[52:53], {sr(P_DSK,2)}, s9")
    a("s_branch CU_PRE")
    a.lab("CU_PREX")
    a("s_cmp_eq_u32 s11, 8")
    a("s_cbranch_scc1 CU_C3")
    a(f"global_load_dword v60, v7, {sr(P_U,2)} {PFL}")
    a.lab("CU_C3X")
    a(f"s_cmp_ge_u32 s7, {env('CHN', 2)}")
    a("s_cbranch_scc1 CU_MID")
    a.lab("CU_LD")
    if env("NOU", 0):
        a("v_mov_b32 v5, 0")
        a("v_mov_b32 v6, 0")
    if env("FAKEU", 0):
        a("s_cmp_ge_u32 s101, 16")
        a("s_cbranch_scc1 CU_REAL")
        a("s_waitcnt vmcnt(0)")
        a(f"s_sleep {env('FAKEU', 0)}")
        a("v_lshlrev_b32 v61, 3, v2")
        for k in range(8):
            a(f"global_load_dwordx2 {vr(UL+2*k,2)}, v61, {sr(P_WR,2)} offset:{64*k} sc1")
        a("s_branch CU_MAIN")
        a.lab("CU_REAL")
    for t in range(2):
        for i in range(4):
            a(f"global_load_dwordx2 {vr(UL+8*t+2*i,2)}, v{5+t}, {sr(P_U,2)} offset:{1152*i} {UFL}")
    a("s_branch CU_MAIN")


def cu_main(a):
    if C3N:
        a.lab("CU_C3A")
        a("s_cmp_eq_u32 s4, 3")
        a(f"s_cselect_b32 s8, 18, {C3N}")
        a("s_cmp_ge_u32 s101, s8")
        a("s_cbranch_scc1 CU_C3B")
        c3_item(a, 101)
        a("s_lshl_b32 s9, s6, 3")
        a("s_branch CU_C3B")
    a.lab("CU_C3")
    if env("C3", 1):
        a("s_cmp_eq_u32 s4, 3")
        a(f"s_cselect_b32 s8, 18, {C3N}")
        a("s_add_u32 s10, s10, s8")
        c3_item(a, 10)
        a("s_lshl_b32 s9, s6, 3")
    a("s_branch CU_C3X")
    a.lab("CU_MID")
    touch(a, "U")
    a("s_min_u32 s13, s7, 2")
    spin(a, 57, CISS, "gt", "s13", 56, 12, sleep=2)
    a("s_branch CU_LD")
    a.lab("CU_PRE")
    G, DS = 128, 154
    a("v_mov_b32 v139, 1")
    zconst(a)
    post(a, 57, CK8, 139)
    a("s_mov_b32 s72, s15")
    gran_addr(a, 158, 138, 137)
    a(f"s_mul_i32 s8, s15, {16*KP}")
    a(f"s_add_u32 s8, s8, {WS_G}")
    a("v_add_u32 v158, s8, v158")
    a(f"v_add_u32 v137, {96*KP}, v158")
    a(f"v_add_u32 v138, {WS_G}, v138")
    a("s_cmp_eq_u32 s7, 1")
    a("s_cselect_b64 vcc, -1, 0")
    a("v_cndmask_b32 v138, v137, v138, vcc")
    a("v_and_b32 v146, 3, v2")
    a("v_mul_u32_u24 v159, 320, v146")
    a("v_lshl_add_u32 v146, v146, 2, v57")
    a("v_lshrrev_b32 v136, 2, v2")
    a("v_lshl_add_u32 v159, v136, 4, v159")
    a("s_mul_i32 s8, s72, 1280")
    a("v_add_u32 v159, s8, v159")
    a(f"v_add_u32 v136, {2*YCH}, v159")
    a("v_and_b32 v141, 7, v2")
    a("s_lshl_b32 s8, s72, 5")
    a(f"s_add_u32 s8, s8, {SYN+FLG}")
    a("v_lshl_add_u32 v141, v141, 2, s8")
    a("s_lshl_b32 s8, s72, 10")
    a("v_lshl_add_u32 v147, v2, 4, s8")
    a("v_lshlrev_b32 v142, 1, v147")
    a(f"v_add_u32 v147, {GL}, v147")
    a(f"v_add_u32 v142, {XR}, v142")
    a("s_lshl_b32 s8, s72, 9")
    a(f"s_add_u32 s8, s8, {CH0+U0}")
    a("v_lshl_add_u32 v58, v2, 3, s8")
    a("s_mov_b32 s74, 0x05040100")
    a("s_mov_b32 s75, 0x07060302")
    a("s_cmp_lt_u32 s7, 2")
    a("s_cselect_b32 s8, 1, 16")
    a("v_mov_b32 v143, s8")
    a("s_waitcnt lgkmcnt(0)")
    a(f"v_lshlrev_b32 v{DS}, 16, s52")
    a(f"v_mov_b32 v{DS+1}, s52")
    a(f"v_lshlrev_b32 v{DS+2}, 16, s53")
    a(f"v_mov_b32 v{DS+3}, s53")
    a(f"v_and_b32 v{DS+1}, 0xffff0000, v{DS+1}")
    a(f"v_and_b32 v{DS+3}, 0xffff0000, v{DS+3}")
    for ch in range(4):
        a(f"v_add_f32 v{DS+ch}, -1.0, v{DS+ch}")
    if env("XW", 1):
        a("s_waitcnt vmcnt(0)")
    a("s_branch CU_PREX")
    a.lab("CU_MAIN")
    assert FUSE
    G2 = 160

    def gload():
        if env("NOG", 0) & 2:
            a(f"global_load_dwordx2 v[144:145], v59, {sr(P_DBG,2)} sc1")
            return
        a(f"global_load_dwordx2 v[144:145], v59, {sr(P_DBG,2)} sc1")
        a(f"global_load_dwordx4 {vr(G,4)}, v158, {sr(P_WS,2)} sc1")
        a(f"v_add_u32 v137, {32*KP}, v158")
        a(f"global_load_dwordx4 {vr(G+4,4)}, v137, {sr(P_WS,2)} sc1")
        a(f"v_add_u32 v137, {64*KP}, v158")
        a(f"global_load_dwordx4 {vr(G2,4)}, v137, {sr(P_WS,2)} sc1")
        a(f"global_load_dwordx4 {vr(G2+4,4)}, v138, {sr(P_WS,2)} sc1")
    X = lambda t, ch, i: UX + 16 * t + 4 * ch + i
    C = 64

    def unpack(t):
        for i in range(4):
            r = UL + 8 * t + 2 * i
            a(f"v_lshlrev_b32 v{X(t,0,i)}, 16, v{r}")
            a(f"v_and_b32 v{X(t,1,i)}, 0xffff0000, v{r}")
            a(f"v_lshlrev_b32 v{X(t,2,i)}, 16, v{r+1}")
            a(f"v_and_b32 v{X(t,3,i)}, 0xffff0000, v{r+1}")
    post(a, 57, CISS, 139)
    a(f"s_setprio {env('UPRIO', 3)}")
    a.stamp(7)
    for t in range(2):
        for h in range(2):
            a(f"s_waitcnt vmcnt({6-4*t-2*h})")
            for ch in range(4):
                r = UL + 8 * t + 4 * h + (ch >> 1)
                a(f"v_perm_b32 v{C+8*t+2*ch+h}, v{r}, v{r+2}, s{74+(ch&1)}")
        if t:
            a.stamp(1)
        for ch in range(4):
            a(f"ds_write_b64 v58, {vr(C+8*t+2*ch,2)} offset:{CHP*ch+1024*t}")
    post(a, 57, CCONV, 143)
    a(f"s_setprio {env('EPRIO', 3)}")
    a.stamp(2)
    if env("UST", 0):
        a.stamp = lambda i: None
    a("s_cmp_ge_u32 s7, 2")
    a("s_cbranch_scc1 E_NOG")
    spin(a, 57, CISS, "gt", env("PFT", 4), 60, 12, sleep=1)
    for k in range(N1):
        if k == PFG:
            gload()
        a(f"s_add_u32 s15, s7, {N0+2*N2+2*k}")
        pf_item(a, 15, f"E{k}")
    if PFG >= N1:
        gload()
    a.lab("E_NOG")
    if env("ENOP", 0):
        a("s_sleep 90")
    OM, XD, Y, YF = 140, 64, 96, 112
    rnd = lambda r: a(f"v_cvt_pk_bf16_f32 v{r}, 0, v{r}")
    unpack(0)
    unpack(1)

    def gates():
        a("s_cmp_lt_u32 s7, 2")
        a("s_cbranch_scc1 E_G1")
        spin(a, 57, CG, "ne", 2, 60, 12)
        a(f"ds_read_b128 {vr(G,4)}, v147")
        a(f"ds_read_b128 {vr(G+4,4)}, v147 offset:2048")
        a(f"ds_read_b32 v144, v57 offset:{TAGW}")
        a("s_waitcnt lgkmcnt(0)")
        a("s_branch E_GX")
        a.lab("E_G1")
        a("s_mov_b32 s12, 0")
        a(f"s_waitcnt vmcnt({max(0, N1-PFG)})")
        a("s_branch E_GCHK")
        a.lab("E_GPOLL")
        gload()
        a("s_add_u32 s12, s12, 1")
        a("s_waitcnt vmcnt(0)")
        a.lab("E_GCHK")
        a("v_xor_b32 v61, 1, v145")
        for r in list(range(G, G + 8)) + list(range(G2, G2 + 8)):
            a(f"v_bitop3_b32 v61, v61, v{r}, v144 bitop3:0xf6")
        a("v_and_b32 v61, 0xffff, v61")
        a("v_cmp_ne_u32 vcc, 0, v61")
        a(f"s_cmp_ge_u32 s12, {SPIN}")
        a("s_cbranch_scc1 E_GOK")
        if not env("NOG", 0):
            a("s_cbranch_vccnz E_GPOLL")
        a.lab("E_GOK")
        for k, r in enumerate((G2, G2 + 4, G, G + 4)):
            a(f"ds_write_b128 v147, {vr(r,4)} offset:{2048*((k+2)&3)}")
        a(f"ds_write_b32 v57, v144 offset:{TAGW}")
        post(a, 57, CG, 139)
        a.lab("E_GX")
        a.stamp(3)
        for t in range(2):
            a(f"ds_write_b128 v142, {vr(UL+8*t,4)} offset:{4096*t}")
            a(f"ds_write_b128 v142, {vr(UL+8*t+4,4)} offset:{4096*t+16}")
        post(a, 57, CDUMP, 139)

    def gx(t):
        g = G + 4 * t
        for i in range(4):
            a(f"v_and_b32 v{g+i}, 0xffff0000, v{g+i}")
        if FUSE:
            return
        for i in range(4):
            a(f"v_sub_f32 v{OM+i}, 1.0, v{g+i}")
            rnd(OM + i)
        for ch in range(4):
            for i in range(4):
                a(f"v_mul_f32 v{X(t,ch,i)}, v{X(t,ch,i)}, v{OM+i}")
                rnd(X(t, ch, i))
    a("s_cmp_ge_u32 s7, 2")
    a("s_cbranch_scc1 E_GATES")
    for t in range(2):
        g = G + 4 * t
        if t == 0:
            a.lab("E_T0")
        else:
            gx(1)
        spin(a, 141, 64 * t, "eq", 0, 60, 12)
        a.stamp(4 + t)
        for ch in range(4):
            va, o = (159, 136)[ch >> 1], YCH * (ch & 1) + 2560 * t
            a(f"ds_read_b128 {vr(Y+4*ch,4)}, v{va} offset:{o}")
            a(f"ds_read_b128 {vr(YF+4*ch,4)}, v{va} offset:{o+10240}")
        for ch in range(4):
            a(f"s_waitcnt lgkmcnt({6-2*ch})")
            for i in range(4):
                y = Y + 4 * ch + i
                a(f"v_add_f32 v{y}, v{y}, v{YF+4*ch+i}")
                a(f"v_fmac_f32 v{y}, v{X(t,ch,i)}, v{DS+ch}")
        if t == 0:
            a("s_cmp_ge_u32 s7, 2")
            a("s_cbranch_scc1 E_OUT0")
            a.lab("E_GATES")
            gates()
            gx(0)
            a("s_cmp_ge_u32 s7, 2")
            a("s_cbranch_scc1 E_T0")
            a.lab("E_OUT0")
        for i in range(4):
            for ch in range(4):
                y = Y + 4 * ch + i
                if FUSE:
                    a(f"v_fma_f32 v{y}, v{y}, v{g+i}, v{X(t,ch,i)}")
                    continue
                a(f"v_mul_f32 v{y}, v{y}, v{g+i}")
                rnd(y)
                a(f"v_add_f32 v{y}, v{y}, v{X(t,ch,i)}")
            a(f"v_cvt_pk_bf16_f32 v{YF+4*i+2}, v{Y+i}, v{Y+4+i}")
            a(f"v_cvt_pk_bf16_f32 v{YF+4*i+3}, v{Y+8+i}, v{Y+12+i}")
            a("s_cmp_ge_u32 s101, 16")
            a(f"s_cbranch_scc1 E_NS{t}{i}")
            a(f"global_store_dwordx2 v{5+t}, {vr(YF+4*i+2,2)}, {sr(P_OUT,2)} offset:{1152*i}")
            a.lab(f"E_NS{t}{i}")
        a("s_cmp_lt_u32 s101, 16")
        a(f"s_cbranch_scc1 E_WX{t}")
        for i in range(4):
            a(f"v_mov_b32 v{YF+4*i}, v144")
            a(f"v_mov_b32 v{YF+4*i+1}, v144")
        a(f"s_mul_i32 s8, s6, {RP}")
        a("s_lshl_b32 s9, s72, 12")
        a("s_add_u32 s8, s8, s9")
        a(f"s_add_u32 s8, s8, {(WS_R-128*RP+8192*t) & 0xffffffff}")
        a("v_lshl_add_u32 v60, v2, 4, s8")
        for i in range(4):
            a(f"global_store_dwordx4 v60, {vr(YF+4*i,4)}, {sr(P_WS,2)} offset:{1024*i} sc1")
        a.lab(f"E_WX{t}")
    a.stamp(6)
    if env("UST", 0):
        del a.stamp
    a("s_waitcnt vmcnt(0)")
    if env("WB", 0):
        a(f"s_cmp_lg_u32 s7, {env('WBW', 3)}")
        a("s_cbranch_scc1 W_END")
        if env("WB", 0) == 2:
            a("s_cmp_lg_u32 s101, 0")
            a("s_cbranch_scc1 W_END")
        a("buffer_wbl2 sc1")
    a.end()


def finalizer(a):
    a.lab("FINAL")
    a("v_and_b32 v5, 7, v2")
    a("v_lshlrev_b32 v5, 2, v5")
    a("s_lshl_b32 s10, s6, 3")
    a(f"s_load_dwordx2 s[52:53], {sr(P_DSK,2)}, s10")
    spin(a, 167, CDUMP, "ne", 4, 42, 12)
    a(f"ds_read_b32 v42, v167 offset:{TAGW}")
    a("s_waitcnt lgkmcnt(0)")
    sel_poll(a, 42, "F", early=124)
    a("v_and_b32 v9, 0xff, v42")
    a("v_not_b32 v10, v8")
    a("v_and_b32 v10, 0x7ff, v10")
    a("v_and_b32 v23, 3, v2")
    a("v_mul_u32_u24 v11, 1152, v10")
    a("v_lshl_add_u32 v11, v23, 1, v11")
    a("v_add_u32 v11, s10, v11")
    a("v_lshlrev_b32 v14, 3, v10")
    a("v_lshl_add_u32 v14, v23, 1, v14")
    a(f"v_add_u32 v14, {XR}, v14")
    a("ds_read_u16 v24, v14")
    a("v_lshlrev_b32 v14, 2, v10")
    a(f"v_add_u32 v14, {GL}, v14")
    a("ds_read_b32 v15, v14")
    a("v_lshrrev_b32 v16, 8, v10")
    a("v_mul_u32_u24 v16, 1280, v16")
    a("v_and_b32 v17, 0xf0, v10")
    a("v_add_u32 v16, v16, v17")
    a("v_bfe_u32 v17, v10, 2, 2")
    a("v_mul_u32_u24 v17, 320, v17")
    a("v_add_u32 v16, v16, v17")
    a("v_and_b32 v17, 3, v10")
    a("v_lshl_add_u32 v16, v17, 2, v16")
    a(f"v_mul_u32_u24 v17, {YCH}, v23")
    a("v_add_u32 v16, v16, v17")
    a(f"v_add_u32 v18, {SYN+FLG+224}, v5")
    a("v_and_b32 v20, 0xffff0000, v8")
    a("v_not_b32 v21, v20")
    a("v_ashrrev_i32 v21, 31, v21")
    a("v_and_b32 v21, 0x7fff0000, v21")
    a("v_or_b32 v21, 0x80000000, v21")
    a("v_xor_b32 v20, v20, v21")
    sigmoid_bf16(a, 20, 21)
    a("v_and_b32 v20, 0xffff0000, v20")
    a("s_waitcnt lgkmcnt(0)")
    a("v_and_b32 v15, 0xffff0000, v15")
    a("v_sub_f32 v21, 1.0, v15")
    a("v_cvt_pk_bf16_f32 v21, v21, v21")
    a("v_and_b32 v21, 0xffff0000, v21")
    a("v_lshlrev_b32 v24, 16, v24")
    a("v_lshlrev_b32 v25, 4, v23")
    a("v_lshrrev_b64 v[26:27], v25, s[52:53]")
    a("v_lshlrev_b32 v26, 16, v26")
    rnd = lambda r: a(f"v_cvt_pk_bf16_f32 v{r}, 0, v{r}")
    a("v_mul_f32 v26, v26, v24")
    rnd(26)
    a(f"s_mul_i32 s8, s6, {PS}")
    a(f"s_add_u32 s8, s8, {WS_PART}")
    spin(a, 18, 0, "eq", 0, 22, 12)
    a("ds_read_b32 v28, v16")
    a("ds_read_b32 v29, v16 offset:10240")
    a("v_lshl_add_u32 v22, v2, 4, s8")
    a("s_mov_b32 s72, 0x00ff00ff")
    a("s_mov_b32 s73, 0x00ff00ff")
    a("s_waitcnt lgkmcnt(0)")
    a("v_add_f32 v28, v28, v29")
    rnd(28)
    a("v_add_f32 v28, v28, v26")
    rnd(28)
    a("v_mul_f32 v28, v28, v15")
    rnd(28)
    a.stamp(6)
    P = 48
    if env("NOFIN", 0):
        a.end()
    if FREP:
        a("v_min_u32 v33, 4, v2")
        a("s_lshl_b32 s11, s4, 7")
        a("v_lshl_add_u32 v33, v33, 2, s11")
        a("s_mov_b32 s12, 0")
        a.lab("FN_R")
        a(f"global_load_dword v34, v33, {sr(P_WS,2)} offset:{WS_HINT} sc1")
        a("s_add_u32 s12, s12, 1")
        a("s_waitcnt vmcnt(0)")
        a("v_cmp_ne_u32 vcc, v34, v42")
        a("s_cmp_ge_u32 s12, 64")
        a("s_cbranch_scc1 FN_RX")
        a("s_cbranch_vccz FN_RX")
        a(f"s_sleep {env('FHS', 2)}")
        a("s_branch FN_R")
        a.lab("FN_RX")
        a.stamp(1)
    a("s_mov_b32 s12, 0")
    a.lab("FN_P")
    a(f"global_load_dwordx4 {vr(P,4)}, v22, {sr(P_WS,2)} sc1")
    a("s_add_u32 s12, s12, 1")
    a("s_waitcnt vmcnt(0)")
    for i in range(4):
        a(f"v_xor_b32 v{P+i}, v{P+i}, v9")
    a(f"v_or3_b32 v32, v{P}, v{P+1}, v{P+2}")
    a(f"v_or_b32 v32, v32, v{P+3}")
    a("v_and_b32 v32, 0xff, v32")
    a("v_cmp_ne_u32 vcc, 0, v32")
    a(f"s_cmp_ge_u32 s12, {4*SPIN}")
    a("s_cbranch_scc1 FN_POK")
    a("s_cbranch_vccz FN_POK")
    a("s_mov_b64 exec, vcc")
    if FSL:
        a(f"s_sleep {FSL}")
    a("s_branch FN_P")
    a.lab("FN_POK")
    a("s_mov_b64 exec, -1")
    if STAMP:
        a("s_mul_i32 s12, s12, 100")
        a("s_add_u32 s90, s84, s12")
    a.stamp(2)
    a(f"v_permlane32_swap_b32 v{P}, v{P+2}")
    a(f"v_permlane32_swap_b32 v{P+1}, v{P+3}")
    a(f"v_add_f32 v{P}, v{P}, v{P+2}")
    a(f"v_add_f32 v{P+1}, v{P+1}, v{P+3}")
    a.nop(2)
    a(f"v_permlane16_swap_b32 v{P}, v{P+1}")
    a(f"v_add_f32 v{P}, v{P}, v{P+1}")
    a.nop(2)
    a(f"v_add_f32_dpp v{P}, v{P}, v{P} row_ror:8 {DPPF}")
    rnd(P)
    a(f"v_mul_f32 v{P}, v{P}, v20")
    rnd(P)
    a(f"v_add_f32 v{P}, v{P}, v24")
    rnd(P)
    a(f"v_mul_f32 v{P}, v{P}, v21")
    rnd(P)
    a(f"v_add_f32 v{P}, v{P}, v28")
    rnd(P)
    if os.environ.get("PERT"):
        a(f"v_add_f32 v{P}, {fbits(float(os.environ['PERT'])):#x}, v{P}")
    a("s_barrier")
    a("s_mov_b64 exec, s[72:73]")
    a(f"global_store_short_d16_hi v11, v{P}, {sr(P_OUT,2)}")
    a.stamp(7)
    a.end()


def const_table(a):
    a.L.append(".p2align 7")
    a.lab("CONST_TAB")
    perm = [1, 0, 3, 2, 5, 4, 7, 6]
    for w0, lo, hi, one in ((-16, 3, 5, 0x3c00), (-16, 6, 10, 0x3c00),
                            (-16, 5, 11, 0x3c00), (-24, 12, 20, 0x3c00), (-16, 3, 4, 0xffff)):
        for lane in range(64):
            c, g = lane & 15, lane >> 4
            e = [one if lo <= c - (w0 + 8 * g + perm[k]) <= hi else 0 for k in range(8)]
            a(".long " + ", ".join(f"{e[2*p] | e[2*p+1] << 16:#x}" for p in range(4)))


def kernel(a):
    a.L.append(".p2align 8")
    a.L.append(".globl k1_kernel")
    a.L.append(".type k1_kernel,@function")
    a.lab("k1_kernel")
    a.stamp(0)
    a("s_cmp_ge_u32 s2, 256")
    a("s_cbranch_scc1 K_END")
    a("s_load_dwordx16 s[16:31], s[0:1], 0")
    a("s_load_dwordx16 s[32:47], s[0:1], 64")
    a("s_load_dwordx4 s[48:51], s[0:1], 128")
    a("v_lshrrev_b32 v1, 6, v0")
    a("v_and_b32 v2, 63, v0")
    a("v_readfirstlane_b32 s3, v1")
    a("v_and_b32 v3, 15, v2")
    a("v_lshrrev_b32 v4, 4, v2")
    a("s_and_b32 s4, s2, 7")
    a("s_lshr_b32 s5, s2, 3")
    a("s_cmp_lg_u32 s3, 0")
    a("s_cbranch_scc1 K_NOCPF")
    a("s_getpc_b64 s[8:9]")
    a("s_and_b32 s8, s8, 0xffffff00")
    a("v_and_b32 v5, 7, v2")
    a("v_lshl_add_u32 v5, s5, 3, v5")
    a("v_lshlrev_b32 v5, 7, v5")
    a("v_min_u32 v5, CODE_END-k1_kernel-4, v5")
    a("global_load_dword v167, v5, s[8:9]")
    a.lab("K_NOCPF")
    a("s_cmp_lt_u32 s2, 112")
    a("s_cbranch_scc1 K_NC")
    touch(a, "K")
    a("s_sub_u32 s101, s5, 14")
    if LINE:
        a("s_cmp_lt_u32 s101, 16")
        a("s_cselect_b32 s6, 4, 1")
        a("s_cselect_b32 s8, 0, 112")
        a("s_lshl_b32 s6, s4, s6")
        a("s_add_u32 s6, s6, s8")
    else:
        a("s_mul_i32 s6, s4, 18")
    a("s_add_u32 s6, s6, s101")
    a("s_cmp_lt_u32 s3, 8")
    a("s_cbranch_scc1 CK_PRO")
    cu_pro(a)
    ck_pro(a)
    a.lab("K_NC")
    touch(a, "N")
    a("s_lshl_b32 s6, s2, 4")
    a("s_lshl_b32 s7, s3, 2")
    a("s_sub_u32 s7, s7, 32")
    a("s_cmp_ge_u32 s3, 8")
    a("s_cbranch_scc1 RT_PRO")
    a("s_cmp_lt_u32 s2, 72")
    a("s_cbranch_scc1 F_PRO")
    a("s_cmp_lt_u32 s3, 6")
    a("s_cbranch_scc1 HELPER")
    a("s_cmp_lt_u32 s2, 80")
    a("s_cbranch_scc1 HELPER")
    a("s_add_u32 s7, s7, 24")
    a("s_lshr_b32 s6, s6, 1")
    a(f"s_add_u32 s6, s6, {1792-640-16}")
    router_pro(a)
    ffn_pro(a)
    helper(a)
    router_main(a)
    down_main(a)
    ffn_main(a)
    selector(a)
    ck_main(a)
    cu_main(a)
    finalizer(a)
    a.lab("W_END")
    a.end()
    stamp_out(a)
    a.lab("K_END")
    a("s_endpgm")
    a.lab("CODE_END")


def main():
    ref = open(os.path.join(HERE, NAME + ".s.ref")).read().splitlines()
    head = [l for l in ref if l.startswith(";") and "@launch" not in l and "Override" not in l and "grid=ceil" not in l]
    a = Asm()
    kernel(a)
    if TOUCH:
        plan = {}
        if TOUCH & 1:
            plan["N"] = ([(w, 2) for w in range(8)], [("HELPER", "F_SLOW", 1)])
        if TOUCH & 2:
            plan["U"] = ([(10, 9), (11, 9)], [("CK_SKIP", "W_END", 1)])
        if TOUCH & 4:
            plan["F"] = ([(w, 1) for w in range(8)], [("RT_TAIL", "F_MAIN", 1), ("F_MAIN", "SEL_MAIN", 0)])
            plan["S"] = ([(w, 1) for w in range(8)], [("SEL_MAIN", "F_SLOW", 0)])
        a.L = place_pads([l for l in a.L if not l.startswith("@TOUCH") or l[7:] in plan], plan)
    else:
        a.L = [l for l in a.L if not l.startswith("@TOUCH")]
    grp = []
    if STAMP and not AMP:
        F, H, C = "list(range(72))", "list(range(72,112))", "list(range(112,256))"
        grp = [f'; GROUPS ([("ctl",{F},[8]),("sel",list(range(72,80)),list(range(8))),("dn",list(range(80,112)),list(range(12))),("ffn",{F},list(range(8))),("D",{C},[0,1,2,3]),("Z",{C},[5,6,7]),("fin",{C},[4]),("E1",{C},[8,9]),("E2",{C},[10,11])],12)']
    out = head + grp + [
        f"; @launch kernel=k1_kernel grid=(256,1,1) block=(768,1,1) lds={LDS_BYTES}",
        '.amdgcn_target "amdgcn-amd-amdhsa--gfx950"',
        ".text",
    ] + a.L + [
        '.section .rodata,"a"',
        ".p2align 6",
        ".amdhsa_kernel k1_kernel",
        "  .amdhsa_next_free_vgpr 168",
        "  .amdhsa_next_free_sgpr 102",
        "  .amdhsa_accum_offset 168",
        "  .amdhsa_group_segment_fixed_size 0",
        "  .amdhsa_kernarg_size 144",
        "  .amdhsa_user_sgpr_count 2",
        "  .amdhsa_user_sgpr_kernarg_segment_ptr 1",
        "  .amdhsa_system_sgpr_workgroup_id_x 1",
        ".end_amdhsa_kernel",
    ]
    path = sys.argv[1] if len(sys.argv) > 1 else os.path.join(HERE, NAME + ".s")
    open(path, "w").write("\n".join(out) + "\n")


if __name__ == "__main__":
    main()
```
